```python
import torch

def _softmax(x, axis=-1):
    return torch.softmax(x, dim=axis)
def _gelu(x):
    return torch.nn.functional.gelu(x, approximate="tanh")
def _silu(x):
    return torch.nn.functional.silu(x)
def _sigmoid(x):
    return torch.sigmoid(x)
def _layernorm(x, axis=-1, eps=1e-5):
    m = x.mean(dim=axis, keepdim=True)
    v = x.var(dim=axis, keepdim=True, unbiased=False)
    return (x - m) / torch.sqrt(v + eps)
def _scatter_add(tgt, idx, src, axis=0):
    return tgt.clone().index_add_(axis, idx, src)
def _segment_sum(src, seg, n):
    out = torch.zeros((n,) + src.shape[1:], dtype=src.dtype)
    return out.index_add_(0, seg, src)
def _pad(x, pw):
    flat = tuple(v for pair in reversed(pw) for v in pair)
    return torch.nn.functional.pad(x, flat)

kernel_name = 'recurrent_scan__sliding_block__glu_gated_glu__prompt'

def setup_inputs():

    _w = (lambda a: (lambda t: t.to(torch.bfloat16) if t.is_floating_point() else t)(torch.as_tensor(a)))
    def _A_setup():
        B, S, D = 1, 2048, 576
        return {
            "x": _w((lambda *s: torch.randn(*s, dtype=torch.bfloat16) * 0.05)(B, S, D)),
            "wqkv": _w((lambda *s: torch.randn(*s, dtype=torch.bfloat16) * 0.05)(D, 3 * D)),
            "wo": _w((lambda *s: torch.randn(*s, dtype=torch.bfloat16) * 0.05)(D, D)),
        }
    _A_in = _A_setup()

    def _B_setup():
        B, S, D, F = 1, 2048, 576, 4608
        return {
            "x": _w((lambda *s: torch.randn(*s, dtype=torch.bfloat16) * 0.05)(B, S, D)),
            "w_gate": _w((lambda *s: torch.randn(*s, dtype=torch.bfloat16) * 0.05)(D, F)),
            "w_up": _w((lambda *s: torch.randn(*s, dtype=torch.bfloat16) * 0.05)(D, F)),
            "w_down": _w((lambda *s: torch.randn(*s, dtype=torch.bfloat16) * 0.05)(F, D)),
        }
    _B_in = _B_setup()

    return {
        "A_x": _A_in["x"],
        "A_wqkv": _A_in["wqkv"],
        "A_wo": _A_in["wo"],
        "B_x": _B_in["x"],
        "B_w_gate": _B_in["w_gate"],
        "B_w_up": _B_in["w_up"],
        "B_w_down": _B_in["w_down"],
    }

def reference(A_x, A_wqkv, A_wo, B_x, B_w_gate, B_w_up, B_w_down):
    def _A_ref(x, wqkv, wo):
        B, S, D = x.shape
        H = 32; Dh = D // H; W = 256
        qkv = (lambda x, *d: x.permute(*d))((x @ wqkv).reshape(B, S, 3, H, Dh), 2, 0, 3, 1, 4)
        q, k, v = qkv[0], qkv[1], qkv[2]
        scores = torch.einsum("bhqd,bhkd->bhqk", q, k) * (Dh ** -0.5)
        idx = torch.arange(S)
        mask = (idx[:, None] - idx[None, :] >= 0) & (idx[:, None] - idx[None, :] < W)
        scores = torch.where(mask[None, None], scores, -1e9)
        p = _softmax(scores, axis=-1)
        o = torch.einsum("bhqk,bhkd->bhqd", p, v)
        return (lambda x, *d: x.permute(*d))(o, 0, 2, 1, 3).reshape(B, S, D) @ wo

    def _B_ref(x, w_gate, w_up, w_down):
        g = torch.einsum("bsd,df->bsf", x, w_gate)
        u = torch.einsum("bsd,df->bsf", x, w_up)
        h = _sigmoid(g) * u
        return torch.einsum("bsf,fd->bsd", h, w_down)

    x = A_x
    xn = _layernorm(x, axis=-1)
    s = _A_ref(xn, A_wqkv, A_wo)
    g = _silu(_B_ref(xn, B_w_gate, B_w_up, B_w_down))
    return x + s * g
```

```python
import re

_REG = re.compile(r"^(-?\|?)([vsa])(?:(\d+)|\[(\d+):(\d+)\])\|?$")
TRANS = ("v_exp_f32", "v_rcp_f32", "v_rsq_f32", "v_sqrt_f32", "v_log_f32")


def regs_of(tok):
    tok = tok.strip()
    if tok == "vcc":
        return "s", {106, 107}
    if tok == "exec":
        return "s", {126, 127}
    if tok == "m0":
        return "s", {124}
    m = _REG.match(tok)
    if not m:
        return None, set()
    f = m.group(2)
    if m.group(3) is not None:
        lo = hi = int(m.group(3))
    else:
        lo, hi = int(m.group(4)), int(m.group(5))
    return f, set(range(lo, hi + 1))


class Ins:
    __slots__ = ("text", "kind", "vw", "vr", "sw", "sr", "ws", "ab", "c", "op")


def parse(text):
    t = text.split(";")[0].strip()
    i = Ins()
    i.text = text
    i.vw, i.vr, i.sw, i.sr, i.ab, i.c = set(), set(), set(), set(), set(), set()
    i.ws = 1
    parts = t.split(None, 1)
    op = parts[0]
    i.op = op
    rest = parts[1] if len(parts) > 1 else ""
    rest = re.sub(r"\b(op_sel|op_sel_hi|neg_lo|neg_hi):\[[^\]]*\]", "", rest)
    ops = [o.strip() for o in rest.split(",")] if rest else []
    toks = []
    mods = []
    for k, o in enumerate(ops):
        sp = o.split()
        if not sp:
            continue
        toks.append(sp[0])
        mods += sp[1:]

    def rd(tok):
        f, r = regs_of(tok)
        if f == "v":
            i.vr |= r
        elif f == "s":
            i.sr |= r
        return r if f == "v" else set()

    def wr(tok):
        f, r = regs_of(tok)
        if f == "v":
            i.vw |= r
        elif f == "s":
            i.sw |= r

    if op.startswith("v_mfma"):
        i.kind = "mfma"
        wr(toks[0])
        i.ab = rd(toks[1]) | rd(toks[2])
        i.c = rd(toks[3])
    elif op.startswith("v_cmpx"):
        raise ValueError("no cmpx")
    elif op.startswith("v_cmp"):
        i.kind = "valu"
        wr(toks[0])
        for x in toks[1:]:
            rd(x)
    elif op.startswith("v_readfirstlane") or op.startswith("v_readlane"):
        i.kind = "valu"
        wr(toks[0])
        for x in toks[1:]:
            rd(x)
    elif op.startswith("v_permlane"):
        i.kind = "valu"
        for x in toks[:2]:
            wr(x)
            rd(x)
    elif op.startswith("v_"):
        i.kind = "trans" if op.replace("_e32", "").replace("_e64", "") in TRANS else "valu"
        wr(toks[0])
        if op.startswith("v_fmac") or op.startswith("v_dot2c"):
            rd(toks[0])
        for x in toks[1:]:
            rd(x)
    elif op.startswith("ds_read") or op.startswith("ds_bpermute"):
        i.kind = "ds"
        wr(toks[0])
        for x in toks[1:]:
            rd(x)
    elif op.startswith("ds_write"):
        i.kind = "ds"
        for x in toks:
            rd(x)
    elif op.startswith("buffer_load"):
        if "lds" in mods:
            i.kind = "dma"
            for x in toks:
                rd(x)
            i.sr |= {124}
        else:
            i.kind = "vld"
            wr(toks[0])
            for x in toks[1:]:
                rd(x)
    elif op.startswith("buffer_store"):
        i.kind = "vst"
        for x in toks:
            rd(x)
        i.c = regs_of(toks[0])[1] if ("x4" in op or "x3" in op) else set()
    elif op.startswith("buffer_atomic"):
        i.kind = "vst"
        for x in toks:
            rd(x)
        if "sc0" in mods:
            wr(toks[0])
    elif op == "s_waitcnt":
        i.kind = "salu"
    elif op == "s_nop":
        i.kind = "nop"
        i.ws = int(toks[0], 0) + 1
    elif op.startswith("s_"):
        i.kind = "salu"
        nodst = ("s_cmp", "s_waitcnt", "s_barrier", "s_branch", "s_cbranch", "s_endpgm", "s_setprio", "s_sleep", "s_bitcmp")
        if any(op.startswith(x) for x in nodst):
            for x in toks:
                rd(x)
        else:
            if toks:
                wr(toks[0])
            for x in toks[1:]:
                rd(x)
            if "saveexec" in op:
                i.sw |= {126, 127}
    else:
        raise ValueError("unknown op " + text)
    return i


def need(p, c):
    n = 0
    pv = p.kind in ("valu", "trans")
    cv = c.kind in ("valu", "trans")
    cmem = c.kind in ("ds", "vld", "vst", "dma")
    if pv:
        if c.kind == "mfma" and (p.vw & c.vr):
            n = max(n, 2)
        if p.kind == "trans" and c.kind == "valu" and (p.vw & (c.vr | c.vw)):
            n = max(n, 1)
        if p.kind == "trans" and (cmem or c.kind == "mfma") and (p.vw & c.vr):
            n = max(n, 1)
        if p.sw:
            if c.kind in ("vld", "vst", "dma") and (p.sw & c.sr):
                n = max(n, 5)
            if cv and (p.sw & c.sr):
                n = max(n, 4 if c.op.startswith("v_readlane") else 2)
            if c.kind == "salu" and (p.sw & c.sr):
                n = max(n, 1)
        if (c.op.startswith("v_readfirstlane") or c.op.startswith("v_readlane")) and (p.vw & c.vr):
            n = max(n, 1)
        if c.op.startswith("v_permlane") and (p.vw & c.vr):
            n = max(n, 2)
        if "dpp" in c.text and (p.vw & c.vr):
            n = max(n, 2)
    if p.kind == "mfma":
        passes = 4 if "16x16x32" in p.op else 8
        big = {4: 8, 8: 12}[passes]
        if c.kind == "mfma":
            if p.vw & c.ab:
                n = max(n, big)
            if (p.vw & c.c) and p.vw != c.c:
                n = max(n, big - 2)
            if (p.vw & c.vw) and p.vw != c.c:
                n = max(n, big)
        elif (cv or cmem) and (p.vw & (c.vr | c.vw)):
            n = max(n, big)
        if cv and (p.c & c.vw):
            n = max(n, {4: 3, 8: 7}[passes])
    if p.kind == "salu" and 124 in p.sw and c.kind == "dma":
        n = max(n, 1)
    if p.kind == "vst" and p.c and (p.c & c.vw):
        n = max(n, 2 if cv else 1)
    if p.kind == "salu" and (p.sw & {126, 127}) and False:
        pass
    return n


class Asm:
    def __init__(self):
        self.out = []
        self.hist = []
        self.vm = 0
        self.lg = 0
        self.vm_done = 0
        self.lg_done = 0
        self.nins = 0
        self.always = False

    def raw(self, s):
        self.out.append(s)

    def label(self, name):
        self.out.append(name + ":")
        self.barrier_hist()

    def barrier_hist(self):
        self.hist = []

    def e(self, text):
        ins = parse(text)
        dist = 0
        req = 0
        for p in reversed(self.hist):
            n = need(p, ins)
            if n > dist:
                req = max(req, n - dist)
            dist += p.ws
            if dist >= 20:
                break
        if req > 0:
            nop = parse(f"s_nop {req-1}")
            self.out.append(f"    s_nop {req-1}")
            self.hist.append(nop)
            self.nins += 1
        self.out.append("    " + text)
        self.hist.append(ins)
        if len(self.hist) > 40:
            self.hist = self.hist[-30:]
        self.nins += 1
        if ins.kind in ("vld", "vst", "dma"):
            self.vm += 1
            return self.vm
        if ins.kind == "ds":
            self.lg += 1
            return self.lg
        return None

    def e_untracked(self, text):
        vm, lg = self.vm, self.lg
        self.e(text)
        self.vm, self.lg = vm, lg

    def wait_vm(self, ticket):
        if ticket is None or (ticket <= self.vm_done and not self.always):
            return
        n = min(self.vm - ticket, 63)
        self.e(f"s_waitcnt vmcnt({n})")
        self.vm_done = max(self.vm_done, self.vm - n)

    def wait_lg(self, ticket):
        if ticket is None or (ticket <= self.lg_done and not self.always):
            return
        n = min(self.lg - ticket, 15)
        self.e(f"s_waitcnt lgkmcnt({n})")
        self.lg_done = max(self.lg_done, self.lg - n)

    def wait_all(self):
        self.e("s_waitcnt vmcnt(0) lgkmcnt(0)")
        self.vm_done = self.vm
        self.lg_done = self.lg

    def wait_lg0(self):
        self.e("s_waitcnt lgkmcnt(0)")
        self.lg_done = self.lg

    def wait_vm0(self):
        self.e("s_waitcnt vmcnt(0)")
        self.vm_done = self.vm

    def text(self):
        return "\n".join(self.out) + "\n"


def vr(a, n=1):
    return f"v{a}" if n == 1 else f"v[{a}:{a+n-1}]"


def sr(a, n=1):
    return f"s{a}" if n == 1 else f"s[{a}:{a+n-1}]"
```

```python
import os
from asmlib import vr, sr
import __main__ as G

Q0 = 0x3000000
QX = 0x3200000
QSCALE = 0x3EAE1B5D


def att(a):
    import struct, math
    qs = struct.unpack("<I", struct.pack("<f", (18 ** -0.5) * math.log2(math.e)))[0]
    (S_W, S_R, S_C, S_RB, S_HG, S_T0, S_T1, S_T2, S_T3) = (G.S_W, G.S_R, G.S_C, G.S_RB, G.S_HG, G.S_T0, G.S_T1, G.S_T2, G.S_T3)
    R_X, R_W1, R_W2, R_WS, R_DBG, R_A, R_B = G.R_X, G.R_W1, G.R_W2, G.R_WS, G.R_DBG, G.R_A, G.R_B
    V_LANE, V_L16, V_RD, FR, ACC, X = G.V_LANE, G.V_L16, G.V_RD, G.FR, G.ACC, G.X
    PD = G.PD
    S_WLDS, S_W1B, S_W2B, S_RT0, S_RT1, S_HB, S_KS, S_W2X = 61, 62, 63, 64, 65, 66, 67, 68
    VD = (3, 4, 76)
    VDX = (77, 78, 79)
    V_L8 = 80
    V_ONE = 81
    NS, SB = 8, 18432
    stamp = G.stamp

    G.srd(a, R_W1, G.S_WQKV, 1990656)
    G.srd(a, R_W2, G.S_WO, 663552)
    stamp(a)
    xtk = G.x_stage_issue(a)
    t0, t1, t2, t3 = 82, 83, 84, 85
    a.e(f"s_lshl_b32 s{S_T0}, s{S_W}, 6")
    a.e(f"v_add_u32 v{t0}, s{S_T0}, v{V_LANE}")
    a.e(f"v_lshrrev_b32 v{t1}, 3, v{t0}")
    a.e(f"v_and_b32 v{t2}, 7, v{t0}")
    a.e(f"v_min_u32 v{t2}, 5, v{t2}")
    a.e(f"v_lshlrev_b32 v{t2}, 6, v{t2}")
    a.e(f"v_min_u32 v{t2}, 284, v{t2}")
    a.e(f"v_cmp_gt_u32 vcc, 36, v{t1}")
    a.e(f"v_mul_u32_u24 v{t3}, 3456, v{t1}")
    a.e(f"v_add_u32 v{t3}, v{t3}, v{t2}")
    a.e(f"v_cndmask_b32 v{t3}, -1, v{t3}, vcc")
    a.e(f"v_mul_u32_u24 v{t1}, 1152, v{t1}")
    a.e(f"v_add_u32 v{t1}, v{t1}, v{t2}")
    a.e(f"v_cndmask_b32 v{t1}, -1, v{t1}, vcc")
    a.e(f"s_mul_i32 s{S_T0}, s{S_RB}, {36*3456}")
    a.e(f"s_mul_i32 s{S_T1}, s{S_HG}, 288")
    a.e(f"s_add_u32 s{S_T0}, s{S_T0}, s{S_T1}")
    for sec in (1, 2, 0):
        a.e(f"s_add_u32 s{S_T2}, s{S_T0}, {sec*1152}")
        a.e(f"buffer_load_dword v0, v{t3}, {sr(R_W1,4)}, s{S_T2} offen")
    a.e(f"s_mul_i32 s{S_T0}, s{S_RB}, {36*1152}")
    a.e(f"s_add_u32 s{S_T0}, s{S_T0}, s{S_T1}")
    a.e(f"buffer_load_dword v0, v{t1}, {sr(R_W2,4)}, s{S_T0} offen")

    def dma_voffs(pitch, extras=False):
        for n in range(3):
            a.e(f"v_add_u32 v{t0}, {64*n}, v{V_LANE}")
            a.e(f"v_mul_u32_u24 v{t1}, 3641, v{t0}")
            a.e(f"v_lshrrev_b32 v{t1}, 16, v{t1}")
            a.e(f"v_mul_u32_u24 v{t2}, 18, v{t1}")
            a.e(f"v_sub_u32 v{t2}, v{t0}, v{t2}")
            a.e(f"v_mul_u32_u24 v{t3}, {pitch}, v{t1}")
            a.e(f"v_lshl_add_u32 v{VD[n]}, v{t2}, 4, v{t3}")
            if extras:
                a.e(f"v_lshrrev_b32 v{t3}, 2, v{t1}")
                a.e(f"v_mul_u32_u24 v{t3}, {32*pitch}, v{t3}")
                a.e(f"v_add_u32 v{VDX[n]}, v{VD[n]}, v{t3}")
    dma_voffs(3456)
    a.e(f"s_mul_i32 s{S_WLDS}, s{S_W}, 2304")
    a.e(f"s_mul_i32 s{S_W1B}, s{S_W}, {8*3456}")
    a.e(f"s_mul_i32 s{S_T1}, s{S_HG}, 288")
    a.e(f"s_add_u32 s{S_W1B}, s{S_W1B}, s{S_T1}")
    a.e(f"s_mul_i32 s{S_T0}, s{S_C}, 36")
    a.e(f"s_lshl_b32 s{S_T2}, s{S_R}, 3")
    a.e(f"s_add_u32 s{S_T0}, s{S_T0}, s{S_T2}")
    a.e(f"s_lshr_b32 s{S_T2}, s{S_R}, 1")
    a.e(f"s_lshl_b32 s{S_T3}, s{S_T2}, 2")
    a.e(f"s_add_u32 s{S_T0}, s{S_T0}, s{S_T3}")
    a.e(f"s_mul_i32 s{S_W2B}, s{S_T0}, 1152")
    a.e(f"s_add_u32 s{S_W2B}, s{S_W2B}, s{S_T1}")
    a.e(f"s_lshl_b32 s{S_T0}, s{S_C}, 1")
    a.e(f"s_add_u32 s{S_T0}, s{S_T0}, s{S_T2}")
    a.e(f"s_mul_i32 s{S_T0}, s{S_T0}, 144")
    a.e(f"s_and_b32 s{S_T2}, s{S_R}, 1")
    a.e(f"s_mul_i32 s{S_T2}, s{S_T2}, 72")
    a.e(f"s_add_u32 s{S_T0}, s{S_T0}, s{S_T2}")
    a.e(f"s_add_u32 s{S_T0}, s{S_T0}, 16")
    a.e(f"s_mul_i32 s{S_W2X}, s{S_T0}, 1152")
    a.e(f"s_add_u32 s{S_W2X}, s{S_W2X}, s{S_T1}")
    def rd_bases():
        a.e(f"v_lshrrev_b32 v{t0}, 2, v{V_LANE}")
        a.e(f"v_mul_u32_u24 v{t0}, 288, v{t0}")
        a.e(f"v_and_b32 v{t1}, 3, v{V_LANE}")
        a.e(f"v_lshl_add_u32 v{t2}, v{t1}, 3, v{t0}")
        a.e(f"s_mul_i32 s{S_T0}, s{S_C}, 144")
        a.e(f"v_add_u32 v{V_RD}, s{S_T0}, v{t2}")
        a.e(f"v_mul_u32_u24 v{t1}, 72, v{t1}")
        a.e(f"v_add3_u32 v{V_RD+3}, v{t0}, v{t1}, 32")
        for k in (1, 2):
            a.e(f"v_add_u32 v{V_RD+k}, {49152*k}, v{V_RD}")
            a.e(f"v_add_u32 v{V_RD+3+k}, {49152*k}, v{V_RD+3}")
    rd_bases()
    a.e(f"v_lshlrev_b32 v{V_L8}, 3, v{V_LANE}")
    a.e(f"v_mov_b32 v{V_ONE}, 0x3f803f80")
    a.e(f"s_lshl_b32 s{S_T0}, s{S_RB}, 3")
    a.e(f"s_lshl_b32 s{S_T1}, s{S_R}, 1")
    a.e(f"s_add_u32 s{S_T0}, s{S_T0}, s{S_T1}")
    a.e(f"s_add_u32 s{S_T0}, s{S_T0}, s{S_C}")
    a.e(f"s_mov_b32 s{S_RT0}, s{S_T0}")
    a.e(f"s_xor_b32 s{S_RT1}, s{S_T0}, 1")
    a.e(f"s_lshl_b32 s{S_HB}, s{S_HG}, 3")
    a.e(f"s_lshl_b32 s{S_T1}, s{S_C}, 2")
    a.e(f"s_add_u32 s{S_HB}, s{S_HB}, s{S_T1}")
    a.e(f"s_lshl_b32 s{S_HB}, s{S_HB}, 16")
    a.e(f"s_lshl_b32 s{S_KS}, s{S_RB}, 2")
    a.e(f"s_add_u32 s{S_KS}, s{S_KS}, s{S_R}")
    a.e(f"s_lshl_b32 s{S_KS}, s{S_KS}, 10")
    G.layernorm(a, xtk)
    stamp(a, 'f')

    dtk = {}
    SEC = {0: 1152, 1: 2304, 2: 0}

    def dma(Gs, n):
        if Gs >= 36:
            return
        p, s = Gs // 9, Gs % 9
        a.e(f"s_add_u32 m0, s{S_WLDS}, {(Gs % NS)*SB + n*1024}")
        if p < 3:
            a.e(f"s_add_u32 s{S_T3}, s{S_W1B}, {s*64*3456 + SEC[p]}")
            v, rs = VD[n], R_W1
        elif s < 8:
            a.e(f"s_add_u32 s{S_T3}, s{S_W2B}, {s*72*1152}")
            v, rs = VD[n], R_W2
        else:
            a.e(f"s_mov_b32 s{S_T3}, s{S_W2X}")
            v, rs = VDX[n], R_W2
        if n == 2:
            a.e("s_mov_b64 exec, 0xffff")
        dtk[Gs] = a.e(f"buffer_load_dwordx4 v{v}, {sr(rs,4)}, s{S_T3} offen lds")
        if n == 2:
            a.e("s_mov_b64 exec, -1")

    def acc(t, rho):
        return ACC + (t * 2 + rho) * 4 if t < 4 else ACC + 32

    TOFF = (0, 40, 72, 112)

    def gemm_pass(p, issue_next, extra_wait=None, after_bar=None):
        swap = (p == 1)
        frags = []
        for ks in range(18):
            Gs = p * 9 + ks // 2
            base = (Gs % NS) * SB + (ks & 1) * 9216
            for t in range(5):
                A = base + (TOFF[t] if t < 4 else 0)
                k = A // 49152
                vb = V_RD + k + (3 if t == 4 else 0)
                im = A - 49152 * k

                def mk(ac, b, first):
                    if swap:
                        return lambda r: f"v_mfma_f32_16x16x32_bf16 {vr(ac,4)}, {vr(b,4)}, {vr(r,4)}, {'0' if first else vr(ac,4)}"
                    return lambda r: f"v_mfma_f32_16x16x32_bf16 {vr(ac,4)}, {vr(r,4)}, {vr(b,4)}, {'0' if first else vr(ac,4)}"
                frags.append(dict(stage=Gs, first=(ks % 2 == 0 and t == 0), rd=[(vb, im), (vb, im + 4608)],
                                  mf=[mk(acc(t, rho), X(rho, ks), ks == 0) for rho in range(2 if t < 4 else 1)]))
        fill = {}
        for s in range(9):
            tgt = p * 9 + s + NS - 2
            if tgt >= (p + 1) * 9 and not issue_next:
                continue
            n0 = max(s * 10 - PD + 2, 0)
            for n in range(3):
                fill.setdefault(n0 + 2 * n, []).append(lambda tgt=tgt, n=n: dma(tgt, n))

        def on_stage(Gs):
            tk = dtk[Gs]
            if extra_wait and Gs in extra_wait:
                tk = max(tk, extra_wait[Gs])
            a.wait_vm(tk)
            a.e("s_barrier")
            if after_bar and Gs in after_bar:
                after_bar[Gs]()
        G.run_stream(a, frags, fill, on_stage)

    def epi_kq(base0, basex, scale):
        tk = None
        for t in range(5):
            for rho in range(2 if t < 4 else 1):
                A = acc(t, rho)
                if scale:
                    for i in range(4):
                        a.e(f"v_mul_f32 v{A+i}, 0x{qs:x}, v{A+i}")
                a.e(f"v_cvt_pk_bf16_f32 v{A}, v{A}, v{A+1}")
                a.e(f"v_cvt_pk_bf16_f32 v{A+1}, v{A+2}, v{A+3}")
                a.e(f"s_lshl_b32 s{S_T0}, s{S_RT0 if rho == 0 else S_RT1}, 9")
                if t < 4:
                    a.e(f"s_add_u32 s{S_T0}, s{S_T0}, s{S_HB}")
                    a.e(f"s_add_u32 s{S_T0}, s{S_T0}, {base0 + t*65536}")
                else:
                    a.e(f"s_lshl_b32 s{S_T1}, s{S_HG}, 16")
                    a.e(f"s_add_u32 s{S_T0}, s{S_T0}, s{S_T1}")
                    a.e(f"s_add_u32 s{S_T0}, s{S_T0}, {basex}")
                tk = a.e(f"buffer_store_dwordx2 {vr(A,2)}, v{V_L8}, {sr(R_WS,4)}, s{S_T0} offen sc1")
        return tk

    def epi_v():
        tk = None
        for t in range(4):
            for rho in range(2):
                A = acc(t, rho)
                a.e(f"v_cvt_pk_bf16_f32 v{A}, v{A}, v{A+1}")
                a.e(f"v_cvt_pk_bf16_f32 v{A+1}, v{A+2}, v{A+3}")
                a.e(f"s_and_b32 s{S_T0}, s{S_RT0 if rho == 0 else S_RT1}, 1")
                a.e(f"s_lshl_b32 s{S_T0}, s{S_T0}, 3")
                a.e(f"s_add_u32 s{S_T0}, s{S_T0}, s{S_KS}")
                a.e(f"s_add_u32 s{S_T0}, s{S_T0}, s{S_HB}")
                a.e(f"s_add_u32 s{S_T0}, s{S_T0}, {G.V0 + t*65536}")
                tk = a.e(f"buffer_store_dwordx2 {vr(A,2)}, v{V_L16}, {sr(R_WS,4)}, s{S_T0} offen sc1")
        A = acc(4, 0)
        a.e(f"v_cvt_pk_bf16_f32 v{A}, v{A}, v{A+1}")
        a.e(f"v_cvt_pk_bf16_f32 v{A+1}, v{A+2}, v{A+3}")
        a.e(f"v_and_b32 v{t0}, 8, v{V_LANE}")
        a.e(f"v_cmp_eq_u32 vcc, 0, v{t0}")
        a.e(f"v_cndmask_b32 v{A+2}, v{V_ONE}, v{A}, vcc")
        a.e(f"v_cndmask_b32 v{A+3}, v{V_ONE}, v{A+1}, vcc")
        a.e(f"v_cndmask_b32 v{A}, v{A}, v{V_ONE}, vcc")
        a.e(f"v_cndmask_b32 v{A+1}, v{A+1}, v{V_ONE}, vcc")
        a.e(f"s_lshl_b32 s{S_T0}, s{S_C}, 3")
        a.e(f"s_add_u32 s{S_T0}, s{S_T0}, s{S_KS}")
        a.e(f"s_lshl_b32 s{S_T1}, s{S_HG}, 17")
        a.e(f"s_add_u32 s{S_T0}, s{S_T0}, s{S_T1}")
        a.e(f"s_add_u32 s{S_T0}, s{S_T0}, {G.VX}")
        a.e(f"buffer_store_dwordx2 {vr(A+2,2)}, v{V_L16}, {sr(R_WS,4)}, s{S_T0} offen sc1")
        a.e(f"s_add_u32 s{S_T0}, s{S_T0}, 65536")
        tk = a.e(f"buffer_store_dwordx2 {vr(A,2)}, v{V_L16}, {sr(R_WS,4)}, s{S_T0} offen sc1")
        return tk

    def set_flag(val, name):
        a.e(f"s_cmp_eq_u32 s{S_W}, 0")
        a.e(f"s_cbranch_scc0 L_fl_{name}")
        a.e(f"s_lshl_b32 s{S_T0}, s{S_RB}, 2")
        a.e(f"s_add_u32 s{S_T0}, s{S_T0}, s{S_HG}")
        a.e(f"s_lshl_b32 s{S_T0}, s{S_T0}, 2")
        a.e(f"v_mov_b32 v{t0}, {val}")
        a.e(f"v_mov_b32 v{t1}, 0")
        a.e("s_mov_b64 exec, 1")
        a.e_untracked(f"buffer_store_dword v{t0}, v{t1}, {sr(R_DBG,4)}, s{S_T0} offen sc1")
        a.e("s_mov_b64 exec, -1")
        a.raw(f"L_fl_{name}:")

    for Gs in range(NS - 2):
        for n in range(3):
            dma(Gs, n)
    gemm_pass(0, True)
    epi_kq(G.K0, G.KX, False)
    gemm_pass(1, True)
    tkv = epi_v()
    gemm_pass(2, False, extra_wait={18 + 3: tkv}, after_bar={18 + 3: lambda: set_flag(1, "kv")})
    epi_kq(Q0, QX, True)
    stamp(a, 'i')
    dma_voffs(1152, True)
    a.wait_all()
    a.e("s_barrier")
    for Gs in range(27, 27 + NS - 2):
        for n in range(3):
            dma(Gs, n)

    KF, VF, VXF, SS, QA, O0, OX = 16, 96, 136, 176, 248, 252, 12
    vL8, vNEG, vM, vT1, vT2, vOA, vOB = 3, 4, 5, 6, 7, 8, 9
    S_P, S_QB, S_KT0, S_IT, S_NI = 71, 72, 73, 74, 75
    M = [4, 6, 8, 10]
    MQ0, MQ1, MVER, MODD, MP = 12, 14, 16, 18, 61
    MP = 62
    MP = 100
    a.e(f"v_lshlrev_b32 v{vL8}, 3, v{V_LANE}")
    a.e(f"v_mov_b32 v{vNEG}, 0xf149f2ca")
    a.e(f"s_lshr_b32 s{S_P}, s{S_W}, 1")
    a.e(f"s_and_b32 s{S_QB}, s{S_W}, 1")
    a.e(f"s_lshl_b32 s{S_KT0}, s{S_RB}, 3")
    a.e(f"s_lshl_b32 s{S_T0}, s{S_QB}, 2")
    a.e(f"s_add_u32 s{S_KT0}, s{S_KT0}, s{S_T0}")
    a.e(f"s_sub_u32 s{S_KT0}, s{S_KT0}, 16")
    a.e(f"v_and_b32 v{vT1}, 15, v{V_LANE}")
    a.e(f"v_lshrrev_b32 v{vT2}, 4, v{V_LANE}")
    a.e(f"v_cmp_eq_u32 {sr(MP,2)}, s{S_P}, v{vT2}")
    a.e(f"v_lshlrev_b32 v{vT2}, 2, v{vT2}")
    for i in range(4):
        a.e(f"v_add_u32 v{vM}, {i}, v{vT2}")
        a.e(f"v_cmp_gt_u32 {sr(M[i],2)}, v{vM}, v{vT1}")
    a.e(f"s_cmp_lt_u32 s{S_P}, 2")
    a.e(f"s_cselect_b64 {sr(MVER,2)}, -1, 0")
    a.e(f"s_lshl_b32 s{S_T0}, s{S_HG}, 16")
    a.e(f"s_add_u32 s{S_T0}, s{S_T0}, {G.KX}")
    a.e(f"s_add_u32 s{R_X}, s{G.S_WS}, s{S_T0}")
    a.e(f"s_addc_u32 s{R_X+1}, s{G.S_WS+1}, 0")
    a.e(f"s_mov_b32 s{R_X+2}, 65536")
    a.e(f"s_mov_b32 s{R_X+3}, 0x20000")
    a.e(f"s_lshl_b32 s{S_T0}, s{S_HG}, 1")
    a.e(f"s_lshr_b32 s{S_T1}, s{S_P}, 1")
    a.e(f"s_add_u32 s{S_T0}, s{S_T0}, s{S_T1}")
    a.e(f"s_lshl_b32 s{S_T0}, s{S_T0}, 16")
    a.e(f"s_add_u32 s{S_T0}, s{S_T0}, {G.VX}")
    a.e(f"s_add_u32 s{R_W1}, s{G.S_WS}, s{S_T0}")
    a.e(f"s_addc_u32 s{R_W1+1}, s{G.S_WS+1}, 0")
    a.e(f"s_mov_b32 s{R_W1+2}, 65536")
    a.e(f"s_mov_b32 s{R_W1+3}, 0x20000")
    a.e(f"v_and_b32 v{vT1}, 1, v{V_LANE}")
    a.e(f"v_add_u32 v{vT1}, 1, v{vT1}")
    a.e(f"v_sub_u32 v{vT1}, s{S_RB}, v{vT1}")
    a.e(f"v_max_i32 v{vT1}, 0, v{vT1}")
    a.e(f"v_lshlrev_b32 v{vT1}, 4, v{vT1}")
    a.e(f"s_lshl_b32 s{S_T0}, s{S_HG}, 2")
    a.e(f"s_mov_b32 s{S_T2}, 0")
    a.raw("L_poll_kv:")
    a.e_untracked(f"buffer_load_dword v{vT2}, v{vT1}, {sr(R_DBG,4)}, s{S_T0} offen sc1")
    a.e(f"s_add_u32 s{S_T2}, s{S_T2}, 1")
    a.e(f"s_cmp_gt_u32 s{S_T2}, 0x40000")
    a.e("s_cbranch_scc1 L_poll_kv_x")
    a.wait_vm0()
    a.e(f"v_cmp_gt_u32 vcc, 1, v{vT2}")
    a.e("s_cbranch_vccnz L_poll_kv")
    a.raw("L_poll_kv_x:")
    a.wait_vm0()

    def ld_tile(dst, n, vo, rs, idx_sgpr, k, shift):
        a.e(f"s_add_u32 s{S_T0}, s{idx_sgpr}, {k}")
        a.e(f"s_lshl_b32 s{S_T1}, s{S_T0}, {shift}")
        a.e(f"s_cmp_lt_i32 s{S_T0}, 0")
        a.e(f"s_cselect_b32 s{S_T1}, 0x70000000, s{S_T1}")
        return a.e(f"buffer_load_dwordx{n} {vr(dst,n)}, v{vo}, {sr(rs,4)}, s{S_T1} offen sc1")
    S_KS0 = S_T3
    for k in range(20):
        ld_tile(KF + 4 * k + 2, 2, vL8, R_X, S_KT0, k, 9)
    a.e(f"s_ashr_i32 s{S_KS}, s{S_KT0}, 1")
    for k in range(10):
        ld_tile(VXF + 4 * k, 4, V_L16, R_W1, S_KS, k, 10)
    a.e(f"s_mov_b32 s{S_IT}, 0")
    ool = []
    a.raw("L_head:")
    a.barrier_hist()
    a.e(f"s_lshl_b32 s{S_T0}, s{S_HG}, 3")
    a.e(f"s_lshl_b32 s{S_T1}, s{S_P}, 1")
    a.e(f"s_add_u32 s{S_T0}, s{S_T0}, s{S_T1}")
    a.e(f"s_add_u32 s{S_T0}, s{S_T0}, s{S_IT}")
    a.e(f"s_lshl_b32 s{S_HB}, s{S_T0}, 16")
    for rs, base in ((R_A, G.K0), (R_B, G.V0)):
        a.e(f"s_add_u32 s{S_T0}, s{S_HB}, {base}")
        a.e(f"s_add_u32 s{rs}, s{G.S_WS}, s{S_T0}")
        a.e(f"s_addc_u32 s{rs+1}, s{G.S_WS+1}, 0")
        a.e(f"s_mov_b32 s{rs+2}, 65536")
        a.e(f"s_mov_b32 s{rs+3}, 0x20000")
    a.e(f"s_cmp_eq_u32 s{S_IT}, 0")
    a.e(f"s_cselect_b64 {sr(MQ0,2)}, {sr(MP,2)}, 0")
    a.e(f"s_cselect_b64 {sr(MQ1,2)}, 0, {sr(MP,2)}")
    a.e(f"s_cselect_b64 {sr(MODD,2)}, 0, -1")

    def ld_q(j):
        a.e(f"s_add_u32 s{S_T0}, s{S_KT0}, {16+j}")
        a.e(f"s_lshl_b32 s{S_T0}, s{S_T0}, 9")
        a.e(f"s_add_u32 s{S_T1}, s{S_T0}, s{S_HB}")
        a.e(f"s_add_u32 s{S_T1}, s{S_T1}, {Q0}")
        a.e(f"buffer_load_dwordx2 {vr(QA,2)}, v{vL8}, {sr(R_WS,4)}, s{S_T1} offen sc1")
        a.e(f"s_lshl_b32 s{S_T1}, s{S_HG}, 16")
        a.e(f"s_add_u32 s{S_T1}, s{S_T1}, s{S_T0}")
        a.e(f"s_add_u32 s{S_T1}, s{S_T1}, {QX}")
        return a.e(f"buffer_load_dwordx2 {vr(QA+2,2)}, v{vL8}, {sr(R_WS,4)}, s{S_T1} offen sc1")
    tq = ld_q(0)
    tkk = [ld_tile(KF + 4 * k, 2, vL8, R_A, S_KT0, k, 9) for k in range(20)]
    tkv_ = [ld_tile(VF + 4 * k, 4, V_L16, R_B, S_KS, k, 10) for k in range(10)]

    def S_(sl):
        return SS + 4 * sl
    for j in range(4):
        o = j & 1
        a.wait_vm(tq)
        a.e(f"v_cndmask_b32 v{QA+2}, 0, v{QA+2}, {sr(MQ0,2)}")
        a.e(f"v_cndmask_b32 v{QA+3}, 0, v{QA+3}, {sr(MQ1,2)}")
        for t in range(17):
            a.wait_vm(tkk[j + t])
            a.e(f"v_mfma_f32_16x16x32_bf16 {vr(S_(t+o),4)}, {vr(KF+4*(j+t),4)}, {vr(QA,4)}, 0")
        if j < 3:
            tq = ld_q(j + 1)
        for i in range(4):
            a.e(f"v_cndmask_b32 v{S_(o)+i}, v{vNEG}, v{S_(o)+i}, {sr(M[i],2)}")
        a.e(f"s_add_u32 s{S_NI}, s{S_KT0}, {j}")
        a.e(f"s_cmp_lt_i32 s{S_NI}, 0")
        a.e(f"s_cbranch_scc1 L_neg{j}")
        a.raw(f"L_negb{j}:")
        t_ = [f"L_neg{j}:", "    s_nop 7"]
        for t in range(16):
            for i in range(4):
                t_.append(f"    v_mov_b32 v{S_(t+o)+i}, v{vNEG}")
            t_.append(f"    s_add_u32 s{S_NI}, s{S_NI}, 1")
            t_.append(f"    s_cmp_lt_i32 s{S_NI}, 0")
            t_.append(f"    s_cbranch_scc0 L_negb{j}")
        t_.append(f"    s_branch L_negb{j}")
        ool.append("\n".join(t_))
        for i in range(4):
            a.e(f"v_cndmask_b32 v{S_(16+o)+i}, v{S_(16+o)+i}, v{vNEG}, {sr(M[i],2)}")
        vals = [S_(t + o) + i for t in range(17) for i in range(4)]
        a.e(f"v_max3_f32 v{vM}, v{vals[0]}, v{vals[1]}, v{vals[2]}")
        a.e(f"v_max3_f32 v{vT1}, v{vals[3]}, v{vals[4]}, v{vals[5]}")
        k = 6
        ch = 0
        while k + 1 < len(vals):
            d = vM if ch == 0 else vT1
            a.e(f"v_max3_f32 v{d}, v{d}, v{vals[k]}, v{vals[k+1]}")
            k += 2
            ch ^= 1
        a.e(f"v_max_f32 v{vM}, v{vM}, v{vT1}")
        a.e(f"v_mov_b32 v{vT1}, v{vM}")
        a.e(f"v_permlane32_swap_b32 v{vM}, v{vT1}")
        a.e(f"v_max_f32 v{vM}, v{vM}, v{vT1}")
        a.e(f"v_mov_b32 v{vT1}, v{vM}")
        a.e(f"v_permlane16_swap_b32 v{vM}, v{vT1}")
        a.e(f"v_max_f32 v{vM}, v{vM}, v{vT1}")
        for u in range(9):
            for h in range(2):
                sl = 2 * u + h
                valid = o <= sl <= 16 + o
                if valid:
                    for i in range(4):
                        a.e(f"v_sub_f32 v{S_(sl)+i}, v{S_(sl)+i}, v{vM}")
                    for i in range(4):
                        a.e(f"v_exp_f32 v{S_(sl)+i}, v{S_(sl)+i}")
            for h in range(2):
                sl = 2 * u + h
                valid = o <= sl <= 16 + o
                for k2 in range(2):
                    d = S_(2 * u) + 2 * h + k2
                    if valid:
                        a.e(f"v_cvt_pk_bf16_f32 v{d}, v{S_(sl)+2*k2}, v{S_(sl)+2*k2+1}")
                    else:
                        a.e(f"v_mov_b32 v{d}, 0")
            vs = (j >> 1) + u
            a.wait_vm(tkv_[vs])
            a.e(f"v_mfma_f32_16x16x32_bf16 {vr(O0,4)}, {vr(VF+4*vs,4)}, {vr(S_(2*u),4)}, {vr(O0,4) if u else '0'}")
            a.e(f"v_mfma_f32_16x16x32_bf16 {vr(OX,4)}, {vr(VXF+4*vs,4)}, {vr(S_(2*u),4)}, {vr(OX,4) if u else '0'}")
        a.e(f"v_mov_b32 v{vT1}, v{OX}")
        a.e(f"v_mov_b32 v{vT2}, v{OX}")
        a.e(f"v_permlane32_swap_b32 v{vT1}, v{vT2}")
        a.e(f"v_cndmask_b32 v{vT1}, v{vT1}, v{vT2}, {sr(MVER,2)}")
        a.e(f"v_rcp_f32 v{vT1}, v{vT1}")
        a.e(f"v_cndmask_b32 v{OX}, v{OX}, v{OX+2}, {sr(MODD,2)}")
        a.e(f"v_cndmask_b32 v{OX+1}, v{OX+1}, v{OX+3}, {sr(MODD,2)}")
        for i in range(4):
            a.e(f"v_mul_f32 v{O0+i}, v{O0+i}, v{vT1}")
        a.e(f"v_mul_f32 v{OX}, v{OX}, v{vT1}")
        a.e(f"v_mul_f32 v{OX+1}, v{OX+1}, v{vT1}")
        a.e(f"v_cvt_pk_bf16_f32 v{vOA}, v{O0}, v{O0+1}")
        a.e(f"v_cvt_pk_bf16_f32 v{vOB}, v{O0+2}, v{O0+3}")
        a.e(f"v_cvt_pk_bf16_f32 v{vT2}, v{OX}, v{OX+1}")
        a.e(f"s_add_u32 s{S_T0}, s{S_KT0}, {16+j}")
        a.e(f"s_mul_i32 s{S_T0}, s{S_T0}, 18432")
        a.e(f"s_add_u32 s{S_T0}, s{S_T0}, {G.OF}")
        a.e(f"s_lshl_b32 s{S_T1}, s{S_HG}, 2")
        a.e(f"s_add_u32 s{S_T1}, s{S_T1}, s{S_P}")
        a.e(f"s_lshl_b32 s{S_T1}, s{S_T1}, 10")
        a.e(f"s_lshl_b32 s{S_T2}, s{S_IT}, 3")
        a.e(f"s_add_u32 s{S_T1}, s{S_T1}, s{S_T2}")
        a.e(f"s_add_u32 s{S_T1}, s{S_T1}, s{S_T0}")
        a.e(f"buffer_store_dwordx2 {vr(vOA,2)}, v{V_L16}, {sr(R_WS,4)}, s{S_T1} offen sc1")
        a.e(f"s_lshr_b32 s{S_T1}, s{S_HG}, 1")
        a.e(f"s_add_u32 s{S_T1}, s{S_T1}, 16")
        a.e(f"s_lshl_b32 s{S_T1}, s{S_T1}, 10")
        a.e(f"s_and_b32 s{S_T2}, s{S_HG}, 1")
        a.e(f"s_lshl_b32 s{S_T2}, s{S_T2}, 3")
        a.e(f"s_add_u32 s{S_T1}, s{S_T1}, s{S_T2}")
        a.e(f"s_lshl_b32 s{S_T2}, s{S_IT}, 2")
        a.e(f"s_add_u32 s{S_T1}, s{S_T1}, s{S_T2}")
        a.e(f"s_add_u32 s{S_T1}, s{S_T1}, s{S_T0}")
        a.e(f"s_mov_b64 exec, {sr(MP,2)}")
        a.e(f"buffer_store_dword v{vT2}, v{V_L16}, {sr(R_WS,4)}, s{S_T1} offen sc1")
        a.e("s_mov_b64 exec, -1")
    a.e(f"s_add_u32 s{S_IT}, s{S_IT}, 1")
    a.e(f"s_cmp_lt_u32 s{S_IT}, 2")
    a.e("s_nop 7")
    a.e("s_cbranch_scc1 L_head")
    stamp(a, 'j')
    a.wait_all()
    a.e("s_barrier")
    set_flag(2, "o")
    a.e(f"v_and_b32 v{t1}, 3, v{V_LANE}")
    a.e(f"v_lshlrev_b32 v{t1}, 2, v{t1}")
    a.e(f"s_lshl_b32 s{S_T0}, s{S_RB}, 4")
    a.e(f"s_mov_b32 s{S_T2}, 0")
    a.raw("L_poll_o:")
    a.e_untracked(f"buffer_load_dword v{t2}, v{t1}, {sr(R_DBG,4)}, s{S_T0} offen sc1")
    a.e(f"s_add_u32 s{S_T2}, s{S_T2}, 1")
    a.e(f"s_cmp_gt_u32 s{S_T2}, 0x40000")
    a.e("s_cbranch_scc1 L_poll_o_x")
    a.wait_vm0()
    a.e(f"v_cmp_gt_u32 vcc, 2, v{t2}")
    a.e("s_cbranch_vccnz L_poll_o")
    a.raw("L_poll_o_x:")
    a.wait_vm0()
    for rho in range(2):
        a.e(f"s_mul_i32 s{S_T0}, s{S_RT0 if rho == 0 else S_RT1}, 18432")
        a.e(f"s_add_u32 s{S_T0}, s{S_T0}, {G.OF}")
        for s in range(18):
            if s % 4 == 0 and s:
                a.e(f"s_add_u32 s{S_T0}, s{S_T0}, 4096")
            tko = a.e(f"buffer_load_dwordx4 {vr(X(rho,s),4)}, v{V_L16}, {sr(R_WS,4)}, s{S_T0} offen offset:{(s%4)*1024} sc1")
    dma_voffs(1152, True)
    rd_bases()
    a.wait_vm(tko)
    stamp(a, 'g')
    gemm_pass(3, False)
    a.e(f"v_and_b32 v{t0}, 15, v{V_LANE}")
    a.e(f"v_mul_u32_u24 v{t0}, 1152, v{t0}")
    a.e(f"v_lshrrev_b32 v{t1}, 4, v{V_LANE}")
    a.e(f"v_lshl_add_u32 v{t2}, v{t1}, 3, v{t0}")
    a.e(f"v_mul_u32_u24 v{t1}, 72, v{t1}")
    a.e(f"v_add3_u32 v{t3}, v{t0}, v{t1}, 32")
    a.e(f"s_mul_i32 s{S_T1}, s{S_HG}, 288")
    a.e(f"s_add_u32 s{S_T1}, s{S_T1}, {G.PART + 12*G.PSZ}")
    a.e(f"s_mul_i32 s{S_T2}, s{S_C}, 144")
    for t in range(5):
        for rho in range(2 if t < 4 else 1):
            A = acc(t, rho)
            a.e(f"v_cvt_pk_bf16_f32 v{A}, v{A}, v{A+1}")
            a.e(f"v_cvt_pk_bf16_f32 v{A+1}, v{A+2}, v{A+3}")
            a.e(f"s_mul_i32 s{S_T0}, s{S_RT0 if rho == 0 else S_RT1}, {16*1152}")
            a.e(f"s_add_u32 s{S_T0}, s{S_T0}, s{S_T1}")
            if t < 4:
                a.e(f"s_add_u32 s{S_T0}, s{S_T0}, s{S_T2}")
                a.e(f"buffer_store_dwordx2 {vr(A,2)}, v{t2}, {sr(R_WS,4)}, s{S_T0} offen offset:{TOFF[t]}")
            else:
                a.e(f"buffer_store_dwordx2 {vr(A,2)}, v{t3}, {sr(R_WS,4)}, s{S_T0} offen")
    if G.STAMP:
        a.e("s_barrier")
    stamp(a, 'h')
    G.stamp_out(a)
    a.e("s_endpgm")
    for t_ in ool:
        a.raw(t_)
```

```python
from asmlib import vr, sr
import __main__ as G

LAUNCH = "; @launch kernel=k2_kernel grid=(576,1,1) block=(256,1,1) lds=0"
VGPRS = 88


def k2(a):
    a.raw(".globl k2_kernel\n.p2align 8\n.type k2_kernel,@function\nk2_kernel:")
    a.e("s_cmp_ge_u32 s2, 576")
    a.e("s_cbranch_scc1 L_k2_end")
    a.e("s_load_dwordx2 s[4:5], s[0:1], 0")
    a.e("s_load_dwordx2 s[6:7], s[0:1], 56")
    a.e("s_load_dwordx2 s[8:9], s[0:1], 72")
    a.e("v_and_b32 v1, 63, v0")
    a.e("v_lshrrev_b32 v2, 6, v0")
    a.e("v_readfirstlane_b32 s10, v2")
    a.e("s_lshl_b32 s11, s2, 2")
    a.e("s_add_u32 s11, s11, s10")
    a.e("v_lshlrev_b32 v2, 4, v1")
    a.e("s_lshl_b32 s12, s11, 10")
    a.e(f"s_add_u32 s12, s12, {G.PART}")
    a.e("s_and_b32 s13, s11, 1")
    a.e("s_bfe_u32 s14, s11, 0x20001")
    a.e("s_bfe_u32 s15, s11, 0x10003")
    a.e("s_lshr_b32 s16, s11, 4")
    a.e("s_mul_i32 s17, s16, 57")
    a.e("s_lshr_b32 s17, s17, 9")
    a.e("s_mul_i32 s18, s17, 9")
    a.e("s_sub_u32 s18, s16, s18")
    a.e("s_lshl_b32 s19, s17, 7")
    a.e("s_lshl_b32 s14, s14, 5")
    a.e("s_add_u32 s19, s19, s14")
    a.e("s_mul_i32 s19, s19, 1152")
    a.e("s_lshl_b32 s18, s18, 7")
    a.e("s_lshl_b32 s15, s15, 6")
    a.e("s_lshl_b32 s13, s13, 5")
    a.e("s_add_u32 s19, s19, s18")
    a.e("s_add_u32 s19, s19, s15")
    a.e("s_add_u32 s19, s19, s13")
    a.e("v_and_b32 v3, 31, v1")
    a.e("v_mul_u32_u24 v3, 1152, v3")
    a.e("v_lshrrev_b32 v4, 5, v1")
    a.e("v_lshl_add_u32 v3, v4, 3, v3")
    a.e("s_waitcnt lgkmcnt(0)")
    G.srd(a, 20, 4, 2359296)
    G.srd(a, 24, 6, 2359296)
    G.srd(a, 28, 8, G.WS_SZ)
    P = 8
    tks = []
    for p in range(12):
        tks.append(a.e(f"buffer_load_dwordx4 {vr(P+4*p,4)}, v2, s[28:31], s12 offen"))
        if p < 11:
            a.e(f"s_add_u32 s12, s12, {G.PSZ}")
    XR, SR = 56, 60
    a.e(f"s_add_u32 s13, s19, {G.PART + 12*G.PSZ}")
    a.e(f"buffer_load_dwordx2 {vr(SR,2)}, v3, s[28:31], s13 offen")
    a.e(f"buffer_load_dwordx2 {vr(SR+2,2)}, v3, s[28:31], s13 offen offset:16")
    a.e(f"buffer_load_dwordx2 {vr(XR,2)}, v3, s[20:23], s19 offen")
    tx = a.e(f"buffer_load_dwordx2 {vr(XR+2,2)}, v3, s[20:23], s19 offen offset:16")
    F, T = 64, 72
    for p in range(12):
        a.wait_vm(tks[p])
        for k in range(4):
            r = P + 4 * p + k
            if p == 0:
                a.e(f"v_lshlrev_b32 v{F+2*k}, 16, v{r}")
                a.e(f"v_and_b32 v{F+2*k+1}, 0xffff0000, v{r}")
            else:
                a.e(f"v_lshlrev_b32 v{T+2*k}, 16, v{r}")
                a.e(f"v_and_b32 v{T+2*k+1}, 0xffff0000, v{r}")
        if p:
            for k in range(8):
                a.e(f"v_add_f32 v{F+k}, v{F+k}, v{T+k}")

    def rnd(base):
        for k in range(4):
            a.e(f"v_cvt_pk_bf16_f32 v{80+k}, v{base+2*k}, v{base+2*k+1}")
        for k in range(4):
            a.e(f"v_lshlrev_b32 v{base+2*k}, 16, v{80+k}")
            a.e(f"v_and_b32 v{base+2*k+1}, 0xffff0000, v{80+k}")
    rnd(F)
    for k in range(8):
        a.e(f"v_mul_f32 v{T+k}, 0x{G.NLOG2E:x}, v{F+k}")
    for k in range(8):
        a.e(f"v_exp_f32 v{T+k}, v{T+k}")
    for k in range(8):
        a.e(f"v_add_f32 v{T+k}, 1.0, v{T+k}")
    for k in range(8):
        a.e(f"v_rcp_f32 v{T+k}, v{T+k}")
    for k in range(8):
        a.e(f"v_mul_f32 v{F+k}, v{F+k}, v{T+k}")
    rnd(F)
    a.wait_vm(tx)
    for k in range(4):
        a.e(f"v_lshlrev_b32 v{T+2*k}, 16, v{SR+k}")
        a.e(f"v_and_b32 v{T+2*k+1}, 0xffff0000, v{SR+k}")
    for k in range(8):
        a.e(f"v_mul_f32 v{F+k}, v{F+k}, v{T+k}")
    rnd(F)
    for k in range(4):
        a.e(f"v_lshlrev_b32 v{T+2*k}, 16, v{XR+k}")
        a.e(f"v_and_b32 v{T+2*k+1}, 0xffff0000, v{XR+k}")
    for k in range(8):
        a.e(f"v_add_f32 v{F+k}, v{F+k}, v{T+k}")
    for k in range(4):
        a.e(f"v_cvt_pk_bf16_f32 v{80+k}, v{F+2*k}, v{F+2*k+1}")
    a.e("buffer_store_dwordx2 v[80:81], v3, s[24:27], s19 offen")
    a.e("buffer_store_dwordx2 v[82:83], v3, s[24:27], s19 offen offset:16")
    a.label("L_k2_end")
    a.e("s_endpgm")
```

```python
import sys
from asmlib import Asm, vr, sr

HS = 0x0000000
PART = 0x1200000
PSZ = 2359296
QF = 0x3000000
K0 = 0x3400000
V0 = 0x3600000
KX = 0x3800000
VX = 0x3840000
OF = 0x3900000
WS_SZ = 0x4000000
XBASE = 16384
LDS_SZ = 163840
LOG2E = 0x3FB8AA3B
NLOG2E = 0xBFB8AA3B

S_X, S_WQKV, S_WO, S_BX, S_WG, S_WU, S_WD, S_OUT, S_DBG, S_WS = 4, 6, 8, 10, 12, 14, 16, 18, 20, 22
R_X, R_W1, R_W2, R_WS, R_DBG, R_A, R_B = 24, 28, 32, 36, 40, 44, 48
S_W, S_R, S_C, S_RB, S_SPLIT, S_T0, S_T1, S_T2, S_T3 = 52, 53, 54, 55, 56, 57, 58, 59, 60
S_WLDS, S_W1B, S_W2B, S_H0, S_H1, S_P0, S_P1, S_NL2E, S_XREG, S_XPAR = 61, 62, 63, 64, 65, 66, 67, 68, 69, 70
S_HG = S_SPLIT

V_LANE, V_L16, V_D1, V_D2 = 1, 2, 3, 4
V_RD = 5
V_T = 11
FR = 16
NFR = int(__import__("os").environ.get("NFR", "6"))
PD = NFR - 2
ACC = 40
XN = 104


def X(rho, s):
    return XN + (rho * 18 + s) * 4


def X32(s):
    return XN + s * 4


import os
STAMP = int(os.environ.get("STAMP", "0"))
def FLAG(n):
    return int(os.environ.get(n, "0"))
_nst = [0]
STSEL = os.environ.get("STSEL", "a,b,f,g,h").split(",")
def stamp(a, name="a"):
    if not STAMP or name not in STSEL:
        return
    k = _nst[0]; _nst[0] += 1
    a.e(f"s_memtime s[{76+4*k}:{77+4*k}]")
    a.e(f"s_memrealtime s[{78+4*k}:{79+4*k}]")
    a.wait_lg0()

def stamp_out(a):
    if not STAMP:
        return
    n = _nst[0]; _nst[0] = 0
    a.e(f"s_lshl_b32 s{S_T0}, s2, 6")
    a.e(f"s_add_u32 s{S_T0}, s{S_T0}, 0x3F00000")
    a.e(f"v_mov_b32 v20, 0")
    a.e(f"s_cmp_eq_u32 s{S_W}, 0")
    a.e(f"s_cbranch_scc0 L_nostamp{id(a)}_{a.nins}")
    lab = a.out[-1].split()[-1]
    for k in range(n):
        a.e(f"v_mov_b32 v16, s{76+4*k}")
        a.e(f"v_mov_b32 v17, s{78+4*k}")
        a.e(f"buffer_store_dwordx2 v[16:17], v20, {sr(R_WS,4)}, s{S_T0} offen offset:{8*k}")
        a.e("s_nop 2")
    a.label(lab)


def srd(a, d, base, nbytes):
    a.e(f"s_mov_b32 s{d}, s{base}")
    a.e(f"s_mov_b32 s{d+1}, s{base+1}")
    a.e(f"s_mov_b32 s{d+2}, {nbytes}")
    a.e(f"s_mov_b32 s{d+3}, 0x20000")


def bf16_round(a, v, tmp=None):
    a.e(f"v_cvt_pk_bf16_f32 v{v}, v{v}, v{v}")
    a.e(f"v_lshlrev_b32 v{v}, 16, v{v}")


def x_stage_issue(a):
    t0, t1, t2 = V_T, V_T + 1, V_T + 2
    a.e(f"v_lshrrev_b32 v{t0}, 3, v{V_LANE}")
    a.e(f"v_and_b32 v{t1}, 7, v{V_LANE}")
    a.e(f"v_lshrrev_b32 v{t2}, 1, v{t0}")
    a.e(f"v_xor_b32 v{t1}, v{t1}, v{t2}")
    a.e(f"v_mul_u32_u24 v{t0}, 1152, v{t0}")
    a.e(f"v_lshl_add_u32 v{t2}, v{t1}, 4, v{t0}")
    a.e(f"v_xor_b32 v{t1}, 4, v{t1}")
    a.e(f"v_lshl_add_u32 v{t1}, v{t1}, 4, v{t0}")
    a.e(f"v_add_u32 v{t1}, {8*1152-1024}, v{t1}")
    a.e(f"s_lshl_b32 s{S_T0}, s{S_RB}, 7")
    a.e(f"s_lshl_b32 s{S_T1}, s{S_R}, 5")
    a.e(f"s_add_u32 s{S_T0}, s{S_T0}, s{S_T1}")
    a.e(f"s_lshl_b32 s{S_T1}, s{S_C}, 4")
    a.e(f"s_add_u32 s{S_T0}, s{S_T0}, s{S_T1}")
    a.e(f"s_mul_i32 s{S_T0}, s{S_T0}, 1152")
    a.e(f"s_lshl_b32 s{S_T1}, s{S_R}, 1")
    a.e(f"s_add_u32 s{S_T2}, s{S_T1}, s{S_C}")
    a.e(f"s_mul_i32 s{S_XREG}, s{S_T2}, 18432")
    a.e(f"s_add_u32 s{S_XREG}, s{S_XREG}, {XBASE}")
    a.e(f"s_xor_b32 s{S_T2}, s{S_T2}, 1")
    a.e(f"s_mul_i32 s{S_XPAR}, s{S_T2}, 18432")
    a.e(f"s_add_u32 s{S_XPAR}, s{S_XPAR}, {XBASE}")
    tk = None
    for cb in range(9):
        a.e(f"s_add_u32 m0, s{S_XREG}, {cb*2048}")
        a.e(f"s_add_u32 s{S_T1}, s{S_T0}, {cb*128}")
        a.e(f"buffer_load_dwordx4 v{t2}, {sr(R_X,4)}, s{S_T1} offen lds")
        tk = a.e(f"buffer_load_dwordx4 v{t1}, {sr(R_X,4)}, s{S_T1} offen offset:1024 lds")
    return tk


def layernorm(a, xtk, after_x=None, m32=False):
    T = ACC
    m, q = T, T + 1
    a.e(f"v_and_b32 v{m}, 15, v{V_LANE}")
    a.e(f"v_lshrrev_b32 v{q}, 4, v{V_LANE}")
    b = T + 2
    a.e(f"v_and_b32 v{b}, 1, v{q}")
    a.e(f"v_lshlrev_b32 v{b}, 3, v{b}")
    a.e(f"v_lshl_add_u32 v{b}, v{m}, 7, v{b}")
    a.e(f"v_add_u32 v{b}, s{S_XREG}, v{b}")
    sw = T + 3
    a.e(f"v_lshrrev_b32 v{sw}, 1, v{m}")
    if m32:
        a.e(f"v_and_b32 v{T+4}, 2, v{q}")
    else:
        a.e(f"v_lshrrev_b32 v{T+4}, 1, v{q}")
    a.e(f"v_xor_b32 v{sw}, v{sw}, v{T+4}")
    ad = T + 8
    for k in range(4):
        a.e(f"v_xor_b32 v{T+4}, {(4*(k>>1) + (k&1)) if m32 else 2*k}, v{sw}")
        a.e(f"v_lshl_add_u32 v{ad+k}, v{T+4}, 4, v{b}")
    ones = T + 12
    for k in range(4):
        a.e(f"v_mov_b32 v{ones+k}, 0x3f803f80")
    a.wait_vm(xtk)
    stamp(a, 'b')
    if after_x:
        after_x()
    s1, s2 = T + 16, T + 20
    tks = []
    for s in range(18):
        for j in range(2):
            tk = a.e(f"ds_read_b64 {vr(X(0,s)+2*j,2)}, v{ad+2*(s&1)+j} offset:{(s>>1)*2048}")
        tks.append(tk)
        if s >= 4:
            ss = s - 4
            a.wait_lg(tks[ss])
            a.e(f"v_mfma_f32_16x16x32_bf16 {vr(s1,4)}, {vr(ones,4)}, {vr(X(0,ss),4)}, {vr(s1,4) if ss else '0'}")
            a.e(f"v_mfma_f32_16x16x32_bf16 {vr(s2,4)}, {vr(X(0,ss),4)}, {vr(X(0,ss),4)}, {vr(s2,4) if ss else '0'}")
    for ss in range(14, 18):
        a.wait_lg(tks[ss])
        a.e(f"v_mfma_f32_16x16x32_bf16 {vr(s1,4)}, {vr(ones,4)}, {vr(X(0,ss),4)}, {vr(s1,4)}")
        a.e(f"v_mfma_f32_16x16x32_bf16 {vr(s2,4)}, {vr(X(0,ss),4)}, {vr(X(0,ss),4)}, {vr(s2,4)}")
    t = T + 4
    a.e(f"v_and_b32 v{t}, 3, v{m}")
    a.e(f"v_cmp_eq_u32 vcc, 1, v{t}")
    a.e(f"v_cndmask_b32 v{s2}, v{s2}, v{s2+1}, vcc")
    a.e(f"v_cmp_eq_u32 vcc, 2, v{t}")
    a.e(f"v_cndmask_b32 v{s2}, v{s2}, v{s2+2}, vcc")
    a.e(f"v_cmp_eq_u32 vcc, 3, v{t}")
    a.e(f"v_cndmask_b32 v{s2}, v{s2}, v{s2+3}, vcc")
    a.e(f"v_lshrrev_b32 v{t}, 2, v{m}")
    a.e(f"v_lshl_add_u32 v{t}, v{t}, 4, v{m}")
    a.e(f"v_lshlrev_b32 v{t}, 2, v{t}")
    tk = a.e(f"ds_bpermute_b32 v{s2}, v{t}, v{s2}")
    inv = 0x3AE38E39
    a.e(f"v_mul_f32 v{s1}, 0x{inv:x}, v{s1}")
    a.wait_lg(tk)
    a.e(f"v_mul_f32 v{s2}, 0x{inv:x}, v{s2}")
    a.e(f"v_fma_f32 v{s2}, -v{s1}, v{s1}, v{s2}")
    a.e(f"v_max_f32 v{s2}, 0, v{s2}")
    bf16_round(a, s2)
    a.e(f"v_add_f32 v{s2}, 0x3727c5ac, v{s2}")
    bf16_round(a, s2)
    a.e(f"v_sqrt_f32 v{s2}, v{s2}")
    bf16_round(a, s2)
    a.e(f"v_rcp_f32 v{s2}, v{s2}")
    bf16_round(a, s1)
    a.e(f"v_mul_f32 v{s1}, v{s1}, v{s2}")
    a.e(f"v_sub_f32 v{s1}, 0, v{s1}")
    stamp(a, 'c')
    wa = T + 5
    a.e(f"v_add_u32 v{wa}, s{S_XREG}, v{V_L16}")
    tmp = T + 24
    for s in range(18):
        for k in range(4):
            xr = X(0, s) + k
            lo = tmp + 2 * k
            a.e(f"v_lshlrev_b32 v{lo}, 16, v{xr}")
            a.e(f"v_and_b32 v{lo+1}, 0xffff0000, v{xr}")
        for k in range(4):
            lo = tmp + 2 * k
            a.e(f"v_fma_f32 v{lo}, v{lo}, v{s2}, v{s1}")
            a.e(f"v_fma_f32 v{lo+1}, v{lo+1}, v{s2}, v{s1}")
        for k in range(4):
            lo = tmp + 2 * k
            a.e(f"v_cvt_pk_bf16_f32 v{X(0,s)+k}, v{lo}, v{lo+1}")
        a.e(f"ds_write_b128 v{wa}, {vr(X(0,s),4)} offset:{s*1024}")
    if m32:
        a.e(f"s_min_u32 s{S_T0}, s{S_XREG}, s{S_XPAR}")
        a.e(f"v_bfe_u32 v{T+4}, v{V_LANE}, 4, 1")
        a.e(f"v_mul_u32_u24 v{wa}, 18432, v{T+4}")
        a.e(f"v_lshrrev_b32 v{T+4}, 5, v{V_LANE}")
        a.e(f"v_lshl_add_u32 v{wa}, v{T+4}, 8, v{wa}")
        a.e(f"v_lshl_add_u32 v{wa}, v{m}, 4, v{wa}")
        a.e(f"v_add_u32 v{wa}, s{S_T0}, v{wa}")
    else:
        a.e(f"v_add_u32 v{wa}, s{S_XPAR}, v{V_L16}")
    a.wait_lg0()
    stamp(a, 'd')
    a.e("s_barrier")
    stamp(a, 'e')
    if m32:
        for s in range(36):
            a.e(f"ds_read_b128 {vr(X32(s),4)}, v{wa} offset:{s*512}")
    else:
        for s in range(18):
            a.e(f"ds_read_b128 {vr(X(1,s),4)}, v{wa} offset:{s*1024}")
    a.wait_lg0()
    a.e("s_barrier")


def run_stream(a, frags, fill, on_stage, wrap=False, prime=True, tick=None, base=0):
    N = len(frags)
    assert (not wrap) or N % NFR == 0
    if tick is None:
        tick = {}

    def rd(m, j):
        f = frags[m % N]
        if j == 0 and f.get("first"):
            on_stage(f["stage"] + (1000 if m >= N else 0))
        r = FR + 4 * (m % NFR)
        vb, imm = f["rd"][j]
        if FLAG("NORD") and not prime:
            tick[m] = a.lg
            return
        tick[m] = a.e(f"ds_read_b64_tr_b16 {vr(r+2*j,2)}, v{vb} offset:{imm}")

    if prime:
        for m in range(min(PD, N)):
            rd(m, 0)
            rd(m, 1)
        if wrap:
            return tick
    for n in range(N):
        f = frags[n]
        r = FR + 4 * (n % NFR)
        fl = list(fill.get(n, []))
        nm = len(f["mf"])
        for c in f.get("pre", []):
            c()
        a.wait_lg(tick[n])
        for k, mf in enumerate(f["mf"]):
            a.e(mf(r))
            if n + PD < N or wrap:
                if nm == 1:
                    rd(n + PD, 0)
                    rd(n + PD, 1)
                elif k < 2:
                    rd(n + PD, k)
            cnt = (len(fl) + (nm - k) - 1) // (nm - k)
            for c in fl[:cnt]:
                c()
            fl = fl[cnt:]
    if wrap:
        return {m: tick[N + m] for m in range(PD)}
    return tick


def loop(a, label, body, niter_sgpr_dec):
    a.raw(label + ":")
    n0 = len(a.out)
    body()
    niter_sgpr_dec(label)
    t1 = a.out[n0:]
    n1 = len(a.out)
    body()
    niter_sgpr_dec(label)
    t2 = a.out[n1:]
    if t1 != t2:
        for x, y in zip(t1, t2):
            if x != y:
                sys.stderr.write(f"LOOP MISMATCH {label}: {x!r} vs {y!r}\n")
        assert len(t1) == len(t2), "loop body length mismatch"
        import re
        for k, (x, y) in enumerate(zip(t1, t2)):
            if x != y:
                mx, my = re.match(r"\s*s_waitcnt (vm|lgkm)cnt\((\d+)\)", x), re.match(r"\s*s_waitcnt (vm|lgkm)cnt\((\d+)\)", y)
                assert mx and my and mx.group(1) == my.group(1), (x, y)
                t1[k] = x if int(mx.group(2)) <= int(my.group(2)) else y
        a.out[n0:n1] = t1
    del a.out[n1:]


V_FW, V_FR, V_FV, V_FT = 248, 249, 252, 253
FLAGS = 147456


class Sync:
    def __init__(self, a, tag):
        self.a, self.tag, self.slow, self.tk, self.n = a, tag, {}, None, 0

    def setup(self):
        a = self.a
        a.e(f"s_lshl_b32 s{S_T0}, s{S_W}, 8")
        a.e(f"s_add_u32 s{S_T0}, s{S_T0}, {FLAGS+64}")
        a.e(f"v_lshlrev_b32 v{V_FW}, 2, v{V_LANE}")
        a.e(f"v_add_u32 v{V_FW}, s{S_T0}, v{V_FW}")
        a.e(f"s_lshl_b32 s{S_T0}, s{S_W}, 2")
        a.e(f"s_add_u32 s{S_T0}, s{S_T0}, {FLAGS}")
        a.e(f"v_mov_b32 v{V_FT}, s{S_T0}")
        a.e(f"v_cmp_eq_u32 vcc, 0, v{V_LANE}")
        a.e(f"v_cndmask_b32 v{V_FW}, v{V_FW}, v{V_FT}, vcc")
        a.e(f"v_and_b32 v{V_FR}, 7, v{V_LANE}")
        a.e(f"v_lshlrev_b32 v{V_FR}, 2, v{V_FR}")
        a.e(f"v_add_u32 v{V_FR}, {FLAGS}, v{V_FR}")
        a.e(f"v_mov_b32 v{V_FV}, 0")
        a.e(f"ds_write_b32 v{V_FW}, v{V_FV}")

    def arrive(self, tk):
        a = self.a
        a.e(f"v_add_u32 v{V_FV}, 1, v{V_FV}")
        a.wait_vm(tk)
        a.e(f"ds_write_b32 v{V_FW}, v{V_FV}")

    def read(self):
        self.tk = self.a.e(f"ds_read_b32 v{V_FT}, v{V_FR}")

    def check(self, name):
        a = self.a
        if FLAG("NOBAR"):
            return
        a.wait_lg(self.tk)
        a.e(f"v_cmp_lt_u32 vcc, v{V_FT}, v{V_FV}")
        a.e(f"s_cbranch_vccnz L_slow_{self.tag}_{name}")
        a.raw(f"L_back_{self.tag}_{name}:")
        self.slow[name] = 1

    def emit_slow(self):
        a = self.a
        for name in self.slow:
            a.raw(f"L_slow_{self.tag}_{name}:")
            a.raw(f"    ds_read_b32 v{V_FT}, v{V_FR}")
            a.raw(f"    s_waitcnt lgkmcnt(0)")
            a.raw(f"    v_cmp_lt_u32 vcc, v{V_FT}, v{V_FV}")
            a.raw(f"    s_cbranch_vccnz L_slow_{self.tag}_{name}")
            a.raw(f"    s_branch L_back_{self.tag}_{name}")


def spread(fill, items, n0, n1):
    L = len(items)
    span = n1 - n0
    for i, it in enumerate(items):
        n = n0 + (i * span) // L
        fill.setdefault(n, []).append(it)


def rd_bases(a):
    t0, t1, t2 = V_T, V_T + 1, V_T + 2
    a.e(f"v_lshrrev_b32 v{t0}, 4, v{V_LANE}")
    a.e(f"v_lshrrev_b32 v{t1}, 1, v{t0}")
    a.e(f"v_lshlrev_b32 v{t1}, 10, v{t1}")
    a.e(f"v_and_b32 v{t0}, 1, v{t0}")
    a.e(f"v_lshl_add_u32 v{t1}, v{t0}, 8, v{t1}")
    a.e(f"v_lshl_add_u32 v{t1}, v{t0}, 5, v{t1}")
    a.e(f"v_bfe_u32 v{t2}, v{V_LANE}, 2, 2")
    a.e(f"v_lshl_add_u32 v{t1}, v{t2}, 6, v{t1}")
    a.e(f"v_and_b32 v{t2}, 3, v{V_LANE}")
    a.e(f"v_lshl_add_u32 v{t1}, v{t2}, 3, v{t1}")
    a.e(f"s_lshl_b32 s{S_T0}, s{S_C}, 9")
    a.e(f"v_add_u32 v{V_RD}, s{S_T0}, v{t1}")
    a.e(f"v_xor_b32 v{V_RD+3}, 32, v{V_RD}")
    for k in (1, 2):
        a.e(f"v_add_u32 v{V_RD+k}, {49152*k}, v{V_RD}")
        a.e(f"v_add_u32 v{V_RD+3+k}, {49152*k}, v{V_RD+3}")


def rd_bases32(a):
    t1, t2 = V_T + 1, V_T + 2
    a.e(f"v_lshrrev_b32 v{t1}, 5, v{V_LANE}")
    a.e(f"v_lshlrev_b32 v{t1}, 8, v{t1}")
    a.e(f"v_bfe_u32 v{t2}, v{V_LANE}, 2, 2")
    a.e(f"v_lshl_add_u32 v{t1}, v{t2}, 6, v{t1}")
    a.e(f"v_bfe_u32 v{t2}, v{V_LANE}, 4, 1")
    a.e(f"v_lshl_add_u32 v{t1}, v{t2}, 5, v{t1}")
    a.e(f"v_and_b32 v{t2}, 3, v{V_LANE}")
    a.e(f"v_lshl_add_u32 v{t1}, v{t2}, 3, v{t1}")
    a.e(f"s_lshl_b32 s{S_T0}, s{S_C}, 9")
    a.e(f"v_add_u32 v{V_RD}, s{S_T0}, v{t1}")
    for k in (1, 2):
        a.e(f"v_add_u32 v{V_RD+k}, {49152*k}, v{V_RD}")


def mlp(a):
    KPS = int(os.environ.get("KPS", "3"))
    NS = 18 // KPS
    SB = KPS * 8192
    FPS = KPS * 4
    USEBAR = os.environ.get("SYNC", "bar") == "bar"
    SL = int(os.environ.get("SLACK", str(FPS - 4)))
    t0, t1, t2 = V_T + 3, V_T + 4, ACC
    a.e(f"s_cmp_lt_u32 s{S_W}, 4")
    a.e(f"s_cselect_b32 s{R_W1}, s{S_WG}, s{S_WU}")
    a.e(f"s_cselect_b32 s{R_W1+1}, s{S_WG+1}, s{S_WU+1}")
    a.e(f"s_mov_b32 s{R_W1+2}, 5308416")
    a.e(f"s_mov_b32 s{R_W1+3}, 0x20000")
    srd(a, R_W2, S_WD, 5308416)
    stamp(a)
    xtk = x_stage_issue(a)
    a.e(f"v_bfe_u32 v{t0}, v{V_LANE}, 2, 3")
    a.e(f"v_and_b32 v{t1}, 3, v{V_LANE}")
    a.e(f"v_lshrrev_b32 v{t2}, 5, v{V_LANE}")
    a.e(f"v_lshlrev_b32 v{t2}, 6, v{t2}")
    a.e(f"v_lshl_add_u32 v{t1}, v{t1}, 4, v{t2}")
    a.e(f"v_mul_u32_u24 v{V_D1}, 9216, v{t0}")
    a.e(f"v_add_u32 v{V_D1}, v{V_D1}, v{t1}")
    a.e(f"v_mul_u32_u24 v{V_D2}, 1152, v{t0}")
    a.e(f"v_add_u32 v{V_D2}, v{V_D2}, v{t1}")
    a.e(f"s_lshl_b32 s{S_WLDS}, s{S_W}, 10")
    a.e(f"s_mul_i32 s{S_T0}, s{S_SPLIT}, 384")
    a.e(f"s_mul_i32 s{S_W1B}, s{S_R}, {8*9216}")
    a.e(f"s_lshl_b32 s{S_T1}, s{S_T0}, 1")
    a.e(f"s_add_u32 s{S_W1B}, s{S_W1B}, s{S_T1}")
    a.e(f"s_lshl_b32 s{S_T1}, s{S_W}, 3")
    a.e(f"s_add_u32 s{S_T1}, s{S_T1}, s{S_T0}")
    a.e(f"s_mul_i32 s{S_W2B}, s{S_T1}, 1152")
    def wprefetch(first):
        p0, p1, tid = FR, FR + 1, FR + 2
        a.e(f"s_lshl_b32 s{S_T0}, s{S_W}, 6")
        a.e(f"v_add_u32 v{tid}, s{S_T0}, v{V_LANE}")
        srd(a, R_A, S_WG, 5308416)
        srd(a, R_B, S_WU, 5308416)
        a.e(f"s_mul_i32 s{S_T0}, s{S_RB}, {36*9216}")
        a.e(f"s_mul_i32 s{S_T1}, s{S_SPLIT}, 768")
        a.e(f"s_add_u32 s{S_T0}, s{S_T0}, s{S_T1}")
        if first:
            a.e(f"v_lshrrev_b32 v{p0}, 2, v{tid}")
            a.e(f"v_and_b32 v{p1}, 3, v{tid}")
            nthr = 144
        else:
            a.e(f"v_lshrrev_b32 v{p0}, 3, v{tid}")
            a.e(f"v_and_b32 v{p1}, 7, v{tid}")
            a.e(f"s_add_u32 s{S_T0}, s{S_T0}, 256")
            nthr = 288
        a.e(f"v_mul_u32_u24 v{p0}, 9216, v{p0}")
        a.e(f"v_lshl_add_u32 v{p0}, v{p1}, 6, v{p0}")
        a.e(f"v_cmp_gt_u32 vcc, {nthr}, v{tid}")
        a.e(f"v_cndmask_b32 v{p0}, -1, v{p0}, vcc")
        a.e(f"buffer_load_dword v0, v{p0}, {sr(R_A,4)}, s{S_T0} offen")
        a.e(f"buffer_load_dword v0, v{p0}, {sr(R_B,4)}, s{S_T0} offen")
        if not first:
            a.e(f"v_lshlrev_b32 v{p1}, 6, v{tid}")
            a.e(f"v_cmp_gt_u32 vcc, 432, v{tid}")
            a.e(f"v_cndmask_b32 v{p1}, -1, v{p1}, vcc")
            a.e(f"s_mul_i32 s{S_T1}, s{S_SPLIT}, {384*1152}")
            a.e(f"s_mul_i32 s{S_T2}, s{S_RB}, {24*1152}")
            a.e(f"s_add_u32 s{S_T1}, s{S_T1}, s{S_T2}")
            a.e(f"buffer_load_dword v0, v{p1}, {sr(R_W2,4)}, s{S_T1} offen")

    dtk = {}

    def dma_raw(g, i, voff, srd_, soff, mid=None):
        if FLAG("NODMA") and a.always:
            dtk[g % NS] = a.vm
            return
        a.e(f"s_add_u32 m0, s{S_WLDS}, {(g % NS) * SB + i*8192}")
        if mid:
            a.e(mid)
        dtk[g % NS] = a.e(f"buffer_load_dwordx4 v{voff}, {sr(srd_,4)}, s{soff} offen lds")

    def dma_p0(d):
        dma_raw(d // KPS, d % KPS, V_D1, R_W1, S_T3, f"s_add_u32 s{S_T3}, s{S_W1B}, {d*294912}")

    dma_p0(0)
    dma_p0(1)
    wprefetch(True)
    rd_bases32(a)
    a.e(f"s_lshl_b32 s{S_T0}, s{S_SPLIT}, 4")
    a.e(f"s_add_u32 s{S_T0}, s{S_T0}, s{S_RB}")
    a.e(f"s_mul_i32 s{S_T0}, s{S_T0}, 98304")
    a.e(f"s_lshl_b32 s{S_T2}, s{S_R}, 10")
    a.e(f"s_add_u32 s{S_H0}, s{S_T0}, s{S_T2}")
    a.e(f"s_mul_i32 s{S_T0}, s{S_SPLIT}, {PSZ}")
    a.e(f"s_mul_i32 s{S_T3}, s{S_RB}, {9*16384}")
    a.e(f"s_add_u32 s{S_T0}, s{S_T0}, s{S_T3}")
    a.e(f"s_lshl_b32 s{S_T3}, s{S_C}, 13")
    a.e(f"s_add_u32 s{S_T0}, s{S_T0}, s{S_T3}")
    a.e(f"s_add_u32 s{S_T0}, s{S_T0}, {PART}")
    a.e(f"s_lshl_b32 s{S_T2}, s{S_R}, 11")
    a.e(f"s_add_u32 s{S_P0}, s{S_T0}, s{S_T2}")
    a.e(f"s_mov_b32 s{S_NL2E}, 0x{NLOG2E:x}")
    layernorm(a, xtk, m32=True)
    stamp(a, 'f')
    for d in range(2, (NS - 2) * KPS):
        dma_p0(d)
    wprefetch(False)
    V_DN = V_T + 4
    VEX = V_T
    S_IT, S_CUR, S_PTR, S_STEP, S_ADJ, S_HST = 71, 72, 73, 74, 75, S_XREG
    R_N = R_A
    a.e(f"s_mov_b32 s{S_IT}, 0")
    a.e(f"s_mov_b32 s{S_CUR}, s{S_W1B}")
    a.e(f"s_mov_b32 s{S_STEP}, 294912")
    a.e(f"s_mov_b32 s{S_ADJ}, 294912")
    for k in range(4):
        a.e(f"s_mov_b32 s{R_N+k}, s{R_W1+k}")
    a.e(f"v_mov_b32 v{V_DN}, v{V_D1}")
    a.e(f"s_mov_b32 s{S_HST}, 0x70000000")
    sy = Sync(a, "m")
    if not USEBAR:
        sy.setup()

    def addr(A):
        k = A // 49152
        return [(V_RD + k, A - 49152 * k), (V_RD + k, A - 49152 * k + 1024)]

    def acc1(st, mat):
        return ACC + st * 32 + mat * 16

    def mk(acc, b, first):
        return lambda r: f"v_mfma_f32_32x32x16_bf16 {vr(acc,16)}, {vr(r,4)}, {vr(b,4)}, {'0' if first else vr(acc,16)}"

    def E(text):
        return lambda: a.e(text)

    def copy_items(mat):
        A_, E_ = acc1(0, mat), acc1(1, mat)
        return [E(f"v_mul_f32 v{E_+i}, s{S_NL2E}, v{A_+i}") if mat == 0 else E(f"v_mov_b32 v{E_+i}, v{A_+i}") for i in range(16)]

    hst = {}

    def epi1(last):
        items = []
        G0, U0 = acc1(1, 0), acc1(1, 1)
        for u in range(2):
            for h in range(2):
                G, U = G0 + 8 * u + 4 * h, U0 + 8 * u + 4 * h
                items += [E(f"v_exp_f32 v{G+i}, v{G+i}") for i in range(4)]
                items += [E(f"v_add_f32 v{G+i}, 1.0, v{G+i}") for i in range(4)]
                items += [E(f"v_rcp_f32 v{G+i}, v{G+i}") for i in range(4)]
                items += [E(f"v_mul_f32 v{U+i}, v{U+i}, v{G+i}") for i in range(4)]
            D, U = G0 + 8 * u, U0 + 8 * u
            items += [E(f"v_cvt_pk_bf16_f32 v{D+k}, v{U+2*k}, v{U+2*k+1}") for k in range(4)]
            if not last:
                def st(u=u, D=D):
                    a.e(f"s_add_u32 s{S_T0}, s{S_HST}, {u*4096}")
                    hst[0] = a.e(f"buffer_store_dwordx4 {vr(D,4)}, v{V_L16}, {sr(R_WS,4)}, s{S_T0} offen")
                items.append(st)
            else:
                def st(u=u, D=D):
                    hst[5] = a.e(f"ds_write_b128 v{VEX+1}, {vr(D,4)} offset:{u*4096}")
                items.append(st)
        return items

    ool = []
    frags = []
    for s16 in range(36):
        ks = s16 // 2
        g = ks // KPS
        for mat in range(2):
            A = g * SB + (ks % KPS) * 8192 + mat * 4096 + (s16 & 1) * 2048
            frags.append(dict(stage=g, first=(len(frags) % FPS == 0), rd=addr(A),
                              pre=copy_items(mat) if (s16 == 0 and not FLAG("NOEPI")) else [],
                              mf=[mk(acc1(0, mat), X32(s16), s16 == 0)]))
    fill = {}
    if FLAG("NOEPI"):
        hst[0] = 0
    else:
        spread(fill, epi1(False), 3, int(os.environ.get("EPIEND", "44")))

    def dma1(g, i):
        def f():
            if g < 2:
                dma_raw(g + NS - 2, i, V_D1, R_W1, S_T3, f"s_add_u32 s{S_T3}, s{S_CUR}, {((g+NS-2)*KPS+i)*294912}")
            else:
                d = (g - 2) * KPS + i
                dma_raw(g - 2, i, V_DN, R_N, S_T3, f"s_mov_b32 s{S_T3}, s{S_PTR}")
                a.e(f"s_add_u32 s{S_PTR}, s{S_PTR}, s{S_ADJ if d % 6 == 5 else S_STEP}")
        return f

    def setnext():
        a.e(f"s_add_u32 s{S_CUR}, s{S_CUR}, 128")
        a.e(f"s_mov_b32 s{S_PTR}, s{S_CUR}")
        a.e(f"s_cmp_eq_u32 s{S_IT}, 5")
        a.e(f"s_cbranch_scc1 L_p1_nn")
        a.raw("L_p1_nnb:")
    ool.append("\n".join(["L_p1_nn:",
        f"    s_mov_b32 s{S_PTR}, s{S_W2B}", f"    s_mov_b32 s{S_STEP}, 73728", f"    s_mov_b32 s{S_ADJ}, {(128 - 5*73728) & 0xffffffff}",
        f"    s_mov_b32 s{R_N}, s{R_W2}", f"    s_mov_b32 s{R_N+1}, s{R_W2+1}", f"    v_mov_b32 v{V_DN}, v{V_D2}", "    s_nop 1", "    s_branch L_p1_nnb"]))
    DSP = FPS // KPS - 1

    def place_dma(fl, fn, setf):
        for g in range(NS):
            n0 = max(g * FPS - PD + 2, 0)
            if g == 2:
                fl.setdefault(n0 - 1, []).append(setf)
            for i in range(KPS):
                fl.setdefault(n0 + DSP * i, []).append(fn(g, i))
    place_dma(fill, dma1, setnext)

    def hload(name, kaps):
        def f():
            a.e(f"s_cmp_eq_u32 s{S_IT}, 5")
            a.e(f"s_cbranch_scc1 L_p1_h{name}")
            a.raw(f"L_p1_hb{name}:")
        t = [f"L_p1_h{name}:"]
        for kap in kaps:
            t.append(f"    s_add_u32 s{S_T0}, s{S_H0}, {HS + kap*4096}")
            t.append(f"    buffer_load_dwordx4 {vr(X32(kap),4)}, v{V_L16}, {sr(R_WS,4)}, s{S_T0} offen")
        t.append(f"    s_branch L_p1_hb{name}")
        ool.append("\n".join(t))
        return f
    for k in range(4):
        fill.setdefault(8 * k + 9, []).append(hload(k, range(4 * k, 4 * k + 4)))
    GL = NS - 1
    fill.setdefault(GL * FPS - PD + 1, []).append(hload(4, range(16, 20)))

    def add_sync(fl, extra=None):
        if USEBAR:
            return
        for g in range(NS):
            def arr(g=g):
                tk = dtk[g]
                if extra and g in extra:
                    tk = max(tk, extra[g]())
                sy.arrive(tk)
            fl.setdefault((FPS * g - PD - SL) % 72, []).insert(0, arr)
            fl.setdefault((FPS * g - PD - 2) % 72, []).insert(0, sy.read)
    add_sync(fill, {GL: lambda: hst[0]})
    first1 = [True]

    def on_stage1(g):
        g %= 1000
        if first1[0]:
            first1[0] = False
            a.wait_vm(dtk[0])
            a.wait_lg0()
            a.e("s_barrier")
            stamp(a, 'i')
            return
        if USEBAR:
            a.wait_vm(max(dtk[g], hst[0]) if g == GL else dtk[g])
            if not FLAG("NOBAR"):
                a.e("s_barrier")
        else:
            sy.check(f"a{g}")

    a.always = True
    tk1 = [run_stream(a, frags, fill, on_stage1, wrap=True, prime=True)]

    def body1():
        tk1[0] = run_stream(a, frags, fill, on_stage1, wrap=True, prime=False, tick=dict(tk1[0]))

    def dec1(label):
        a.e(f"s_lshl_b32 s{S_T0}, s{S_C}, 13")
        a.e(f"s_lshl_b32 s{S_HST}, s{S_IT}, 14")
        a.e(f"s_add_u32 s{S_HST}, s{S_HST}, s{S_T0}")
        a.e(f"s_add_u32 s{S_HST}, s{S_HST}, s{S_H0}")
        a.e(f"s_add_u32 s{S_IT}, s{S_IT}, 1")
        a.e(f"s_cmp_lt_u32 s{S_IT}, 6")
        a.e(f"s_cbranch_scc1 {label}")
    loop(a, "L_p1", body1, dec1)
    a.always = False
    a.e(f"s_lshl_b32 s{S_T0}, s{S_R}, 10")
    a.e(f"s_add_u32 s{S_T0}, s{S_T0}, {(NS-1)*SB}")
    a.e(f"v_add_u32 v{VEX}, s{S_T0}, v{V_L16}")
    a.e(f"s_lshl_b32 s{S_T0}, s{S_C}, 13")
    a.e(f"v_add_u32 v{VEX+1}, s{S_T0}, v{VEX}")
    for it in copy_items(0) + copy_items(1):
        it()
    its = epi1(True)
    a.wait_lg0()
    for it in its[:20]:
        it()
    a.e("s_barrier")
    for it in its[20:]:
        it()
    a.wait_lg0()
    a.e("s_barrier")
    stamp(a, 'j')
    for kap in range(20, 24):
        a.e(f"ds_read_b128 {vr(X32(kap),4)}, v{VEX} offset:{(kap-20)*4096}")
    def acc2(j):
        return ACC + j * 16
    S_PST = S_HST
    a.e(f"s_mov_b32 s{S_IT}, 0")
    a.e(f"s_mov_b32 s{S_PST}, 0x70000000")

    def epi2(j, off_sgpr, off_imm):
        items = []
        for u in range(2):
            P = acc2(j) + 8 * u
            items += [E(f"v_cvt_pk_bf16_f32 v{P+k}, v{P+2*k}, v{P+2*k+1}") for k in range(4)]

            def st(u=u, P=P):
                if u == 0:
                    a.e(f"s_add_u32 s{S_P1}, s{S_P0}, {('s%d' % off_sgpr) if off_sgpr is not None else off_imm}")
                a.e(f"buffer_store_dwordx4 {vr(P,4)}, v{V_L16}, {sr(R_WS,4)}, s{S_P1} offen offset:{u*1024} sc1")
            items.append(st)
        return items
    frags2 = []
    for j in range(3):
        for kap in range(24):
            A = j * 49152 + kap * 2048
            frags2.append(dict(stage=A // SB, first=(len(frags2) % FPS == 0), rd=addr(A),
                               mf=[mk(acc2(j), X32(kap), kap == 0)]))
    fill2 = {}
    spread(fill2, epi2(2, S_PST, 0), 3, 13)
    spread(fill2, epi2(0, None, 0), 24 + 3, 24 + 13)
    spread(fill2, epi2(1, None, 16384), 48 + 3, 48 + 13)

    def dma2(g, i):
        def f():
            t = (g + NS - 2) % NS
            d = t * KPS + i
            dma_raw(t, i, V_D2, R_W2, S_T3, f"s_mov_b32 s{S_T3}, s{S_PTR}")
            a.e(f"s_add_u32 s{S_PTR}, s{S_PTR}, {73728 if d % 6 != 5 else (128 - 5*73728) & 0xffffffff}")
        return f

    def setend():
        a.e(f"s_cmp_eq_u32 s{S_IT}, 2")
        a.e(f"s_cselect_b32 s{S_PTR}, 0x70000000, s{S_PTR}")
    place_dma(fill2, dma2, setend)
    add_sync(fill2)
    first2 = [True]

    def on_stage2(g):
        g %= 1000
        if first2[0]:
            first2[0] = False
            return
        if USEBAR:
            a.wait_vm(dtk[g])
            if not FLAG("NOBAR"):
                a.e("s_barrier")
        else:
            sy.check(f"b{g}")
    a.always = True
    tk2 = [run_stream(a, frags2, fill2, on_stage2, wrap=True, prime=True)]
    a.wait_vm(dtk[NS - 3])

    def body2():
        tk2[0] = run_stream(a, frags2, fill2, on_stage2, wrap=True, prime=False, tick=dict(tk2[0]))

    def dec2(label):
        a.e(f"s_add_u32 s{S_P0}, s{S_P0}, {3*16384}")
        a.e(f"s_mov_b32 s{S_PST}, {(-16384) & 0xffffffff}")
        a.e(f"s_add_u32 s{S_IT}, s{S_IT}, 1")
        a.e(f"s_cmp_lt_u32 s{S_IT}, 3")
        a.e(f"s_cbranch_scc1 {label}")
    loop(a, "L_p2", body2, dec2)
    a.always = False
    for it in epi2(2, S_PST, 0):
        it()
    if STAMP:
        a.e("s_barrier")
    stamp(a, 'h')
    stamp_out(a)
    a.e("s_endpgm")
    sy.emit_slow()
    for t in ool:
        a.raw(t)


def k1(a):
    a.raw(".globl k1_kernel\n.p2align 8\n.type k1_kernel,@function\nk1_kernel:")
    a.e("s_cmp_ge_u32 s2, 256")
    a.e("s_cbranch_scc1 L_k1_end")
    a.e("s_load_dwordx16 s[4:19], s[0:1], 0")
    a.e("s_load_dwordx4 s[20:23], s[0:1], 64")
    a.e(f"v_and_b32 v{V_LANE}, 63, v0")
    a.e(f"v_lshlrev_b32 v{V_L16}, 4, v{V_LANE}")
    a.e(f"v_lshrrev_b32 v{V_T}, 6, v0")
    a.e(f"v_readfirstlane_b32 s{S_W}, v{V_T}")
    a.e(f"s_and_b32 s{S_R}, s{S_W}, 3")
    a.e(f"s_lshr_b32 s{S_C}, s{S_W}, 2")
    a.e(f"s_and_b32 s{S_T0}, s2, 7")
    a.e(f"s_lshr_b32 s{S_T1}, s2, 3")
    a.e(f"s_and_b32 s{S_T2}, s{S_T0}, 1")
    a.e(f"s_lshl_b32 s{S_T2}, s{S_T2}, 3")
    a.e(f"s_and_b32 s{S_T3}, s{S_T1}, 7")
    a.e(f"s_add_u32 s{S_RB}, s{S_T2}, s{S_T3}")
    a.e(f"s_lshr_b32 s{S_T0}, s{S_T0}, 1")
    a.e(f"s_lshr_b32 s{S_T1}, s{S_T1}, 3")
    a.e("s_waitcnt lgkmcnt(0)")
    srd(a, R_X, S_X, 2359296)
    srd(a, R_WS, S_WS, WS_SZ)
    srd(a, R_DBG, S_DBG, 256)
    if int(os.environ.get("CODEPF", "0")):
        a.e(f"s_getpc_b64 s[{R_A}:{R_A+1}]")
        a.raw("L_pc0:")
        a.e(f"s_mov_b32 s{R_A+2}, L_k1_end-L_pc0")
        a.e(f"s_mov_b32 s{R_A+3}, 0x20000")
        a.e(f"v_lshlrev_b32 v{V_T}, 6, v0")
        for k in range((int(os.environ.get('CODEPF'))+31)//32):
            a.e(f"s_mov_b32 s{S_T2}, {k*32768}")
            a.e(f"buffer_load_dword v0, v{V_T}, {sr(R_A,4)}, s{S_T2} offen")
    a.e(f"s_cmp_eq_u32 s{S_T1}, 3")
    a.e("s_cbranch_scc1 L_att")
    a.e(f"s_mul_i32 s{S_SPLIT}, s{S_T0}, 3")
    a.e(f"s_add_u32 s{S_SPLIT}, s{S_SPLIT}, s{S_T1}")
    if int(os.environ.get("MAPA", "0")):
        a.e(f"s_and_b32 s{S_T0}, s2, 7")
        a.e(f"s_mul_i32 s{S_T0}, s{S_T0}, 24")
        a.e(f"s_lshr_b32 s{S_T1}, s2, 3")
        a.e(f"s_add_u32 s{S_T0}, s{S_T0}, s{S_T1}")
        a.e(f"s_lshr_b32 s{S_SPLIT}, s{S_T0}, 4")
        a.e(f"s_and_b32 s{S_RB}, s{S_T0}, 15")
    mlp(a)
    a.label("L_att")
    a.e(f"s_mov_b32 s{S_HG}, s{S_T0}")
    try:
        import gen_att
        gen_att.att(a)
    except ImportError:
        pass
    a.label("L_k1_end")
    a.e("s_endpgm")


def desc(name, vgpr, sgpr):
    return f""".p2align 6
.amdhsa_kernel {name}
  .amdhsa_next_free_vgpr {vgpr}
  .amdhsa_next_free_sgpr {sgpr}
  .amdhsa_accum_offset {(vgpr+3)//4*4}
  .amdhsa_group_segment_fixed_size 0
  .amdhsa_kernarg_size 80
  .amdhsa_user_sgpr_count 2
  .amdhsa_user_sgpr_kernarg_segment_ptr 1
  .amdhsa_system_sgpr_workgroup_id_x 1
.end_amdhsa_kernel"""


def main():
    a = Asm()
    a.raw(f"; @launch kernel=k1_kernel grid=(256,1,1) block=(512,1,1) lds={LDS_SZ}")
    have_k2 = True
    try:
        import gen_k2
    except ImportError:
        have_k2 = False
    if have_k2:
        a.raw(gen_k2.LAUNCH)
    a.raw('.amdgcn_target "amdgcn-amd-amdhsa--gfx950"\n.text')
    k1(a)
    if have_k2:
        b = Asm()
        gen_k2.k2(b)
        a.raw(b.text())
    a.raw('.section .rodata,"a"')
    a.raw(desc("k1_kernel", 256, 102))
    if have_k2:
        a.raw(desc("k2_kernel", gen_k2.VGPRS, 48))
    sys.stdout.write(a.text())


if __name__ == "__main__":
    main()
```

```python
import os
from asmlib import vr, sr
import __main__ as G

Q0 = 0x3000000
QX = 0x3200000
QSCALE = 0x3EAE1B5D


def att(a):
    import struct, math
    qs = struct.unpack("<I", struct.pack("<f", (18 ** -0.5) * math.log2(math.e)))[0]
    (S_W, S_R, S_C, S_RB, S_HG, S_T0, S_T1, S_T2, S_T3) = (G.S_W, G.S_R, G.S_C, G.S_RB, G.S_HG, G.S_T0, G.S_T1, G.S_T2, G.S_T3)
    R_X, R_W1, R_W2, R_WS, R_DBG, R_A, R_B = G.R_X, G.R_W1, G.R_W2, G.R_WS, G.R_DBG, G.R_A, G.R_B
    V_LANE, V_L16, V_RD, FR, ACC, X = G.V_LANE, G.V_L16, G.V_RD, G.FR, G.ACC, G.X
    PD = G.PD
    S_WLDS, S_W1B, S_W2B, S_RT0, S_RT1, S_HB, S_KS, S_W2X = 61, 62, 63, 64, 65, 66, 67, 68
    VD = (3, 4, 76)
    VDX = (77, 78, 79)
    V_L8 = 80
    V_ONE = 81
    NS, SB = 8, 18432
    stamp = G.stamp

    G.srd(a, R_W1, G.S_WQKV, 1990656)
    G.srd(a, R_W2, G.S_WO, 663552)
    stamp(a)
    a.e(f"s_lshl_b32 s{S_T0}, s{S_HG}, 3")
    a.e(f"s_add_u32 s{S_T0}, s{S_T0}, s{S_W}")
    a.e(f"s_cmp_eq_u32 s{S_T0}, 0")
    a.e("s_cbranch_scc0 L_noinit")
    for k in range(4):
        a.e(f"v_mov_b32 v{16+k}, 0")
    a.e(f"s_lshl_b32 s{S_T0}, s{S_RB}, 11")
    a.e(f"s_add_u32 s{S_T0}, s{S_T0}, {G.FLG}")
    a.e_untracked(f"buffer_store_dwordx4 v[16:19], v{V_L16}, {sr(R_WS,4)}, s{S_T0} offen sc1")
    a.e("s_waitcnt vmcnt(0)")
    a.e(f"v_mov_b32 v17, 1")
    a.e(f"s_lshl_b32 s{S_T0}, s{S_RB}, 2")
    a.e("s_mov_b64 exec, 1")
    a.e_untracked(f"buffer_store_dword v17, v16, {sr(R_DBG,4)}, s{S_T0} offen sc1")
    a.e("s_mov_b64 exec, -1")
    a.raw("L_noinit:")
    xtk = G.x_stage_issue(a)
    t0, t1, t2, t3 = 82, 83, 84, 85
    a.e(f"s_lshl_b32 s{S_T0}, s{S_W}, 6")
    a.e(f"v_add_u32 v{t0}, s{S_T0}, v{V_LANE}")
    a.e(f"v_lshrrev_b32 v{t1}, 3, v{t0}")
    a.e(f"v_and_b32 v{t2}, 7, v{t0}")
    a.e(f"v_min_u32 v{t2}, 5, v{t2}")
    a.e(f"v_lshlrev_b32 v{t2}, 6, v{t2}")
    a.e(f"v_min_u32 v{t2}, 284, v{t2}")
    a.e(f"v_cmp_gt_u32 vcc, 36, v{t1}")
    a.e(f"v_mul_u32_u24 v{t3}, 3456, v{t1}")
    a.e(f"v_add_u32 v{t3}, v{t3}, v{t2}")
    a.e(f"v_cndmask_b32 v{t3}, -1, v{t3}, vcc")
    a.e(f"v_mul_u32_u24 v{t1}, 1152, v{t1}")
    a.e(f"v_add_u32 v{t1}, v{t1}, v{t2}")
    a.e(f"v_cndmask_b32 v{t1}, -1, v{t1}, vcc")
    a.e(f"s_mul_i32 s{S_T0}, s{S_RB}, {36*3456}")
    a.e(f"s_mul_i32 s{S_T1}, s{S_HG}, 288")
    a.e(f"s_add_u32 s{S_T0}, s{S_T0}, s{S_T1}")
    for sec in (1, 2, 0):
        a.e(f"s_add_u32 s{S_T2}, s{S_T0}, {sec*1152}")
        a.e(f"buffer_load_dword v0, v{t3}, {sr(R_W1,4)}, s{S_T2} offen")
    a.e(f"s_mul_i32 s{S_T0}, s{S_RB}, {36*1152}")
    a.e(f"s_add_u32 s{S_T0}, s{S_T0}, s{S_T1}")
    a.e(f"buffer_load_dword v0, v{t1}, {sr(R_W2,4)}, s{S_T0} offen")

    def dma_voffs(pitch, extras=False):
        for n in range(3):
            a.e(f"v_add_u32 v{t0}, {64*n}, v{V_LANE}")
            a.e(f"v_mul_u32_u24 v{t1}, 3641, v{t0}")
            a.e(f"v_lshrrev_b32 v{t1}, 16, v{t1}")
            a.e(f"v_mul_u32_u24 v{t2}, 18, v{t1}")
            a.e(f"v_sub_u32 v{t2}, v{t0}, v{t2}")
            a.e(f"v_mul_u32_u24 v{t3}, {pitch}, v{t1}")
            a.e(f"v_lshl_add_u32 v{VD[n]}, v{t2}, 4, v{t3}")
            if extras:
                a.e(f"v_lshrrev_b32 v{t3}, 2, v{t1}")
                a.e(f"v_mul_u32_u24 v{t3}, {32*pitch}, v{t3}")
                a.e(f"v_add_u32 v{VDX[n]}, v{VD[n]}, v{t3}")
    dma_voffs(3456)
    a.e(f"s_mul_i32 s{S_WLDS}, s{S_W}, 2304")
    a.e(f"s_mul_i32 s{S_W1B}, s{S_W}, {8*3456}")
    a.e(f"s_mul_i32 s{S_T1}, s{S_HG}, 288")
    a.e(f"s_add_u32 s{S_W1B}, s{S_W1B}, s{S_T1}")
    a.e(f"s_mul_i32 s{S_T0}, s{S_C}, 36")
    a.e(f"s_lshl_b32 s{S_T2}, s{S_R}, 3")
    a.e(f"s_add_u32 s{S_T0}, s{S_T0}, s{S_T2}")
    a.e(f"s_lshr_b32 s{S_T2}, s{S_R}, 1")
    a.e(f"s_lshl_b32 s{S_T3}, s{S_T2}, 2")
    a.e(f"s_add_u32 s{S_T0}, s{S_T0}, s{S_T3}")
    a.e(f"s_mul_i32 s{S_W2B}, s{S_T0}, 1152")
    a.e(f"s_add_u32 s{S_W2B}, s{S_W2B}, s{S_T1}")
    a.e(f"s_lshl_b32 s{S_T0}, s{S_C}, 1")
    a.e(f"s_add_u32 s{S_T0}, s{S_T0}, s{S_T2}")
    a.e(f"s_mul_i32 s{S_T0}, s{S_T0}, 144")
    a.e(f"s_and_b32 s{S_T2}, s{S_R}, 1")
    a.e(f"s_mul_i32 s{S_T2}, s{S_T2}, 72")
    a.e(f"s_add_u32 s{S_T0}, s{S_T0}, s{S_T2}")
    a.e(f"s_add_u32 s{S_T0}, s{S_T0}, 16")
    a.e(f"s_mul_i32 s{S_W2X}, s{S_T0}, 1152")
    a.e(f"s_add_u32 s{S_W2X}, s{S_W2X}, s{S_T1}")
    def rd_bases():
        a.e(f"v_lshrrev_b32 v{t0}, 2, v{V_LANE}")
        a.e(f"v_mul_u32_u24 v{t0}, 288, v{t0}")
        a.e(f"v_and_b32 v{t1}, 3, v{V_LANE}")
        a.e(f"v_lshl_add_u32 v{t2}, v{t1}, 3, v{t0}")
        a.e(f"s_mul_i32 s{S_T0}, s{S_C}, 144")
        a.e(f"v_add_u32 v{V_RD}, s{S_T0}, v{t2}")
        a.e(f"v_mul_u32_u24 v{t1}, 72, v{t1}")
        a.e(f"v_add3_u32 v{V_RD+3}, v{t0}, v{t1}, 32")
        for k in (1, 2):
            a.e(f"v_add_u32 v{V_RD+k}, {49152*k}, v{V_RD}")
            a.e(f"v_add_u32 v{V_RD+3+k}, {49152*k}, v{V_RD+3}")
    rd_bases()
    a.e(f"v_lshlrev_b32 v{V_L8}, 3, v{V_LANE}")
    a.e(f"v_mov_b32 v{V_ONE}, 0x3f803f80")
    a.e(f"s_lshl_b32 s{S_T0}, s{S_RB}, 3")
    a.e(f"s_lshl_b32 s{S_T1}, s{S_R}, 1")
    a.e(f"s_add_u32 s{S_T0}, s{S_T0}, s{S_T1}")
    a.e(f"s_add_u32 s{S_T0}, s{S_T0}, s{S_C}")
    a.e(f"s_mov_b32 s{S_RT0}, s{S_T0}")
    a.e(f"s_xor_b32 s{S_RT1}, s{S_T0}, 1")
    a.e(f"s_lshl_b32 s{S_HB}, s{S_HG}, 3")
    a.e(f"s_lshl_b32 s{S_T1}, s{S_C}, 2")
    a.e(f"s_add_u32 s{S_HB}, s{S_HB}, s{S_T1}")
    a.e(f"s_lshl_b32 s{S_HB}, s{S_HB}, 16")
    a.e(f"s_lshl_b32 s{S_KS}, s{S_RB}, 2")
    a.e(f"s_add_u32 s{S_KS}, s{S_KS}, s{S_R}")
    a.e(f"s_lshl_b32 s{S_KS}, s{S_KS}, 10")
    itk = []

    def after_x():
        a.e(f"v_min_u32 v{t0}, 2, v{V_LANE}")
        a.e(f"v_sub_u32 v{t0}, s{S_RB}, v{t0}")
        a.e(f"v_max_i32 v{t0}, 0, v{t0}")
        a.e(f"v_lshlrev_b32 v{t0}, 2, v{t0}")
        itk.append(G.init_issue(a, t0, t1))
    G.layernorm(a, xtk, after_x=after_x)
    stamp(a, 'f')

    dtk = {}
    SEC = {0: 1152, 1: 2304, 2: 0}

    def dma(Gs, n):
        if Gs >= 37 or Gs == 27:
            return
        p, s = (Gs // 9, Gs % 9) if Gs < 27 else (3, Gs - 28)
        a.e(f"s_add_u32 m0, s{S_WLDS}, {(Gs % NS)*SB + n*1024}")
        if p < 3:
            a.e(f"s_add_u32 s{S_T3}, s{S_W1B}, {s*64*3456 + SEC[p]}")
            v, rs = VD[n], R_W1
        elif s < 8:
            a.e(f"s_add_u32 s{S_T3}, s{S_W2B}, {s*72*1152}")
            v, rs = VD[n], R_W2
        else:
            a.e(f"s_mov_b32 s{S_T3}, s{S_W2X}")
            v, rs = VDX[n], R_W2
        if n == 2:
            a.e("s_mov_b64 exec, 0xffff")
        dtk[Gs] = a.e(f"buffer_load_dwordx4 v{v}, {sr(rs,4)}, s{S_T3} offen lds")
        if n == 2:
            a.e("s_mov_b64 exec, -1")

    def acc(t, rho):
        return ACC + (t * 2 + rho) * 4 if t < 4 else ACC + 32

    TOFF = (0, 40, 72, 112)

    def gemm_pass(p, issue_next, extra_wait=None, after_bar=None, hooks=None):
        swap = (p == 1)
        frags = []
        for ks in range(18):
            Gs = p * 9 + ks // 2 + (1 if p == 3 else 0)
            base = (Gs % NS) * SB + (ks & 1) * 9216
            for t in range(5):
                A = base + (TOFF[t] if t < 4 else 0)
                k = A // 49152
                vb = V_RD + k + (3 if t == 4 else 0)
                im = A - 49152 * k

                def mk(ac, b, first):
                    if swap:
                        return lambda r: f"v_mfma_f32_16x16x32_bf16 {vr(ac,4)}, {vr(b,4)}, {vr(r,4)}, {'0' if first else vr(ac,4)}"
                    return lambda r: f"v_mfma_f32_16x16x32_bf16 {vr(ac,4)}, {vr(r,4)}, {vr(b,4)}, {'0' if first else vr(ac,4)}"
                frags.append(dict(stage=Gs, first=(ks % 2 == 0 and t == 0), rd=[(vb, im), (vb, im + 4608)],
                                  mf=[mk(acc(t, rho), X(rho, ks), ks == 0) for rho in range(2 if t < 4 else 1)]))
        fill = {}
        for s in range(9):
            tgt = p * 9 + s + NS - 2
            if tgt >= (p + 1) * 9 and not issue_next:
                continue
            if p == 3:
                tgt += 1
            n0 = max(s * 10 - PD + 2, 0)
            for n in range(3):
                fill.setdefault(n0 + 2 * n, []).append(lambda tgt=tgt, n=n: dma(tgt, n))

        for n_, fn in (hooks or {}).items():
            fill.setdefault(n_, []).extend(fn)

        def on_stage(Gs):
            tk = dtk[Gs]
            if extra_wait and Gs in extra_wait:
                tk = max(tk, extra_wait[Gs])
            a.wait_vm(tk)
            a.e("s_barrier")
            if after_bar and Gs in after_bar:
                after_bar[Gs]()
        G.run_stream(a, frags, fill, on_stage)

    def epi_kq(base0, basex, scale):
        tk = None
        for t in range(5):
            for rho in range(2 if t < 4 else 1):
                A = acc(t, rho)
                if scale:
                    for i in range(4):
                        a.e(f"v_mul_f32 v{A+i}, 0x{qs:x}, v{A+i}")
                a.e(f"v_cvt_pk_bf16_f32 v{A}, v{A}, v{A+1}")
                a.e(f"v_cvt_pk_bf16_f32 v{A+1}, v{A+2}, v{A+3}")
                a.e(f"s_lshl_b32 s{S_T0}, s{S_RT0 if rho == 0 else S_RT1}, 9")
                if t < 4:
                    a.e(f"s_add_u32 s{S_T0}, s{S_T0}, s{S_HB}")
                    a.e(f"s_add_u32 s{S_T0}, s{S_T0}, {base0 + t*65536}")
                else:
                    a.e(f"s_lshl_b32 s{S_T1}, s{S_HG}, 16")
                    a.e(f"s_add_u32 s{S_T0}, s{S_T0}, s{S_T1}")
                    a.e(f"s_add_u32 s{S_T0}, s{S_T0}, {basex}")
                tk = a.e(f"buffer_store_dwordx2 {vr(A,2)}, v{V_L8}, {sr(R_WS,4)}, s{S_T0} offen sc1")
        return tk

    def epi_v():
        tk = None
        for t in range(4):
            for rho in range(2):
                A = acc(t, rho)
                a.e(f"v_cvt_pk_bf16_f32 v{A}, v{A}, v{A+1}")
                a.e(f"v_cvt_pk_bf16_f32 v{A+1}, v{A+2}, v{A+3}")
                a.e(f"s_and_b32 s{S_T0}, s{S_RT0 if rho == 0 else S_RT1}, 1")
                a.e(f"s_lshl_b32 s{S_T0}, s{S_T0}, 3")
                a.e(f"s_add_u32 s{S_T0}, s{S_T0}, s{S_KS}")
                a.e(f"s_add_u32 s{S_T0}, s{S_T0}, s{S_HB}")
                a.e(f"s_add_u32 s{S_T0}, s{S_T0}, {G.V0 + t*65536}")
                tk = a.e(f"buffer_store_dwordx2 {vr(A,2)}, v{V_L16}, {sr(R_WS,4)}, s{S_T0} offen sc1")
        A = acc(4, 0)
        a.e(f"v_cvt_pk_bf16_f32 v{A}, v{A}, v{A+1}")
        a.e(f"v_cvt_pk_bf16_f32 v{A+1}, v{A+2}, v{A+3}")
        a.e(f"v_and_b32 v{t0}, 8, v{V_LANE}")
        a.e(f"v_cmp_eq_u32 vcc, 0, v{t0}")
        a.e(f"v_cndmask_b32 v{A+2}, v{V_ONE}, v{A}, vcc")
        a.e(f"v_cndmask_b32 v{A+3}, v{V_ONE}, v{A+1}, vcc")
        a.e(f"v_cndmask_b32 v{A}, v{A}, v{V_ONE}, vcc")
        a.e(f"v_cndmask_b32 v{A+1}, v{A+1}, v{V_ONE}, vcc")
        a.e(f"s_lshl_b32 s{S_T0}, s{S_C}, 3")
        a.e(f"s_add_u32 s{S_T0}, s{S_T0}, s{S_KS}")
        a.e(f"s_lshl_b32 s{S_T1}, s{S_HG}, 17")
        a.e(f"s_add_u32 s{S_T0}, s{S_T0}, s{S_T1}")
        a.e(f"s_add_u32 s{S_T0}, s{S_T0}, {G.VX}")
        a.e(f"buffer_store_dwordx2 {vr(A+2,2)}, v{V_L16}, {sr(R_WS,4)}, s{S_T0} offen sc1")
        a.e(f"s_add_u32 s{S_T0}, s{S_T0}, 65536")
        tk = a.e(f"buffer_store_dwordx2 {vr(A,2)}, v{V_L16}, {sr(R_WS,4)}, s{S_T0} offen sc1")
        return tk

    def set_flag(val, name):
        a.e(f"s_cmp_eq_u32 s{S_W}, 0")
        a.e(f"s_cbranch_scc0 L_fl_{name}")
        a.e(f"s_lshl_b32 s{S_T0}, s{S_RB}, 11")
        a.e(f"s_lshl_b32 s{S_T1}, s{S_HG}, 2")
        a.e(f"s_add_u32 s{S_T0}, s{S_T0}, s{S_T1}")
        a.e(f"s_add_u32 s{S_T0}, s{S_T0}, {G.FLG}")
        a.e(f"v_mov_b32 v{t0}, {val}")
        a.e(f"v_mov_b32 v{t1}, 0")
        a.e("s_mov_b64 exec, 1")
        a.e_untracked(f"buffer_store_dword v{t0}, v{t1}, {sr(R_WS,4)}, s{S_T0} offen sc1")
        a.e("s_mov_b64 exec, -1")
        a.raw(f"L_fl_{name}:")

    def poll(name, vaddr, vtmp, want, one_wave=True):
        if one_wave:
            a.e(f"s_cmp_eq_u32 s{S_W}, 0")
            a.e(f"s_cbranch_scc0 L_poll_{name}_x")
        a.e(f"s_mov_b32 s{S_T2}, 0")
        a.e(f"s_mov_b32 s{S_T0}, {G.FLG}")
        a.raw(f"L_poll_{name}:")
        a.e_untracked(f"buffer_load_dword v{vtmp}, v{vaddr}, {sr(R_WS,4)}, s{S_T0} offen sc1")
        a.e(f"s_add_u32 s{S_T2}, s{S_T2}, 1")
        a.e(f"s_cmp_gt_u32 s{S_T2}, 0x40000")
        a.e(f"s_cbranch_scc1 L_poll_{name}_x")
        a.e("s_waitcnt vmcnt(0)")
        a.e(f"v_cmp_gt_u32 vcc, {want}, v{vtmp}")
        a.e(f"s_cbranch_vccz L_poll_{name}_x")
        a.e("s_sleep 2")
        a.e(f"s_branch L_poll_{name}")
        a.raw(f"L_poll_{name}_x:")
        if one_wave:
            a.e("s_barrier")

    for Gs in range(NS - 2):
        for n in range(3):
            dma(Gs, n)
    G.init_check(a, "a", t0, t1, itk[0])
    stamp(a, 'n')
    gemm_pass(0, True)
    stamp(a, 'o')
    epi_kq(G.K0, G.KX, False)
    stamp(a, 'p')
    gemm_pass(1, True)
    stamp(a, 'q')
    tkv = epi_v()
    stamp(a, 'r')
    KF, VF = 104, 200
    TQ, MQ, CQ, QA, O0, OX, VXB = 16, 48, 52, 60, 68, 12, 92
    vNEG, vM, vT1, vT2, vOA, vOB = 86, 87, 88, 89, 90, 91
    vQ, vVX = 248, 249
    XS = 250
    vL8 = V_L8
    S_P, S_KT0 = 71, 73
    M = [4, 6, 8, 10]
    MQ0, MQ1, MVER, MODD, MP = 12, 14, 16, 18, 100
    SO = [75, 69, 70]
    LQ0, LQX, LKX, LVX = 0, 32768, 36864, 49152
    XK, XV = 86, 92
    vS1, vS2 = 250, 251

    def mk_srd(rs, off_sgpr, size=65536):
        a.e(f"s_add_u32 s{rs}, s{G.S_WS}, s{off_sgpr}")
        a.e(f"s_addc_u32 s{rs+1}, s{G.S_WS+1}, 0")
        a.e(f"s_mov_b32 s{rs+2}, {size}")
        a.e(f"s_mov_b32 s{rs+3}, 0x20000")
    tks_ = {}

    def att_setup():
        a.e(f"s_lshr_b32 s{S_P}, s{S_W}, 1")
        a.e(f"s_lshl_b32 s{S_KT0}, s{S_RB}, 3")
        a.e(f"s_sub_u32 s{S_KT0}, s{S_KT0}, 16")
        for b in range(3):
            a.e(f"s_add_u32 s{S_T0}, s{S_KT0}, {8*b}")
            a.e(f"s_lshl_b32 s{SO[b]}, s{S_T0}, 9")
            a.e(f"s_cmp_lt_i32 s{S_T0}, 0")
            a.e(f"s_cselect_b32 s{SO[b]}, 0x70000000, s{SO[b]}")
        a.e(f"s_lshl_b32 s{S_T0}, s{S_HG}, 16")
        a.e(f"s_add_u32 s{S_T0}, s{S_T0}, {G.KX}")
        mk_srd(R_X, S_T0)
        a.e(f"s_lshl_b32 s{S_T0}, s{S_HG}, 1")
        a.e(f"s_add_u32 s{S_T0}, s{S_T0}, s{S_C}")
        a.e(f"s_lshl_b32 s{S_T0}, s{S_T0}, 16")
        a.e(f"s_add_u32 s{S_T0}, s{S_T0}, {G.VX}")
        mk_srd(R_W1, S_T0)
        a.e(f"s_lshl_b32 s{S_T1}, s{S_HG}, 3")
        a.e(f"s_add_u32 s{S_T1}, s{S_T1}, s{S_W}")
        a.e(f"s_lshl_b32 s{S_T1}, s{S_T1}, 16")
        for rs, base in ((R_A, G.K0), (R_B, G.V0)):
            a.e(f"s_add_u32 s{S_T0}, s{S_T1}, {base}")
            mk_srd(rs, S_T0)
        a.e(f"v_and_b32 v{t0}, 1, v{V_LANE}")
        a.e(f"v_add_u32 v{t0}, 1, v{t0}")
        a.e(f"v_sub_u32 v{t0}, s{S_RB}, v{t0}")
        a.e(f"v_max_i32 v{t0}, 0, v{t0}")
        a.e(f"v_lshlrev_b32 v{t0}, 11, v{t0}")
        a.e(f"s_lshl_b32 s{S_T0}, s{S_HG}, 2")
        a.e(f"v_add_u32 v{t0}, s{S_T0}, v{t0}")
        poll("kv", t0, t1, 1, one_wave=False)
        a.e(f"s_lshl_b32 s{S_T2}, s{S_W}, 9")
        a.e(f"v_add_u32 v{vS1}, s{S_T2}, v{vL8}")
        a.e(f"s_lshl_b32 s{S_T2}, s{S_R}, 10")
        a.e(f"v_add_u32 v{vS2}, s{S_T2}, v{V_L16}")

    def lsh(b):
        def f():
            a.e(f"buffer_load_dwordx2 {vr(XK+2*b,2)}, v{vS1}, {sr(R_X,4)}, s{SO[b]} offen sc1")
            tks_['sh'] = a.e(f"buffer_load_dwordx4 {vr(XV+4*b,4)}, v{vS2}, {sr(R_W1,4)}, s{SO[b]} offen sc1")
        return f

    def lk(k):
        def f():
            tks_['kv'] = a.e(f"buffer_load_dwordx2 {vr(KF+4*k,2)}, v{vL8}, {sr(R_A,4)}, s{SO[k//8]} offen offset:{(k%8)*512} sc1")
        return f

    def lv(k):
        def f():
            tks_['kv'] = a.e(f"buffer_load_dwordx4 {vr(VF+4*k,4)}, v{V_L16}, {sr(R_B,4)}, s{SO[k//4]} offen offset:{(k%4)*1024} sc1")
        return f
    KS0 = int(os.environ.get("KS0", "10"))
    hooks = {KS0 * 5: [att_setup]}
    early = [lsh(0), lsh(1), lsh(2)] + [lk(k) for k in range(KS0)] + [lk(k) for k in range(18, 24)] + [lv(v) for v in range(KS0 - 6)]
    G.spread(hooks, early, KS0 * 5 + 1, 82)
    for ks in range(KS0, 17):
        hooks.setdefault((ks + 1) * 5 + 1, []).extend([lk(ks), lv(ks - 6)])
    gemm_pass(2, False, extra_wait={18 + 3: tkv}, after_bar={18 + 3: lambda: set_flag(1, "kv")}, hooks=hooks)
    lk(17)()
    lv(11)()
    tsh = tks_['sh']
    tvv = [tks_['kv']]
    for t in range(5):
        for rho in range(2 if t < 4 else 1):
            A = acc(t, rho)
            for i in range(4):
                a.e(f"v_mul_f32 v{A+i}, 0x{qs:x}, v{A+i}")
            a.e(f"v_cvt_pk_bf16_f32 v{A}, v{A}, v{A+1}")
            a.e(f"v_cvt_pk_bf16_f32 v{A+1}, v{A+2}, v{A+3}")
    a.e(f"s_and_b32 s{S_T0}, s{S_RT0}, 7")
    a.e(f"s_lshl_b32 s{S_T0}, s{S_T0}, 9")
    a.e(f"v_add_u32 v252, s{S_T0}, v{vL8}")
    a.e(f"s_lshl_b32 s{S_T1}, s{S_C}, 14")
    a.e(f"v_add_u32 v253, s{S_T1}, v252")
    a.e(f"v_xor_b32 v254, 512, v253")
    stamp(a, 'i')
    a.wait_lg0()
    a.e("s_barrier")
    for t in range(4):
        for rho in range(2):
            a.e(f"ds_write_b64 v{253 if rho == 0 else 254}, {vr(acc(t,rho),2)} offset:{LQ0 + t*4096}")
    a.e(f"ds_write_b64 v252, {vr(acc(4,0),2)} offset:{LQX}")
    a.e(f"s_mul_i32 s{S_T1}, s{S_C}, 12288")
    a.e(f"v_add_u32 v{vS2}, s{S_T1}, v{vS2}")
    a.wait_vm(tsh)
    for b in range(3):
        a.e(f"ds_write_b64 v{vS1}, {vr(XK+2*b,2)} offset:{LKX + b*4096}")
        a.e(f"ds_write_b128 v{vS2}, {vr(XV+4*b,4)} offset:{LVX + b*4096}")
    a.wait_lg0()
    a.e(f"v_mov_b32 v{vNEG}, 0xf149f2ca")
    a.e(f"v_and_b32 v{vT1}, 15, v{V_LANE}")
    a.e(f"v_lshrrev_b32 v{vT2}, 4, v{V_LANE}")
    a.e(f"v_cmp_eq_u32 {sr(MP,2)}, s{S_P}, v{vT2}")
    a.e(f"v_lshlrev_b32 v{vT2}, 2, v{vT2}")
    for i in range(4):
        a.e(f"v_add_u32 v{vM}, {i}, v{vT2}")
        a.e(f"v_cmp_gt_u32 {sr(M[i],2)}, v{vM}, v{vT1}")
    a.e(f"s_cmp_lt_u32 s{S_P}, 2")
    a.e(f"s_cselect_b64 {sr(MVER,2)}, -1, 0")
    a.e(f"s_bitcmp0_b32 s{S_W}, 0")
    a.e(f"s_cselect_b64 {sr(MQ0,2)}, {sr(MP,2)}, 0")
    a.e(f"s_cselect_b64 {sr(MQ1,2)}, 0, {sr(MP,2)}")
    a.e(f"s_cselect_b64 {sr(MODD,2)}, 0, -1")
    a.e(f"s_lshl_b32 s{S_T0}, s{S_W}, 12")
    a.e(f"v_add_u32 v{vQ}, s{S_T0}, v{vL8}")
    a.e(f"s_mul_i32 s{S_T0}, s{S_C}, 12288")
    a.e(f"s_add_u32 s{S_T0}, s{S_T0}, {LVX}")
    a.e(f"v_add_u32 v{vVX}, s{S_T0}, v{V_L16}")
    S_OA, S_OB = 72, 74
    vO = 252
    a.e(f"s_mul_i32 s{S_T0}, s{S_RB}, {4*36864}")
    a.e(f"s_add_u32 s{S_T0}, s{S_T0}, {G.OF}")
    a.e(f"s_lshl_b32 s{S_T1}, s{S_HG}, 3")
    a.e(f"s_add_u32 s{S_T1}, s{S_T1}, s{S_W}")
    a.e(f"s_lshl_b32 s{S_T1}, s{S_T1}, 10")
    a.e(f"s_add_u32 s{S_OA}, s{S_T1}, s{S_T0}")
    a.e(f"s_add_u32 s{S_T1}, s{S_HG}, 32")
    a.e(f"s_lshl_b32 s{S_T1}, s{S_T1}, 10")
    a.e(f"s_and_b32 s{S_T3}, s{S_W}, 1")
    a.e(f"s_lshl_b32 s{S_T2}, s{S_T3}, 2")
    a.e(f"s_add_u32 s{S_T1}, s{S_T1}, s{S_T2}")
    a.e(f"s_add_u32 s{S_OB}, s{S_T1}, s{S_T0}")
    a.e(f"v_bfe_u32 v{vT2}, v{V_LANE}, 4, 1")
    a.e(f"v_lshlrev_b32 v{vO}, 9, v{vT2}")
    a.e(f"v_lshl_add_u32 v{vO}, v{vT1}, 4, v{vO}")
    a.e(f"v_lshrrev_b32 v{vT2}, 5, v{V_LANE}")
    a.e(f"v_lshl_add_u32 v{vO}, v{vT2}, 3, v{vO}")
    a.wait_lg0()
    a.e("s_barrier")
    for k in range(24):
        a.e(f"ds_read_b64 {vr(KF+4*k+2,2)}, v{vL8} offset:{LKX + k*512}")

    def ld_q(j):
        q = QA + 4 * (j & 1)
        a.e(f"ds_read_b64 {vr(q,2)}, v{vQ} offset:{LQ0 + j*512}")
        return a.e(f"ds_read_b64 {vr(q+2,2)}, v{vL8} offset:{LQX + j*512}")
    ld_q(0)
    a.wait_vm(tvv[-1])
    a.wait_lg0()
    stamp(a, 'k')
    a.e(f"s_cmp_lt_i32 s{S_KT0}, 0")
    a.e("s_cbranch_scc1 L_head_neg")

    def heads(neg):
        sfx = "_neg" if neg else ""
        a.raw(f"L_head{sfx}:")
        a.barrier_hist()
        tq = None
        for j in range(8):
            o = j & 1
            q = QA + 4 * (j & 1)
            if tq is not None:
                a.wait_lg(tq)
            a.e(f"v_cndmask_b32 v{q+2}, 0, v{q+2}, {sr(MQ0,2)}")
            a.e(f"v_cndmask_b32 v{q+3}, 0, v{q+3}, {sr(MQ1,2)}")
            if j < 7:
                tq = ld_q(j + 1)
            if neg:
                for b in range(2):
                    a.e(f"s_cmp_eq_u32 s{SO[b]}, 0x70000000")
                    a.e(f"s_cselect_b32 s{S_T0}, 0xf149f2ca, 0")
                    for i in range(4):
                        a.e(f"v_mov_b32 v{CQ+4*b+i}, s{S_T0}")

            def cin(k, second):
                b = k >> 3
                if neg and b < 2:
                    return vr(CQ + 4 * b, 4)
                return vr(MQ, 4) if second else "0"
            LA = 4

            def tq_(t):
                return TQ + 4 * (t % 8)

            def s1(t):
                a.e(f"v_mfma_f32_16x16x32_bf16 {vr(tq_(t),4)}, {vr(KF+4*(j+t),4)}, {vr(q,4)}, {cin(j+t, False)}")
            for t in range(LA):
                s1(t)
            for t in range(17):
                if t + LA < 17:
                    s1(t + LA)
                r = tq_(t)
                if t == 0:
                    for i in range(4):
                        a.e(f"v_cndmask_b32 v{r+i}, v{vNEG}, v{r+i}, {sr(M[i],2)}")
                    a.e(f"v_max_f32 v{vM}, v{r}, v{r+1}")
                    a.e(f"v_max_f32 v{vT1}, v{r+2}, v{r+3}")
                    continue
                if t == 16:
                    for i in range(4):
                        a.e(f"v_cndmask_b32 v{r+i}, v{r+i}, v{vNEG}, {sr(M[i],2)}")
                a.e(f"v_max3_f32 v{vM}, v{vM}, v{r}, v{r+1}")
                a.e(f"v_max3_f32 v{vT1}, v{vT1}, v{r+2}, v{r+3}")
            tvx = {}

            def ld_vx(u):
                tvx[u] = a.e(f"ds_read_b128 {vr(VXB+4*(u%3),4)}, v{vVX} offset:{((j>>1)+u)*1024}")
            ld_vx(0)
            ld_vx(1)
            a.e(f"v_max_f32 v{vM}, v{vM}, v{vT1}")
            a.e(f"v_mov_b32 v{vT1}, v{vM}")
            a.e(f"v_permlane32_swap_b32 v{vM}, v{vT1}")
            a.e(f"v_max_f32 v{vM}, v{vM}, v{vT1}")
            a.e(f"v_mov_b32 v{vT1}, v{vM}")
            a.e(f"v_permlane16_swap_b32 v{vM}, v{vT1}")
            a.e(f"v_max_f32 v{vM}, v{vM}, v{vT1}")
            for i in range(4):
                a.e(f"v_sub_f32 v{MQ+i}, 0, v{vM}")
            if neg:
                for b in range(2):
                    for i in range(4):
                        a.e(f"v_add_f32 v{CQ+4*b+i}, v{CQ+4*b+i}, v{MQ}")

            def sq(sl):
                return TQ + 4 * (sl % 8)

            def s2m(sl):
                t = sl - o
                if 0 <= t <= 16:
                    return [f"v_mfma_f32_16x16x32_bf16 {vr(sq(sl),4)}, {vr(KF+4*(j+t),4)}, {vr(q,4)}, {cin(j+t, True)}"]
                return []

            def pvm(u):
                vs = (j >> 1) + u
                return [f"v_mfma_f32_16x16x32_bf16 {vr(O0,4)}, {vr(VF+4*vs,4)}, {vr(sq(2*u),4)}, {vr(O0,4) if u else '0'}",
                        f"v_mfma_f32_16x16x32_bf16 {vr(OX,4)}, {vr(VXB+4*(u%3),4)}, {vr(sq(2*u),4)}, {vr(OX,4) if u else '0'}"]
            for sl in range(4):
                for m_ in s2m(sl):
                    a.e(m_)
            for u in range(9):
                mm = (pvm(u - 1) if u else []) + (s2m(2 * u + 4) + s2m(2 * u + 5) if u + 2 < 9 else [])
                if u:
                    a.wait_lg(tvx[u - 1])
                vv = []
                for h in range(2):
                    sl = 2 * u + h
                    t = sl - o
                    if not 0 <= t <= 16:
                        continue
                    r = sq(sl)
                    if t == 0:
                        vv += [f"v_cndmask_b32 v{r+i}, v{vNEG}, v{r+i}, {sr(M[i],2)}" for i in range(4)]
                    if t == 16:
                        vv += [f"v_cndmask_b32 v{r+i}, v{r+i}, v{vNEG}, {sr(M[i],2)}" for i in range(4)]
                    vv += [f"v_exp_f32 v{r+i}, v{r+i}" for i in range(4)]
                for h in range(2):
                    sl = 2 * u + h
                    t = sl - o
                    for k2 in range(2):
                        d = sq(2 * u) + 2 * h + k2
                        vv.append(f"v_cvt_pk_bf16_f32 v{d}, v{sq(sl)+2*k2}, v{sq(sl)+2*k2+1}" if 0 <= t <= 16 else f"v_mov_b32 v{d}, 0")
                step = max(1, len(vv) // max(1, len(mm)))
                for k_, v_ in enumerate(vv):
                    if mm and k_ % step == 0:
                        a.e(mm.pop(0))
                    a.e(v_)
                for m_ in mm:
                    a.e(m_)
                if u + 2 < 9:
                    ld_vx(u + 2)
            a.wait_lg(tvx[8])
            for m_ in pvm(8):
                a.e(m_)
            a.e(f"v_mov_b32 v{vT1}, v{OX}")
            a.e(f"v_mov_b32 v{vT2}, v{OX}")
            a.e(f"v_permlane32_swap_b32 v{vT1}, v{vT2}")
            a.e(f"v_cndmask_b32 v{vT1}, v{vT1}, v{vT2}, {sr(MVER,2)}")
            a.e(f"v_rcp_f32 v{vT1}, v{vT1}")
            a.e(f"v_cndmask_b32 v{OX}, v{OX}, v{OX+2}, {sr(MODD,2)}")
            a.e(f"v_cndmask_b32 v{OX+1}, v{OX+1}, v{OX+3}, {sr(MODD,2)}")
            for i in range(4):
                a.e(f"v_mul_f32 v{O0+i}, v{O0+i}, v{vT1}")
            a.e(f"v_mul_f32 v{OX}, v{OX}, v{vT1}")
            a.e(f"v_mul_f32 v{OX+1}, v{OX+1}, v{vT1}")
            a.e(f"v_cvt_pk_bf16_f32 v{vOA}, v{O0}, v{O0+1}")
            a.e(f"v_cvt_pk_bf16_f32 v{vOB}, v{O0+2}, v{O0+3}")
            a.e(f"v_cvt_pk_bf16_f32 v{vT2}, v{OX}, v{OX+1}")
            a.e(f"s_add_u32 s{S_T1}, s{S_OA}, {(j>>1)*36864 + (j&1)*256}")
            a.e(f"buffer_store_dwordx2 {vr(vOA,2)}, v{vO}, {sr(R_WS,4)}, s{S_T1} offen sc1")
            a.e(f"s_add_u32 s{S_T1}, s{S_OB}, {(j>>1)*36864 + (j&1)*256}")
            a.e(f"s_mov_b64 exec, {sr(MP,2)}")
            a.e(f"buffer_store_dword v{vT2}, v{vO}, {sr(R_WS,4)}, s{S_T1} offen sc1")
            a.e("s_mov_b64 exec, -1")
        if not neg:
            a.e("s_branch L_att_done")
    heads(False)
    heads(True)
    ool = []
    a.raw("L_att_done:")
    a.barrier_hist()
    stamp(a, 'j')
    a.wait_all()
    a.e("s_barrier")
    stamp(a, 'l')
    set_flag(2, "o")
    if G.STAMP:
        a.e("s_barrier")
    stamp(a, 'h')
    G.stamp_out(a)
    a.e("s_endpgm")
    for t_ in ool:
        a.raw(t_)
```

```python
import sys
from asmlib import Asm, vr, sr

HS = 0x0000000
PART = 0x1200000
PSZ = 2359296
QF = 0x3000000
K0 = 0x3400000
V0 = 0x3600000
KX = 0x3800000
VX = 0x3840000
OF = 0x3900000
FLG = 0x3E00000
WS_SZ = 0x4000000
XBASE = 16384
LDS_SZ = 163840
LOG2E = 0x3FB8AA3B
NLOG2E = 0xBFB8AA3B

S_X, S_WQKV, S_WO, S_BX, S_WG, S_WU, S_WD, S_OUT, S_DBG, S_WS = 4, 6, 8, 10, 12, 14, 16, 18, 20, 22
R_X, R_W1, R_W2, R_WS, R_DBG, R_A, R_B = 24, 28, 32, 36, 40, 44, 48
S_W, S_R, S_C, S_RB, S_SPLIT, S_T0, S_T1, S_T2, S_T3 = 52, 53, 54, 55, 56, 57, 58, 59, 60
S_WLDS, S_W1B, S_W2B, S_H0, S_H1, S_P0, S_P1, S_NL2E, S_XREG, S_XPAR = 61, 62, 63, 64, 65, 66, 67, 68, 69, 70
S_HG = S_SPLIT

V_LANE, V_L16, V_D1, V_D2 = 1, 2, 3, 4
V_RD = 5
V_T = 11
FR = 16
NFR = int(__import__("os").environ.get("NFR", "6"))
PD = NFR - 2
ACC = 40
XN = 104


def X(rho, s):
    return XN + (rho * 18 + s) * 4


def X32(s):
    return XN + s * 4


import os
STAMP = int(os.environ.get("STAMP", "0"))
def FLAG(n):
    return int(os.environ.get(n, "0"))
_nst = [0]
STSEL = os.environ.get("STSEL", "a,b,f,g,h").split(",")
def stamp(a, name="a"):
    if not STAMP or name not in STSEL:
        return
    k = _nst[0]; _nst[0] += 1
    a.e(f"s_memtime s[{76+4*k}:{77+4*k}]")
    a.e(f"s_memrealtime s[{78+4*k}:{79+4*k}]")
    a.wait_lg0()

def stamp_out(a):
    if not STAMP:
        return
    n = _nst[0]; _nst[0] = 0
    a.e(f"s_lshl_b32 s{S_T0}, s2, 6")
    a.e(f"s_add_u32 s{S_T0}, s{S_T0}, 0x3F00000")
    a.e(f"v_mov_b32 v20, 0")
    a.e(f"s_cmp_eq_u32 s{S_W}, {os.environ.get('STW', '0')}")
    a.e(f"s_cbranch_scc0 L_nostamp{id(a)}_{a.nins}")
    lab = a.out[-1].split()[-1]
    for k in range(n):
        a.e(f"v_mov_b32 v16, s{76+4*k}")
        a.e(f"v_mov_b32 v17, s{78+4*k}")
        a.e(f"buffer_store_dwordx2 v[16:17], v20, {sr(R_WS,4)}, s{S_T0} offen offset:{8*k}")
        a.e("s_nop 2")
    a.label(lab)


def srd(a, d, base, nbytes):
    a.e(f"s_mov_b32 s{d}, s{base}")
    a.e(f"s_mov_b32 s{d+1}, s{base+1}")
    a.e(f"s_mov_b32 s{d+2}, {nbytes}")
    a.e(f"s_mov_b32 s{d+3}, 0x20000")


def bf16_round(a, v, tmp=None):
    a.e(f"v_cvt_pk_bf16_f32 v{v}, v{v}, v{v}")
    a.e(f"v_lshlrev_b32 v{v}, 16, v{v}")


def x_stage_issue(a):
    t0, t1, t2 = V_T, V_T + 1, V_T + 2
    a.e(f"v_lshrrev_b32 v{t0}, 3, v{V_LANE}")
    a.e(f"v_and_b32 v{t1}, 7, v{V_LANE}")
    a.e(f"v_lshrrev_b32 v{t2}, 1, v{t0}")
    a.e(f"v_xor_b32 v{t1}, v{t1}, v{t2}")
    a.e(f"v_mul_u32_u24 v{t0}, 1152, v{t0}")
    a.e(f"v_lshl_add_u32 v{t2}, v{t1}, 4, v{t0}")
    a.e(f"v_xor_b32 v{t1}, 4, v{t1}")
    a.e(f"v_lshl_add_u32 v{t1}, v{t1}, 4, v{t0}")
    a.e(f"v_add_u32 v{t1}, {8*1152-1024}, v{t1}")
    a.e(f"s_lshl_b32 s{S_T0}, s{S_RB}, 7")
    a.e(f"s_lshl_b32 s{S_T1}, s{S_R}, 5")
    a.e(f"s_add_u32 s{S_T0}, s{S_T0}, s{S_T1}")
    a.e(f"s_lshl_b32 s{S_T1}, s{S_C}, 4")
    a.e(f"s_add_u32 s{S_T0}, s{S_T0}, s{S_T1}")
    a.e(f"s_mul_i32 s{S_T0}, s{S_T0}, 1152")
    a.e(f"s_lshl_b32 s{S_T1}, s{S_R}, 1")
    a.e(f"s_add_u32 s{S_T2}, s{S_T1}, s{S_C}")
    a.e(f"s_mul_i32 s{S_XREG}, s{S_T2}, 18432")
    a.e(f"s_add_u32 s{S_XREG}, s{S_XREG}, {XBASE}")
    a.e(f"s_xor_b32 s{S_T2}, s{S_T2}, 1")
    a.e(f"s_mul_i32 s{S_XPAR}, s{S_T2}, 18432")
    a.e(f"s_add_u32 s{S_XPAR}, s{S_XPAR}, {XBASE}")
    tk = None
    a.e(f"s_lshr_b32 s{S_T2}, s2, 6")
    a.e(f"s_lshl_b32 s{S_T2}, s{S_T2}, {1 + 7}")
    for cb in range(9):
        a.e(f"s_lshl_b32 s{S_T3}, s{S_T2}, 4")
        a.e(f"s_add_u32 m0, s{S_XREG}, s{S_T3}")
        a.e(f"s_add_u32 s{S_T1}, s{S_T0}, s{S_T2}")
        a.e(f"buffer_load_dwordx4 v{t2}, {sr(R_X,4)}, s{S_T1} offen lds")
        tk = a.e(f"buffer_load_dwordx4 v{t1}, {sr(R_X,4)}, s{S_T1} offen offset:1024 lds")
        if cb < 8:
            a.e(f"s_add_u32 s{S_T2}, s{S_T2}, 128")
            a.e(f"s_cmp_eq_u32 s{S_T2}, 1152")
            a.e(f"s_cselect_b32 s{S_T2}, 0, s{S_T2}")
    return tk


def init_issue(a, vaddr, vtmp):
    return a.e(f"buffer_load_dword v{vtmp}, v{vaddr}, {sr(R_DBG,4)}, 0 offen sc1")


def init_check(a, name, vaddr, vtmp, tk):
    a.wait_vm(tk)
    a.e(f"v_cmp_eq_u32 vcc, 0, v{vtmp}")
    a.e(f"s_cbranch_vccz L_ic_{name}_x")
    a.e(f"s_mov_b32 s{S_T2}, 0")
    a.raw(f"L_ic_{name}:")
    a.e_untracked(f"buffer_load_dword v{vtmp}, v{vaddr}, {sr(R_DBG,4)}, 0 offen sc1")
    a.e(f"s_add_u32 s{S_T2}, s{S_T2}, 1")
    a.e(f"s_cmp_gt_u32 s{S_T2}, 0x40000")
    a.e(f"s_cbranch_scc1 L_ic_{name}_x")
    a.e("s_waitcnt vmcnt(0)")
    a.e(f"v_cmp_eq_u32 vcc, 0, v{vtmp}")
    a.e(f"s_cbranch_vccnz L_ic_{name}")
    a.raw(f"L_ic_{name}_x:")


def layernorm(a, xtk, after_x=None, m32=False):
    T = ACC
    m, q = T, T + 1
    a.e(f"v_and_b32 v{m}, 15, v{V_LANE}")
    a.e(f"v_lshrrev_b32 v{q}, 4, v{V_LANE}")
    b = T + 2
    a.e(f"v_and_b32 v{b}, 1, v{q}")
    a.e(f"v_lshlrev_b32 v{b}, 3, v{b}")
    a.e(f"v_lshl_add_u32 v{b}, v{m}, 7, v{b}")
    a.e(f"v_add_u32 v{b}, s{S_XREG}, v{b}")
    sw = T + 3
    a.e(f"v_lshrrev_b32 v{sw}, 1, v{m}")
    if m32:
        a.e(f"v_and_b32 v{T+4}, 2, v{q}")
    else:
        a.e(f"v_lshrrev_b32 v{T+4}, 1, v{q}")
    a.e(f"v_xor_b32 v{sw}, v{sw}, v{T+4}")
    ad = T + 8
    for k in range(4):
        a.e(f"v_xor_b32 v{T+4}, {(4*(k>>1) + (k&1)) if m32 else 2*k}, v{sw}")
        a.e(f"v_lshl_add_u32 v{ad+k}, v{T+4}, 4, v{b}")
    ones = T + 12
    for k in range(4):
        a.e(f"v_mov_b32 v{ones+k}, 0x3f803f80")
    a.wait_vm(xtk)
    stamp(a, 'b')
    s1, s2 = T + 16, T + 20
    tks = []
    for s in range(18):
        for j in range(2):
            tk = a.e(f"ds_read_b64 {vr(X(0,s)+2*j,2)}, v{ad+2*(s&1)+j} offset:{(s>>1)*2048}")
        tks.append(tk)
        if s >= 4:
            ss = s - 4
            a.wait_lg(tks[ss])
            a.e(f"v_mfma_f32_16x16x32_bf16 {vr(s1,4)}, {vr(ones,4)}, {vr(X(0,ss),4)}, {vr(s1,4) if ss else '0'}")
            a.e(f"v_mfma_f32_16x16x32_bf16 {vr(s2,4)}, {vr(X(0,ss),4)}, {vr(X(0,ss),4)}, {vr(s2,4) if ss else '0'}")
    for ss in range(14, 18):
        a.wait_lg(tks[ss])
        a.e(f"v_mfma_f32_16x16x32_bf16 {vr(s1,4)}, {vr(ones,4)}, {vr(X(0,ss),4)}, {vr(s1,4)}")
        a.e(f"v_mfma_f32_16x16x32_bf16 {vr(s2,4)}, {vr(X(0,ss),4)}, {vr(X(0,ss),4)}, {vr(s2,4)}")
    t = T + 4
    a.e(f"v_and_b32 v{t}, 3, v{m}")
    a.e(f"v_cmp_eq_u32 vcc, 1, v{t}")
    a.e(f"v_cndmask_b32 v{s2}, v{s2}, v{s2+1}, vcc")
    a.e(f"v_cmp_eq_u32 vcc, 2, v{t}")
    a.e(f"v_cndmask_b32 v{s2}, v{s2}, v{s2+2}, vcc")
    a.e(f"v_cmp_eq_u32 vcc, 3, v{t}")
    a.e(f"v_cndmask_b32 v{s2}, v{s2}, v{s2+3}, vcc")
    a.e(f"v_lshrrev_b32 v{t}, 2, v{m}")
    a.e(f"v_lshl_add_u32 v{t}, v{t}, 4, v{m}")
    a.e(f"v_lshlrev_b32 v{t}, 2, v{t}")
    tk = a.e(f"ds_bpermute_b32 v{s2}, v{t}, v{s2}")
    inv = 0x3AE38E39
    a.e(f"v_mul_f32 v{s1}, 0x{inv:x}, v{s1}")
    a.wait_lg(tk)
    a.e(f"v_mul_f32 v{s2}, 0x{inv:x}, v{s2}")
    a.e(f"v_fma_f32 v{s2}, -v{s1}, v{s1}, v{s2}")
    a.e(f"v_max_f32 v{s2}, 0, v{s2}")
    bf16_round(a, s2)
    a.e(f"v_add_f32 v{s2}, 0x3727c5ac, v{s2}")
    bf16_round(a, s2)
    a.e(f"v_sqrt_f32 v{s2}, v{s2}")
    bf16_round(a, s2)
    a.e(f"v_rcp_f32 v{s2}, v{s2}")
    bf16_round(a, s1)
    a.e(f"v_mul_f32 v{s1}, v{s1}, v{s2}")
    a.e(f"v_sub_f32 v{s1}, 0, v{s1}")
    stamp(a, 'c')
    wa = T + 5
    a.e(f"v_add_u32 v{wa}, s{S_XREG}, v{V_L16}")
    tmp = T + 24
    for s in range(18):
        for k in range(4):
            xr = X(0, s) + k
            lo = tmp + 2 * k
            a.e(f"v_lshlrev_b32 v{lo}, 16, v{xr}")
            a.e(f"v_and_b32 v{lo+1}, 0xffff0000, v{xr}")
        for k in range(4):
            lo = tmp + 2 * k
            a.e(f"v_fma_f32 v{lo}, v{lo}, v{s2}, v{s1}")
            a.e(f"v_fma_f32 v{lo+1}, v{lo+1}, v{s2}, v{s1}")
        for k in range(4):
            lo = tmp + 2 * k
            a.e(f"v_cvt_pk_bf16_f32 v{X(0,s)+k}, v{lo}, v{lo+1}")
        a.e(f"ds_write_b128 v{wa}, {vr(X(0,s),4)} offset:{s*1024}")
    if m32:
        a.e(f"s_min_u32 s{S_T0}, s{S_XREG}, s{S_XPAR}")
        a.e(f"v_bfe_u32 v{T+4}, v{V_LANE}, 4, 1")
        a.e(f"v_mul_u32_u24 v{wa}, 18432, v{T+4}")
        a.e(f"v_lshrrev_b32 v{T+4}, 5, v{V_LANE}")
        a.e(f"v_lshl_add_u32 v{wa}, v{T+4}, 8, v{wa}")
        a.e(f"v_lshl_add_u32 v{wa}, v{m}, 4, v{wa}")
        a.e(f"v_add_u32 v{wa}, s{S_T0}, v{wa}")
    else:
        a.e(f"v_add_u32 v{wa}, s{S_XPAR}, v{V_L16}")
    a.wait_lg0()
    stamp(a, 'd')
    a.e("s_barrier")
    stamp(a, 'e')
    if after_x:
        after_x()
    if m32:
        for s in range(36):
            a.e(f"ds_read_b128 {vr(X32(s),4)}, v{wa} offset:{s*512}")
    else:
        for s in range(18):
            a.e(f"ds_read_b128 {vr(X(1,s),4)}, v{wa} offset:{s*1024}")
    a.wait_lg0()
    a.e("s_barrier")


def run_stream(a, frags, fill, on_stage, wrap=False, prime=True, tick=None, base=0):
    N = len(frags)
    assert (not wrap) or N % NFR == 0
    if tick is None:
        tick = {}

    def rd(m, j):
        f = frags[m % N]
        if j == 0 and f.get("first"):
            on_stage(f["stage"] + (1000 if m >= N else 0))
        r = FR + 4 * (m % NFR)
        vb, imm = f["rd"][j]
        if FLAG("NORD") and not prime:
            tick[m] = a.lg
            return
        tick[m] = a.e(f"ds_read_b64_tr_b16 {vr(r+2*j,2)}, v{vb} offset:{imm}")

    if prime:
        for m in range(min(PD, N)):
            rd(m, 0)
            rd(m, 1)
        if wrap:
            return tick
    for n in range(N):
        f = frags[n]
        r = FR + 4 * (n % NFR)
        fl = list(fill.get(n, []))
        nm = len(f["mf"])
        for c in f.get("pre", []):
            c()
        a.wait_lg(tick[n])
        for k, mf in enumerate(f["mf"]):
            a.e(mf(r))
            if n + PD < N or wrap:
                if nm == 1:
                    rd(n + PD, 0)
                    rd(n + PD, 1)
                elif k < 2:
                    rd(n + PD, k)
            cnt = (len(fl) + (nm - k) - 1) // (nm - k)
            for c in fl[:cnt]:
                c()
            fl = fl[cnt:]
    if wrap:
        return {m: tick[N + m] for m in range(PD)}
    return tick


def loop(a, label, body, niter_sgpr_dec):
    a.raw(label + ":")
    n0 = len(a.out)
    body()
    niter_sgpr_dec(label)
    t1 = a.out[n0:]
    n1 = len(a.out)
    body()
    niter_sgpr_dec(label)
    t2 = a.out[n1:]
    if t1 != t2:
        for x, y in zip(t1, t2):
            if x != y:
                sys.stderr.write(f"LOOP MISMATCH {label}: {x!r} vs {y!r}\n")
        assert len(t1) == len(t2), "loop body length mismatch"
        import re
        for k, (x, y) in enumerate(zip(t1, t2)):
            if x != y:
                mx, my = re.match(r"\s*s_waitcnt (vm|lgkm)cnt\((\d+)\)", x), re.match(r"\s*s_waitcnt (vm|lgkm)cnt\((\d+)\)", y)
                assert mx and my and mx.group(1) == my.group(1), (x, y)
                t1[k] = x if int(mx.group(2)) <= int(my.group(2)) else y
        a.out[n0:n1] = t1
    del a.out[n1:]


V_FW, V_FR, V_FV, V_FT = 248, 249, 252, 253
FLAGS = 147456


class Sync:
    def __init__(self, a, tag):
        self.a, self.tag, self.slow, self.tk, self.n = a, tag, {}, None, 0

    def setup(self):
        a = self.a
        a.e(f"s_lshl_b32 s{S_T0}, s{S_W}, 8")
        a.e(f"s_add_u32 s{S_T0}, s{S_T0}, {FLAGS+64}")
        a.e(f"v_lshlrev_b32 v{V_FW}, 2, v{V_LANE}")
        a.e(f"v_add_u32 v{V_FW}, s{S_T0}, v{V_FW}")
        a.e(f"s_lshl_b32 s{S_T0}, s{S_W}, 2")
        a.e(f"s_add_u32 s{S_T0}, s{S_T0}, {FLAGS}")
        a.e(f"v_mov_b32 v{V_FT}, s{S_T0}")
        a.e(f"v_cmp_eq_u32 vcc, 0, v{V_LANE}")
        a.e(f"v_cndmask_b32 v{V_FW}, v{V_FW}, v{V_FT}, vcc")
        a.e(f"v_and_b32 v{V_FR}, 7, v{V_LANE}")
        a.e(f"v_lshlrev_b32 v{V_FR}, 2, v{V_FR}")
        a.e(f"v_add_u32 v{V_FR}, {FLAGS}, v{V_FR}")
        a.e(f"v_mov_b32 v{V_FV}, 0")
        a.e(f"ds_write_b32 v{V_FW}, v{V_FV}")

    def arrive(self, tk):
        a = self.a
        a.e(f"v_add_u32 v{V_FV}, 1, v{V_FV}")
        a.wait_vm(tk)
        a.e(f"ds_write_b32 v{V_FW}, v{V_FV}")

    def read(self):
        self.tk = self.a.e(f"ds_read_b32 v{V_FT}, v{V_FR}")

    def check(self, name):
        a = self.a
        if FLAG("NOBAR"):
            return
        a.wait_lg(self.tk)
        a.e(f"v_cmp_lt_u32 vcc, v{V_FT}, v{V_FV}")
        a.e(f"s_cbranch_vccnz L_slow_{self.tag}_{name}")
        a.raw(f"L_back_{self.tag}_{name}:")
        self.slow[name] = 1

    def emit_slow(self):
        a = self.a
        for name in self.slow:
            a.raw(f"L_slow_{self.tag}_{name}:")
            a.raw(f"    ds_read_b32 v{V_FT}, v{V_FR}")
            a.raw(f"    s_waitcnt lgkmcnt(0)")
            a.raw(f"    v_cmp_lt_u32 vcc, v{V_FT}, v{V_FV}")
            a.raw(f"    s_cbranch_vccnz L_slow_{self.tag}_{name}")
            a.raw(f"    s_branch L_back_{self.tag}_{name}")


def spread(fill, items, n0, n1):
    L = len(items)
    span = n1 - n0
    for i, it in enumerate(items):
        n = n0 + (i * span) // L
        fill.setdefault(n, []).append(it)


def rd_bases(a):
    t0, t1, t2 = V_T, V_T + 1, V_T + 2
    a.e(f"v_lshrrev_b32 v{t0}, 4, v{V_LANE}")
    a.e(f"v_lshrrev_b32 v{t1}, 1, v{t0}")
    a.e(f"v_lshlrev_b32 v{t1}, 10, v{t1}")
    a.e(f"v_and_b32 v{t0}, 1, v{t0}")
    a.e(f"v_lshl_add_u32 v{t1}, v{t0}, 8, v{t1}")
    a.e(f"v_lshl_add_u32 v{t1}, v{t0}, 5, v{t1}")
    a.e(f"v_bfe_u32 v{t2}, v{V_LANE}, 2, 2")
    a.e(f"v_lshl_add_u32 v{t1}, v{t2}, 6, v{t1}")
    a.e(f"v_and_b32 v{t2}, 3, v{V_LANE}")
    a.e(f"v_lshl_add_u32 v{t1}, v{t2}, 3, v{t1}")
    a.e(f"s_lshl_b32 s{S_T0}, s{S_C}, 9")
    a.e(f"v_add_u32 v{V_RD}, s{S_T0}, v{t1}")
    a.e(f"v_xor_b32 v{V_RD+3}, 32, v{V_RD}")
    for k in (1, 2):
        a.e(f"v_add_u32 v{V_RD+k}, {49152*k}, v{V_RD}")
        a.e(f"v_add_u32 v{V_RD+3+k}, {49152*k}, v{V_RD+3}")


def rd_bases32(a):
    t1, t2 = V_T + 1, V_T + 2
    a.e(f"v_lshrrev_b32 v{t1}, 5, v{V_LANE}")
    a.e(f"v_lshlrev_b32 v{t1}, 8, v{t1}")
    a.e(f"v_bfe_u32 v{t2}, v{V_LANE}, 2, 2")
    a.e(f"v_lshl_add_u32 v{t1}, v{t2}, 6, v{t1}")
    a.e(f"v_bfe_u32 v{t2}, v{V_LANE}, 4, 1")
    a.e(f"v_lshl_add_u32 v{t1}, v{t2}, 5, v{t1}")
    a.e(f"v_and_b32 v{t2}, 3, v{V_LANE}")
    a.e(f"v_lshl_add_u32 v{t1}, v{t2}, 3, v{t1}")
    a.e(f"s_lshl_b32 s{S_T0}, s{S_C}, 9")
    a.e(f"v_add_u32 v{V_RD}, s{S_T0}, v{t1}")
    for k in (1, 2):
        a.e(f"v_add_u32 v{V_RD+k}, {49152*k}, v{V_RD}")


def mlp(a):
    KPS = int(os.environ.get("KPS", "2"))
    NS = 18 // KPS
    SB = KPS * 8192
    FPS = KPS * 4
    USEBAR = os.environ.get("SYNC", "bar") == "bar"
    SL = int(os.environ.get("SLACK", str(FPS - 4)))
    t0, t1, t2 = V_T + 3, V_T + 4, ACC
    a.e(f"s_cmp_lt_u32 s{S_W}, 4")
    a.e(f"s_cselect_b32 s{R_W1}, s{S_WG}, s{S_WU}")
    a.e(f"s_cselect_b32 s{R_W1+1}, s{S_WG+1}, s{S_WU+1}")
    a.e(f"s_mov_b32 s{R_W1+2}, 5308416")
    a.e(f"s_mov_b32 s{R_W1+3}, 0x20000")
    srd(a, R_W2, S_WD, 5308416)
    stamp(a)
    xtk = x_stage_issue(a)
    a.e(f"v_bfe_u32 v{t0}, v{V_LANE}, 2, 3")
    a.e(f"v_and_b32 v{t1}, 3, v{V_LANE}")
    a.e(f"v_lshrrev_b32 v{t2}, 5, v{V_LANE}")
    a.e(f"v_lshlrev_b32 v{t2}, 6, v{t2}")
    a.e(f"v_lshl_add_u32 v{t1}, v{t1}, 4, v{t2}")
    a.e(f"v_mul_u32_u24 v{V_D1}, 9216, v{t0}")
    a.e(f"v_add_u32 v{V_D1}, v{V_D1}, v{t1}")
    a.e(f"v_mul_u32_u24 v{V_D2}, 1152, v{t0}")
    a.e(f"v_add_u32 v{V_D2}, v{V_D2}, v{t1}")
    a.e(f"s_lshl_b32 s{S_WLDS}, s{S_W}, 10")
    a.e(f"s_mul_i32 s{S_T0}, s{S_SPLIT}, 384")
    a.e(f"s_mul_i32 s{S_W1B}, s{S_R}, {8*9216}")
    a.e(f"s_lshl_b32 s{S_T1}, s{S_T0}, 1")
    a.e(f"s_add_u32 s{S_W1B}, s{S_W1B}, s{S_T1}")
    a.e(f"s_lshl_b32 s{S_T1}, s{S_W}, 3")
    a.e(f"s_add_u32 s{S_T1}, s{S_T1}, s{S_T0}")
    a.e(f"s_mul_i32 s{S_W2B}, s{S_T1}, 1152")
    V_PF, V_PF2 = 8, 9
    S_PFO, S_PFS = S_H1, 98
    R_PF = R_B
    p0, p1 = FR, FR + 1
    a.e(f"s_and_b32 s{S_T0}, s{S_RB}, 7")
    a.e(f"s_lshl_b32 s{S_T1}, s{S_T0}, 2")
    a.e(f"s_add_u32 s{S_T1}, s{S_T1}, s{S_R}")
    a.e(f"s_mul_i32 s{S_T1}, s{S_T1}, 18")
    a.e(f"v_add_u32 v{p0}, s{S_T1}, v{V_LANE}")
    a.e(f"v_mul_u32_u24 v{p0}, 9216, v{p0}")
    a.e(f"v_cmp_gt_u32 vcc, 18, v{V_LANE}")
    a.e(f"v_cndmask_b32 v{V_PF}, -1, v{p0}, vcc")
    a.e(f"v_mul_u32_u24 v{p0}, 86, v{V_LANE}")
    a.e(f"v_lshrrev_b32 v{p0}, 8, v{p0}")
    a.e(f"v_mul_u32_u24 v{p1}, 3, v{p0}")
    a.e(f"v_sub_u32 v{p1}, v{V_LANE}, v{p1}")
    a.e(f"s_lshl_b32 s{S_T1}, s{S_T0}, 3")
    a.e(f"s_add_u32 s{S_T1}, s{S_T1}, s{S_W}")
    a.e(f"s_mul_i32 s{S_T1}, s{S_T1}, 6")
    a.e(f"v_add_u32 v{p0}, s{S_T1}, v{p0}")
    a.e(f"v_mul_u32_u24 v{p0}, 1152, v{p0}")
    a.e(f"v_lshl_add_u32 v{p0}, v{p1}, 7, v{p0}")
    a.e(f"v_cndmask_b32 v{V_PF2}, -1, v{p0}, vcc")
    for k in range(4):
        a.e(f"s_mov_b32 s{R_PF+k}, s{R_W1+k}")
    a.e(f"s_mul_i32 s{S_PFO}, s{S_SPLIT}, 768")
    a.e(f"s_mov_b32 s{S_PFS}, 128")

    def pf():
        a.e(f"buffer_load_dword v0, v{V_PF}, {sr(R_PF,4)}, s{S_PFO} offen")
        if FLAG("PF64"):
            a.e(f"buffer_load_dword v0, v{V_PF}, {sr(R_PF,4)}, s{S_PFO} offen offset:64")
        a.e(f"s_add_u32 s{S_PFO}, s{S_PFO}, s{S_PFS}")

    dtk = {}

    def dma_raw(g, i, voff, srd_, soff, mid=None):
        if FLAG("NODMA") and a.always:
            dtk[g % NS] = a.vm
            return
        a.e(f"s_add_u32 m0, s{S_WLDS}, {(g % NS) * SB + i*8192}")
        if mid:
            a.e(mid)
        dtk[g % NS] = a.e(f"buffer_load_dwordx4 v{voff}, {sr(srd_,4)}, s{soff} offen lds")

    def dma_p0(d):
        dma_raw(d // KPS, d % KPS, V_D1, R_W1, S_T3, f"s_add_u32 s{S_T3}, s{S_W1B}, {d*294912}")

    dma_p0(0)
    dma_p0(1)
    for _ in range(int(os.environ.get("PFD", "2")) - 1):
        pf()
    rd_bases32(a)
    a.e(f"s_lshl_b32 s{S_T0}, s{S_SPLIT}, 4")
    a.e(f"s_add_u32 s{S_T0}, s{S_T0}, s{S_RB}")
    a.e(f"s_mul_i32 s{S_T0}, s{S_T0}, 98304")
    a.e(f"s_lshl_b32 s{S_T2}, s{S_R}, 10")
    a.e(f"s_add_u32 s{S_H0}, s{S_T0}, s{S_T2}")
    a.e(f"s_mul_i32 s{S_T0}, s{S_SPLIT}, {PSZ}")
    a.e(f"s_mul_i32 s{S_T3}, s{S_RB}, {9*16384}")
    a.e(f"s_add_u32 s{S_T0}, s{S_T0}, s{S_T3}")
    a.e(f"s_lshl_b32 s{S_T3}, s{S_C}, 13")
    a.e(f"s_add_u32 s{S_T0}, s{S_T0}, s{S_T3}")
    a.e(f"s_add_u32 s{S_T0}, s{S_T0}, {PART}")
    a.e(f"s_lshl_b32 s{S_T2}, s{S_R}, 11")
    a.e(f"s_add_u32 s{S_P0}, s{S_T0}, s{S_T2}")
    a.e(f"s_mov_b32 s{S_NL2E}, 0x{NLOG2E:x}")
    itk = []

    def after_x():
        a.e(f"s_lshl_b32 s{S_T0}, s{S_RB}, 2")
        a.e(f"v_mov_b32 v{V_T+2}, s{S_T0}")
        itk.append(init_issue(a, V_T + 2, V_T + 3))
        pf()
    layernorm(a, xtk, m32=True, after_x=after_x)
    stamp(a, 'f')
    for d in range(2, (NS - 2) * KPS):
        dma_p0(d)
    init_check(a, "m", V_T + 2, V_T + 3, itk[0])
    V_DN = V_T + 4
    VEX = V_T
    S_IT, S_CUR, S_PTR, S_STEP, S_ADJ, S_HST = 71, 72, 73, 74, 75, S_XREG
    R_N = R_A
    a.e(f"s_mov_b32 s{S_IT}, 0")
    a.e(f"s_mov_b32 s{S_CUR}, s{S_W1B}")
    a.e(f"s_mov_b32 s{S_STEP}, 294912")
    a.e(f"s_mov_b32 s{S_ADJ}, 294912")
    for k in range(4):
        a.e(f"s_mov_b32 s{R_N+k}, s{R_W1+k}")
    a.e(f"v_mov_b32 v{V_DN}, v{V_D1}")
    a.e(f"s_mov_b32 s{S_HST}, 0x70000000")
    sy = Sync(a, "m")
    if not USEBAR:
        sy.setup()

    def addr(A):
        k = A // 49152
        return [(V_RD + k, A - 49152 * k), (V_RD + k, A - 49152 * k + 1024)]

    def acc1(st, mat):
        return ACC + st * 32 + mat * 16

    def mk(acc, b, first):
        return lambda r: f"v_mfma_f32_32x32x16_bf16 {vr(acc,16)}, {vr(r,4)}, {vr(b,4)}, {'0' if first else vr(acc,16)}"

    def E(text):
        return lambda: a.e(text)

    def copy_items(mat):
        A_, E_ = acc1(0, mat), acc1(1, mat)
        return [E(f"v_mul_f32 v{E_+i}, s{S_NL2E}, v{A_+i}") if mat == 0 else E(f"v_mov_b32 v{E_+i}, v{A_+i}") for i in range(16)]

    hst = {}

    def epi1(last):
        items = []
        G0, U0 = acc1(1, 0), acc1(1, 1)
        for u in range(2):
            for h in range(2):
                G, U = G0 + 8 * u + 4 * h, U0 + 8 * u + 4 * h
                items += [E(f"v_exp_f32 v{G+i}, v{G+i}") for i in range(4)]
                items += [E(f"v_add_f32 v{G+i}, 1.0, v{G+i}") for i in range(4)]
                items += [E(f"v_rcp_f32 v{G+i}, v{G+i}") for i in range(4)]
                items += [E(f"v_mul_f32 v{U+i}, v{U+i}, v{G+i}") for i in range(4)]
            D, U = G0 + 8 * u, U0 + 8 * u
            items += [E(f"v_cvt_pk_bf16_f32 v{D+k}, v{U+2*k}, v{U+2*k+1}") for k in range(4)]
            if not last:
                def st(u=u, D=D):
                    a.e(f"s_add_u32 s{S_T0}, s{S_HST}, {u*4096}")
                    hst[0] = a.e(f"buffer_store_dwordx4 {vr(D,4)}, v{V_L16}, {sr(R_WS,4)}, s{S_T0} offen")
                items.append(st)
            else:
                def st(u=u, D=D):
                    hst[5] = a.e(f"ds_write_b128 v{VEX+1}, {vr(D,4)} offset:{u*4096}")
                items.append(st)
        return items

    ool = []
    frags = []
    for s16 in range(36):
        ks = s16 // 2
        g = ks // KPS
        for mat in range(2):
            A = g * SB + (ks % KPS) * 8192 + mat * 4096 + (s16 & 1) * 2048
            frags.append(dict(stage=g, first=(len(frags) % FPS == 0), rd=addr(A),
                              pre=copy_items(mat) if (s16 == 0 and not FLAG("NOEPI")) else [],
                              mf=[mk(acc1(0, mat), X32(s16), s16 == 0)]))
    fill = {}
    if FLAG("NOEPI"):
        hst[0] = 0
    else:
        spread(fill, epi1(False), 3, int(os.environ.get("EPIEND", "44")))

    def dma1(g, i):
        def f():
            if g < 2:
                dma_raw(g + NS - 2, i, V_D1, R_W1, S_T3, f"s_add_u32 s{S_T3}, s{S_CUR}, {((g+NS-2)*KPS+i)*294912}")
            else:
                d = (g - 2) * KPS + i
                dma_raw(g - 2, i, V_DN, R_N, S_T3, f"s_mov_b32 s{S_T3}, s{S_PTR}")
                a.e(f"s_add_u32 s{S_PTR}, s{S_PTR}, s{S_ADJ if d % 6 == 5 else S_STEP}")
        return f

    def setnext():
        a.e(f"s_add_u32 s{S_CUR}, s{S_CUR}, 128")
        a.e(f"s_mov_b32 s{S_PTR}, s{S_CUR}")
        a.e(f"s_cmp_eq_u32 s{S_IT}, 5")
        a.e(f"s_cbranch_scc1 L_p1_nn")
        a.raw("L_p1_nnb:")
    ool.append("\n".join(["L_p1_nn:",
        f"    s_mov_b32 s{S_PTR}, s{S_W2B}", f"    s_mov_b32 s{S_STEP}, 73728", f"    s_mov_b32 s{S_ADJ}, {(128 - 5*73728) & 0xffffffff}",
        f"    s_mov_b32 s{R_N}, s{R_W2}", f"    s_mov_b32 s{R_N+1}, s{R_W2+1}", f"    v_mov_b32 v{V_DN}, v{V_D2}", "    s_nop 1", "    s_branch L_p1_nnb"]))
    DSP = FPS // KPS - 1

    def place_dma(fl, fn, setf):
        for g in range(NS):
            n0 = max(g * FPS - PD + 2, 0)
            if g == 2:
                fl.setdefault(n0 - 1, []).append(setf)
            for i in range(KPS):
                fl.setdefault(n0 + DSP * i, []).append(fn(g, i))
    place_dma(fill, dma1, setnext)

    def pf1():
        a.e(f"s_cmp_eq_u32 s{S_IT}, {6 - int(os.environ.get('PFD', '2'))}")
        a.e(f"s_cbranch_scc1 L_p1_pf")
        a.raw("L_p1_pfb:")
        pf()
    ool.append("\n".join(["L_p1_pf:",
        f"    s_mul_i32 s{S_PFO}, s{S_SPLIT}, {384*1152}", f"    s_mov_b32 s{S_PFS}, 384",
        f"    s_mov_b32 s{R_PF}, s{R_W2}", f"    s_mov_b32 s{R_PF+1}, s{R_W2+1}", f"    v_mov_b32 v{V_PF}, v{V_PF2}", "    s_nop 1", "    s_branch L_p1_pfb"]))
    fill.setdefault(5, []).append(pf1)

    def hload(name, kaps):
        def f():
            a.e(f"s_cmp_eq_u32 s{S_IT}, 5")
            a.e(f"s_cbranch_scc1 L_p1_h{name}")
            a.raw(f"L_p1_hb{name}:")
        t = [f"L_p1_h{name}:"]
        for kap in kaps:
            t.append(f"    s_add_u32 s{S_T0}, s{S_H0}, {HS + kap*4096}")
            t.append(f"    buffer_load_dwordx4 {vr(X32(kap),4)}, v{V_L16}, {sr(R_WS,4)}, s{S_T0} offen")
        t.append(f"    s_branch L_p1_hb{name}")
        ool.append("\n".join(t))
        return f
    for k in range(4):
        fill.setdefault(8 * k + 9, []).append(hload(k, range(4 * k, 4 * k + 4)))
    GL = NS - 1
    fill.setdefault(GL * FPS - PD + 1, []).append(hload(4, range(16, 20)))

    def add_sync(fl, extra=None):
        if USEBAR:
            return
        for g in range(NS):
            def arr(g=g):
                tk = dtk[g]
                if extra and g in extra:
                    tk = max(tk, extra[g]())
                sy.arrive(tk)
            fl.setdefault((FPS * g - PD - SL) % 72, []).insert(0, arr)
            fl.setdefault((FPS * g - PD - 2) % 72, []).insert(0, sy.read)
    add_sync(fill, {GL: lambda: hst[0]})
    first1 = [True]

    def on_stage1(g):
        g %= 1000
        if first1[0]:
            first1[0] = False
            a.wait_vm(dtk[0])
            a.wait_lg0()
            a.e("s_barrier")
            stamp(a, 'i')
            return
        if USEBAR:
            a.wait_vm(max(dtk[g], hst[0]) if g == GL else dtk[g])
            if not FLAG("NOBAR"):
                a.e("s_barrier")
        else:
            sy.check(f"a{g}")

    a.always = True
    tk1 = [run_stream(a, frags, fill, on_stage1, wrap=True, prime=True)]

    def body1():
        tk1[0] = run_stream(a, frags, fill, on_stage1, wrap=True, prime=False, tick=dict(tk1[0]))

    def dec1(label):
        a.e(f"s_lshl_b32 s{S_T0}, s{S_C}, 13")
        a.e(f"s_lshl_b32 s{S_HST}, s{S_IT}, 14")
        a.e(f"s_add_u32 s{S_HST}, s{S_HST}, s{S_T0}")
        a.e(f"s_add_u32 s{S_HST}, s{S_HST}, s{S_H0}")
        a.e(f"s_add_u32 s{S_IT}, s{S_IT}, 1")
        a.e(f"s_cmp_lt_u32 s{S_IT}, 6")
        a.e(f"s_cbranch_scc1 {label}")
    loop(a, "L_p1", body1, dec1)
    a.always = False
    a.e(f"s_lshl_b32 s{S_T0}, s{S_R}, 10")
    a.e(f"s_add_u32 s{S_T0}, s{S_T0}, {(NS-1)*SB}")
    a.e(f"v_add_u32 v{VEX}, s{S_T0}, v{V_L16}")
    a.e(f"s_lshl_b32 s{S_T0}, s{S_C}, 13")
    a.e(f"v_add_u32 v{VEX+1}, s{S_T0}, v{VEX}")
    for it in copy_items(0) + copy_items(1):
        it()
    its = epi1(True)
    a.wait_lg0()
    for it in its[:20]:
        it()
    a.e("s_barrier")
    for it in its[20:]:
        it()
    a.wait_lg0()
    a.e("s_barrier")
    stamp(a, 'j')
    pf()
    for kap in range(20, 24):
        a.e(f"ds_read_b128 {vr(X32(kap),4)}, v{VEX} offset:{(kap-20)*4096}")
    def acc2(j):
        return ACC + j * 16
    S_PST = S_HST
    a.e(f"s_mov_b32 s{S_IT}, 0")
    a.e(f"s_mov_b32 s{S_PST}, 0x70000000")

    def epi2(j, off_sgpr, off_imm):
        items = []
        for u in range(2):
            P = acc2(j) + 8 * u
            items += [E(f"v_cvt_pk_bf16_f32 v{P+k}, v{P+2*k}, v{P+2*k+1}") for k in range(4)]

            def st(u=u, P=P):
                if u == 0:
                    a.e(f"s_add_u32 s{S_P1}, s{S_P0}, {('s%d' % off_sgpr) if off_sgpr is not None else off_imm}")
                pst[j] = a.e(f"buffer_store_dwordx4 {vr(P,4)}, v{V_L16}, {sr(R_WS,4)}, s{S_P1} offen offset:{u*1024} sc1")
            items.append(st)
        return items
    pst = {}
    assert KPS == 2
    S_TRG, S_SITE, S_RNG, S_RBLK, S_NG0 = S_CUR, S_STEP, S_ADJ, S_W1B, S_PFS
    RB_, F_, T_, VG = X32(24), ACC + 48, ACC + 56, V_T + 2
    a.e(f"s_lshr_b32 s{S_RNG}, s{S_SPLIT}, 1")
    a.e(f"s_add_u32 s{S_TRG}, s{S_RNG}, {3 if not FLAG('NORED') else 100}")
    a.e(f"s_and_b32 s{S_RBLK}, s{S_SPLIT}, 1")
    a.e(f"s_lshl_b32 s{S_RBLK}, s{S_RBLK}, 3")
    a.e(f"s_add_u32 s{S_RBLK}, s{S_RBLK}, s{S_W}")
    a.e(f"s_mov_b32 s{S_NG0}, 0")
    S_TR2 = S_W2B
    a.e(f"s_mov_b32 s{S_TR2}, 100")
    a.e(f"v_and_b32 v{VG}, 31, v{V_LANE}")
    a.e(f"v_mul_u32_u24 v{VG}, 1152, v{VG}")
    a.e(f"v_lshrrev_b32 v{VG+1}, 5, v{V_LANE}")
    a.e(f"v_lshl_add_u32 v{VG}, v{VG+1}, 3, v{VG}")

    def sub(name, body, nsite):
        b = Asm()
        b.raw(f"L_{name}:")
        body(b)
        for k in range(nsite - 1):
            b.e(f"s_cmp_eq_u32 s{S_SITE}, {k}")
            b.e(f"s_cbranch_scc1 L_{name}_b{k}")
        b.e(f"s_branch L_{name}_b{nsite-1}")
        for k in range(nsite - 1):
            b.raw(f"L_{name}_t{k}:")
            b.e(f"s_mov_b32 s{S_SITE}, {k}")
            b.e(f"s_branch L_{name}")
        ool.append(b.text())

    def flag_addr(b):
        b.e(f"s_lshl_b32 s{S_T0}, s{S_RB}, 11")
        b.e(f"s_lshl_b32 s{S_T1}, s{S_RNG}, 6")
        b.e(f"s_add_u32 s{S_T0}, s{S_T0}, s{S_T1}")
        b.e(f"s_add_u32 s{S_T0}, s{S_T0}, {FLG + 128}")

    def r0(b):
        flag_addr(b)
        b.e(f"v_min_u32 v{T_}, 11, v{V_LANE}")
        b.e(f"v_lshlrev_b32 v{T_}, 2, v{T_}")
        b.e(f"buffer_load_dword v{T_+1}, v{T_}, {sr(R_WS,4)}, s{S_T0} offen sc1")

    def r1(b):
        b.e("s_waitcnt vmcnt(R1WAIT)")
        b.e(f"v_cmp_eq_u32 vcc, 0, v{T_+1}")
        b.e(f"s_add_u32 s{S_T3}, s{S_T0}, 1")
        b.e("s_cbranch_vccz L_r1_px")
        b.e(f"s_cmp_lt_u32 s{S_SITE}, 3")
        b.e("s_cbranch_scc1 L_r1_ret")
        flag_addr(b)
        b.e(f"s_mov_b32 s{S_T2}, 0")
        b.raw("L_r1_poll:")
        b.e(f"buffer_load_dword v{T_+1}, v{T_}, {sr(R_WS,4)}, s{S_T0} offen sc1")
        b.e(f"s_add_u32 s{S_T2}, s{S_T2}, 1")
        b.e(f"s_cmp_gt_u32 s{S_T2}, 0x40000")
        b.e("s_cbranch_scc1 L_r1_px")
        b.e("s_waitcnt vmcnt(0)")
        b.e(f"v_cmp_eq_u32 vcc, 0, v{T_+1}")
        b.e("s_cbranch_vccz L_r1_px")
        b.e("s_sleep 2")
        b.e("s_branch L_r1_poll")
        b.raw("L_r1_px:")
        b.e(f"s_mov_b32 s{S_TRG}, 100")
        b.e(f"s_mov_b32 s{S_TR2}, s{S_T3}")
        b.e(f"s_mul_i32 s{S_T0}, s{S_RB}, 9")
        b.e(f"s_add_u32 s{S_T0}, s{S_T0}, s{S_RNG}")
        b.e(f"s_lshl_b32 s{S_T0}, s{S_T0}, 4")
        b.e(f"s_add_u32 s{S_T0}, s{S_T0}, s{S_RBLK}")
        b.e(f"s_lshl_b32 s{S_T0}, s{S_T0}, 10")
        b.e(f"s_add_u32 s{S_T0}, s{S_T0}, {PART}")
        for p in range(12):
            b.e(f"buffer_load_dwordx4 {vr(RB_+4*p,4)}, v{V_L16}, {sr(R_WS,4)}, s{S_T0} offen sc1")
            if p < 11:
                b.e(f"s_add_u32 s{S_T0}, s{S_T0}, {PSZ}")
        b.raw("L_r1_ret:")

    def r2(b):
        b.e(f"s_mov_b32 s{S_TR2}, 100")
        b.e("s_waitcnt vmcnt(R2WAIT)")
        for p in range(12):
            for k in range(4):
                r = RB_ + 4 * p + k
                d = F_ if p == 0 else T_
                b.e(f"v_lshlrev_b32 v{d+2*k}, 16, v{r}")
                b.e(f"v_and_b32 v{d+2*k+1}, 0xffff0000, v{r}")
            if p:
                for k in range(8):
                    b.e(f"v_add_f32 v{F_+k}, v{F_+k}, v{T_+k}")
        for k in range(4):
            b.e(f"v_cvt_pk_bf16_f32 v{T_+k}, v{F_+2*k}, v{F_+2*k+1}")
        for k in range(4):
            b.e(f"v_lshlrev_b32 v{F_+2*k}, 16, v{T_+k}")
            b.e(f"v_and_b32 v{F_+2*k+1}, 0xffff0000, v{T_+k}")
        for k in range(8):
            b.e(f"v_mul_f32 v{T_+k}, s{S_NL2E}, v{F_+k}")
        for k in range(8):
            b.e(f"v_exp_f32 v{T_+k}, v{T_+k}")
        for k in range(8):
            b.e(f"v_add_f32 v{T_+k}, 1.0, v{T_+k}")
        for k in range(8):
            b.e(f"v_rcp_f32 v{T_+k}, v{T_+k}")
        for k in range(8):
            b.e(f"v_mul_f32 v{F_+k}, v{F_+k}, v{T_+k}")
        for k in range(4):
            b.e(f"v_cvt_pk_bf16_f32 v{T_+k}, v{F_+2*k}, v{F_+2*k+1}")
        b.e(f"s_bfe_u32 s{S_T0}, s{S_RBLK}, 0x20001")
        b.e(f"s_lshl_b32 s{S_T1}, s{S_RB}, 2")
        b.e(f"s_add_u32 s{S_T0}, s{S_T0}, s{S_T1}")
        b.e(f"s_mul_i32 s{S_T0}, s{S_T0}, {32*1152}")
        b.e(f"s_lshl_b32 s{S_T1}, s{S_RNG}, 7")
        b.e(f"s_add_u32 s{S_T0}, s{S_T0}, s{S_T1}")
        b.e(f"s_lshr_b32 s{S_T1}, s{S_RBLK}, 3")
        b.e(f"s_lshl_b32 s{S_T1}, s{S_T1}, 6")
        b.e(f"s_add_u32 s{S_T0}, s{S_T0}, s{S_T1}")
        b.e(f"s_and_b32 s{S_T1}, s{S_RBLK}, 1")
        b.e(f"s_lshl_b32 s{S_T1}, s{S_T1}, 5")
        b.e(f"s_add_u32 s{S_T0}, s{S_T0}, s{S_T1}")
        b.e(f"s_add_u32 s{S_T0}, s{S_T0}, {PART + 12*PSZ}")
        b.e(f"buffer_store_dwordx2 {vr(T_,2)}, v{VG}, {sr(R_WS,4)}, s{S_T0} offen sc1")
        b.e(f"buffer_store_dwordx2 {vr(T_+2,2)}, v{VG}, {sr(R_WS,4)}, s{S_T0} offen offset:16 sc1")
        b.e("s_nop 1")
    vmat = {}

    def site(name, j, d=0):
        def f():
            vmat.setdefault((name, j), []).append(a.vm)
            a.e(f"s_add_u32 s{S_T0}, s{S_NG0}, {j}")
            a.e(f"s_cmp_eq_u32 s{S_T0}, s{S_TR2}" if d else f"s_cmp_ge_u32 s{S_T0}, s{S_TRG}")
            a.e(f"s_cbranch_scc1 L_{name}_t{j}")
            a.raw(f"L_{name}_b{j}:")
        return f

    def signal_code(off_lines, skip0=None, name=""):
        t = [f"L_sg{name}:"]
        if skip0:
            t += [f"    s_cmp_eq_u32 s{S_IT}, 0", f"    s_cbranch_scc1 L_sg{name}_b"]
        t += ["    " + x for x in off_lines]
        t += [f"    s_lshl_b32 s{S_T1}, s{S_RB}, 11", f"    s_add_u32 s{S_T0}, s{S_T0}, s{S_T1}", f"    s_lshl_b32 s{S_T1}, s{S_SPLIT}, 2",
              f"    s_add_u32 s{S_T0}, s{S_T0}, s{S_T1}",
              f"    v_mov_b32 v{VG+1}, 1", f"    v_mov_b32 v0, 0", "    s_mov_b64 exec, 1",
              f"    buffer_store_dword v{VG+1}, v0, {sr(R_WS,4)}, s{S_T0} offen sc1", "    s_mov_b64 exec, -1", f"    s_branch L_sg{name}_b"]
        ool.append("\n".join(t))

    def signal_site(name):
        a.e(f"s_cmp_eq_u32 s{S_W}, 0")
        a.e(f"s_cbranch_scc1 L_sg{name}")
        a.raw(f"L_sg{name}_b:")
    for j in range(3):
        signal_code([f"s_lshl_b32 s{S_T0}, s{S_NG0}, 6", f"s_add_u32 s{S_T0}, s{S_T0}, {FLG + 128 + 64*(j-2)}"], skip0=(j < 2), name=f"p{j}")
    frags2 = []
    for j in range(3):
        for kap in range(24):
            A = j * 49152 + kap * 2048
            frags2.append(dict(stage=A // SB, first=(len(frags2) % FPS == 0), rd=addr(A),
                               mf=[mk(acc2(j), X32(kap), kap == 0)]))
    fill2 = {}
    spread(fill2, epi2(2, S_PST, 0), 2, 8)
    spread(fill2, epi2(0, None, 0), 24 + 2, 24 + 8)
    spread(fill2, epi2(1, None, 16384), 48 + 2, 48 + 8)
    for j in range(3):
        pass

    def dma2(g, i):
        def f():
            t = (g + NS - 2) % NS
            d = t * KPS + i
            dma_raw(t, i, V_D2, R_W2, S_T3, f"s_mov_b32 s{S_T3}, s{S_PTR}")
            a.e(f"s_add_u32 s{S_PTR}, s{S_PTR}, {73728 if d % 6 != 5 else (128 - 5*73728) & 0xffffffff}")
        return f

    def setend():
        a.e(f"s_cmp_eq_u32 s{S_IT}, 2")
        a.e(f"s_cselect_b32 s{S_PTR}, 0x70000000, s{S_PTR}")
    place_dma(fill2, dma2, setend)
    add_sync(fill2)
    first2 = [True]

    def on_stage2(g):
        g %= 1000
        if first2[0]:
            first2[0] = False
            return
        if g % 3 == 2:
            j = g // 3
            a.wait_vm(max(dtk[g], pst.get((j - 2) % 3, 0) if not FLAG("NOPSTW") else 0))
            a.e("s_barrier")
            signal_site(f"p{j}")
        else:
            a.wait_vm(dtk[g])
            a.e("s_barrier")
    a.always = True
    tk2 = [run_stream(a, frags2, fill2, on_stage2, wrap=True, prime=True)]
    a.wait_vm(dtk[NS - 3])

    def body2():
        tk2[0] = run_stream(a, frags2, fill2, on_stage2, wrap=True, prime=False, tick=dict(tk2[0]))

    def dec2(label):
        a.e(f"s_add_u32 s{S_P0}, s{S_P0}, {3*16384}")
        a.e(f"s_mov_b32 s{S_PST}, {(-16384) & 0xffffffff}")
        a.e(f"s_add_u32 s{S_NG0}, s{S_NG0}, 3")
        a.e(f"s_add_u32 s{S_IT}, s{S_IT}, 1")
        a.e(f"s_cmp_lt_u32 s{S_IT}, 3")
        a.e(f"s_cbranch_scc1 {label}")
    loop(a, "L_p2", body2, dec2)
    a.always = False
    for it in epi2(2, S_PST, 0):
        it()
    a.e("s_load_dwordx2 s[4:5], s[0:1], 56")
    a.e("s_load_dwordx2 s[6:7], s[0:1], 16")
    a.wait_lg0()
    VF1, VF2, VFL = 248, 249, 250
    S_FE, S_FS, S_AE, S_AL, S_BK1 = S_TR2, S_PTR, S_H0, S_H1, S_SITE
    a.e(f"v_min_u32 v{VF1}, 11, v{V_LANE}")
    a.e(f"v_lshlrev_b32 v{VF1}, 2, v{VF1}")
    a.e(f"v_and_b32 v{VF2}, 3, v{V_LANE}")
    a.e(f"v_lshlrev_b32 v{VF2}, 2, v{VF2}")
    a.e(f"s_mov_b32 s{S_RNG}, s{S_SPLIT}")
    a.e(f"s_lshl_b32 s{S_RBLK}, s{S_W}, 1")
    a.e(f"s_add_u32 s{S_BK1}, s{S_RBLK}, 1")
    a.e(f"s_lshl_b32 s{S_FS}, s{S_RB}, 11")
    a.e(f"s_add_u32 s{S_FS}, s{S_FS}, {FLG}")
    a.e(f"s_lshl_b32 s{S_T1}, s{S_RNG}, 6")
    a.e(f"s_add_u32 s{S_FE}, s{S_FS}, s{S_T1}")
    a.e(f"s_add_u32 s{S_FE}, s{S_FE}, 128")
    a.e(f"s_lshl_b32 s{S_T0}, s{S_RB}, 2")
    a.e(f"s_add_u32 s{S_T0}, s{S_T0}, s{S_R}")
    a.e(f"s_mul_i32 s{S_T0}, s{S_T0}, {32*1152}")
    a.e(f"s_lshl_b32 s{S_T1}, s{S_RNG}, 7")
    a.e(f"s_add_u32 s{S_T0}, s{S_T0}, s{S_T1}")
    a.e(f"s_lshl_b32 s{S_T1}, s{S_C}, 6")
    a.e(f"s_add_u32 s{S_AE}, s{S_T0}, s{S_T1}")
    a.e(f"s_add_u32 s{S_AL}, s{S_AE}, 32")
    srd(a, R_A, 4, 2359296)
    srd(a, R_B, 6, 663552)
    a.wait_all()
    a.e("s_barrier")
    stamp(a, 'g')
    signal_code([f"s_mov_b32 s{S_T0}, {FLG + 128 + 64*7}"], name="p3")
    signal_site("p3")
    signal_code([f"s_mov_b32 s{S_T0}, {FLG + 128 + 64*8}"], name="p4")
    signal_site("p4")
    a.e(f"s_cmp_lt_u32 s{S_SPLIT}, 9")
    a.e("s_cbranch_scc0 L_m_fin")
    a.e(f"s_lshr_b32 s{S_T0}, s{S_W}, 1")
    a.e(f"s_mul_i32 s{S_T1}, s{S_T0}, 18")
    a.e(f"s_and_b32 s{S_T2}, s{S_T0}, 1")
    a.e(f"s_lshl_b32 s{S_T2}, s{S_T2}, 1")
    a.e(f"s_add_u32 s{S_T1}, s{S_T1}, s{S_T2}")
    a.e(f"s_and_b32 s{S_T2}, s{S_W}, 1")
    a.e(f"s_lshl_b32 s{S_T3}, s{S_T2}, 3")
    a.e(f"s_add_u32 s{S_T1}, s{S_T1}, s{S_T3}")
    a.e(f"s_mul_i32 s{S_T1}, s{S_T1}, 1152")
    a.e(f"s_lshl_b32 s{S_T3}, s{S_RNG}, 7")
    a.e(f"s_add_u32 s{S_T1}, s{S_T1}, s{S_T3}")
    a.e(f"s_mul_i32 s{S_T0}, s{S_T0}, 144")
    a.e(f"s_mul_i32 s{S_T2}, s{S_T2}, 72")
    a.e(f"s_add_u32 s{S_T0}, s{S_T0}, s{S_T2}")
    a.e(f"s_add_u32 s{S_T0}, s{S_T0}, 16")
    a.e(f"s_mul_i32 s{S_T0}, s{S_T0}, 1152")
    a.e(f"s_add_u32 s{S_T0}, s{S_T0}, s{S_T3}")
    a.e(f"v_bfe_u32 v{VFL}, v{V_LANE}, 4, 1")
    a.e(f"v_mul_u32_u24 v{VFL}, {32*1152}, v{VFL}")
    a.e(f"v_add_u32 v{V_D1}, v{V_D2}, v{VFL}")
    for k in range(8):
        a.e(f"s_add_u32 m0, s{S_WLDS}, {k*8192}")
        a.e(f"s_add_u32 s{S_T3}, s{S_T1}, {k*72*1152}")
        a.e(f"buffer_load_dwordx4 v{V_D2}, {sr(R_B,4)}, s{S_T3} offen lds")
    a.e(f"s_add_u32 m0, s{S_WLDS}, {8*8192}")
    a.e("s_nop 0")
    a.e(f"buffer_load_dwordx4 v{V_D1}, {sr(R_B,4)}, s{S_T0} offen lds")

    def spin(name, vaddr, soff, want, preloaded=False):
        a.e(f"s_mov_b32 s{S_T2}, 0")
        if preloaded:
            a.e(f"s_branch L_sp_{name}_c")
        a.raw(f"L_sp_{name}:")
        a.e_untracked(f"buffer_load_dword v{VFL}, v{vaddr}, {sr(R_WS,4)}, s{soff} offen sc1")
        a.e(f"s_add_u32 s{S_T2}, s{S_T2}, 1")
        a.e(f"s_cmp_gt_u32 s{S_T2}, 0x40000")
        a.e(f"s_cbranch_scc1 L_sp_{name}_x")
        a.e("s_waitcnt vmcnt(0)")
        a.raw(f"L_sp_{name}_c:")
        a.e(f"v_cmp_gt_u32 vcc, {want}, v{VFL}")
        a.e(f"s_cbranch_vccz L_sp_{name}_x")
        a.e("s_sleep 8")
        a.e(f"s_branch L_sp_{name}")
        a.raw(f"L_sp_{name}_x:")

    def ld_part(dst, ng, bk, xr, aoff):
        a.e(f"s_mul_i32 s{S_T0}, s{S_RB}, 9")
        a.e(f"s_add_u32 s{S_T0}, s{S_T0}, s{ng}")
        a.e(f"s_lshl_b32 s{S_T0}, s{S_T0}, 4")
        a.e(f"s_add_u32 s{S_T0}, s{S_T0}, s{bk}")
        a.e(f"s_lshl_b32 s{S_T0}, s{S_T0}, 10")
        a.e(f"s_add_u32 s{S_T0}, s{S_T0}, {PART}")
        for p in range(12):
            a.e(f"buffer_load_dwordx4 {vr(dst+4*p,4)}, v{V_L16}, {sr(R_WS,4)}, s{S_T0} offen sc1")
            if p < 11:
                a.e(f"s_add_u32 s{S_T0}, s{S_T0}, {PSZ}")
        a.e(f"buffer_load_dwordx2 {vr(xr,2)}, v{VG}, {sr(R_X,4)}, s{aoff} offen")
        a.e(f"buffer_load_dwordx2 {vr(xr+2,2)}, v{VG}, {sr(R_X,4)}, s{aoff} offen offset:16")

    def ld_s(sreg, aoff):
        a.e(f"s_add_u32 s{S_T0}, s{aoff}, {PART + 12*PSZ}")
        a.e(f"buffer_load_dwordx2 {vr(sreg,2)}, v{VG}, {sr(R_WS,4)}, s{S_T0} offen sc1")
        a.e(f"buffer_load_dwordx2 {vr(sreg+2,2)}, v{VG}, {sr(R_WS,4)}, s{S_T0} offen offset:16 sc1")

    def unp(dst, src):
        for k in range(4):
            a.e(f"v_lshlrev_b32 v{dst+2*k}, 16, v{src+k}")
            a.e(f"v_and_b32 v{dst+2*k+1}, 0xffff0000, v{src+k}")

    def rnd(F, Pk):
        for k in range(4):
            a.e(f"v_cvt_pk_bf16_f32 v{Pk+k}, v{F+2*k}, v{F+2*k+1}")
        unp(F, Pk)

    def silu_sum(src, F, T, Pk):
        for p in range(12):
            unp(F if p == 0 else T, src + 4 * p)
            if p:
                for k in range(8):
                    a.e(f"v_add_f32 v{F+k}, v{F+k}, v{T+k}")
        rnd(F, Pk)
        for k in range(8):
            a.e(f"v_mul_f32 v{T+k}, s{S_NL2E}, v{F+k}")
        for k in range(8):
            a.e(f"v_exp_f32 v{T+k}, v{T+k}")
        for k in range(8):
            a.e(f"v_add_f32 v{T+k}, 1.0, v{T+k}")
        for k in range(8):
            a.e(f"v_rcp_f32 v{T+k}, v{T+k}")
        for k in range(8):
            a.e(f"v_mul_f32 v{F+k}, v{F+k}, v{T+k}")
        rnd(F, Pk)

    def finish(F, T, Pk, sreg, xr, aoff):
        rnd(sreg, Pk)
        for k in range(8):
            a.e(f"v_mul_f32 v{F+k}, v{F+k}, v{sreg+k}")
        rnd(F, Pk)
        unp(T, xr)
        for k in range(8):
            a.e(f"v_add_f32 v{F+k}, v{F+k}, v{T+k}")
        for k in range(4):
            a.e(f"v_cvt_pk_bf16_f32 v{Pk+k}, v{F+2*k}, v{F+2*k+1}")
        a.e(f"buffer_store_dwordx2 {vr(Pk,2)}, v{VG}, {sr(R_A,4)}, s{aoff} offen")
        a.e(f"buffer_store_dwordx2 {vr(Pk+2,2)}, v{VG}, {sr(R_A,4)}, s{aoff} offen offset:16")
    PE, PL = X32(0), X32(12)
    XE, XL_ = ACC, ACC + 4
    FE, FL_, TT, PK, PK2, SACC = ACC + 8, ACC + 16, ACC + 24, ACC + 32, ACC + 36, ACC + 48
    spin("e", VF1, S_FE, 1)
    ld_part(PE, S_RNG, S_RBLK, XE, S_AE)
    tp = a.vm
    ld_part(PL, S_RNG, S_BK1, XL_, S_AL)
    a.wait_vm(tp)
    silu_sum(PE, FE, TT, PK)
    a.wait_vm0()
    silu_sum(PL, FL_, TT, PK)
    stamp(a, 't')
    spin("o", VF2, S_FS, 2)
    a.e(f"s_lshl_b32 s{S_T0}, s{S_RB}, 2")
    a.e(f"s_add_u32 s{S_T0}, s{S_T0}, s{S_R}")
    a.e(f"s_mul_i32 s{S_T0}, s{S_T0}, 36864")
    a.e(f"s_add_u32 s{S_T0}, s{S_T0}, {OF}")
    to = []
    for k in range(36):
        if k % 4 == 0 and k:
            a.e(f"s_add_u32 s{S_T0}, s{S_T0}, 4096")
        to.append(a.e(f"buffer_load_dwordx4 {vr(X32(k),4)}, v{V_L16}, {sr(R_WS,4)}, s{S_T0} offen offset:{(k%4)*1024} sc1"))
    a.e("s_barrier")
    fr3 = [dict(stage=0, first=False, rd=addr(k * 2048), pre=[lambda k=k: a.wait_vm(to[k])], mf=[mk(SACC, X32(k), k == 0)]) for k in range(36)]
    run_stream(a, fr3, {}, None)
    finish(FE, TT, PK, SACC, XE, S_AE)
    finish(FL_, TT, PK2, SACC + 8, XL_, S_AL)
    a.raw("L_m_fin:")
    stamp(a, 'h')
    stamp_out(a)
    a.e("s_endpgm")
    sy.emit_slow()
    for t in ool:
        a.raw(t)


def k1(a):
    a.raw(".globl k1_kernel\n.p2align 8\n.type k1_kernel,@function\nk1_kernel:")
    a.e("s_cmp_ge_u32 s2, 256")
    a.e("s_cbranch_scc1 L_k1_end")
    a.e("s_load_dwordx16 s[4:19], s[0:1], 0")
    a.e("s_load_dwordx4 s[20:23], s[0:1], 64")
    a.e(f"v_and_b32 v{V_LANE}, 63, v0")
    a.e(f"v_lshlrev_b32 v{V_L16}, 4, v{V_LANE}")
    a.e(f"v_lshrrev_b32 v{V_T}, 6, v0")
    a.e(f"v_readfirstlane_b32 s{S_W}, v{V_T}")
    a.e(f"s_and_b32 s{S_R}, s{S_W}, 3")
    a.e(f"s_lshr_b32 s{S_C}, s{S_W}, 2")
    a.e(f"s_and_b32 s{S_T0}, s2, 7")
    a.e(f"s_lshr_b32 s{S_T1}, s2, 3")
    a.e(f"s_and_b32 s{S_T2}, s{S_T0}, 1")
    a.e(f"s_lshl_b32 s{S_T2}, s{S_T2}, 3")
    a.e(f"s_and_b32 s{S_T3}, s{S_T1}, 7")
    a.e(f"s_add_u32 s{S_RB}, s{S_T2}, s{S_T3}")
    a.e(f"s_lshr_b32 s{S_T0}, s{S_T0}, 1")
    a.e(f"s_lshr_b32 s{S_T1}, s{S_T1}, 3")
    a.e("s_waitcnt lgkmcnt(0)")
    srd(a, R_X, S_X, 2359296)
    srd(a, R_WS, S_WS, WS_SZ)
    srd(a, R_DBG, S_DBG, 256)
    if int(os.environ.get("CODEPF", "0")):
        a.e(f"s_getpc_b64 s[{R_A}:{R_A+1}]")
        a.raw("L_pc0:")
        a.e(f"s_mov_b32 s{R_A+2}, L_k1_end-L_pc0")
        a.e(f"s_mov_b32 s{R_A+3}, 0x20000")
        a.e(f"v_lshlrev_b32 v{V_T}, 6, v0")
        for k in range((int(os.environ.get('CODEPF'))+31)//32):
            a.e(f"s_mov_b32 s{S_T2}, {k*32768}")
            a.e(f"buffer_load_dword v0, v{V_T}, {sr(R_A,4)}, s{S_T2} offen")
    a.e(f"s_cmp_eq_u32 s{S_T1}, 3")
    a.e("s_cbranch_scc1 L_att")
    a.e(f"s_mul_i32 s{S_SPLIT}, s{S_T0}, 3")
    a.e(f"s_add_u32 s{S_SPLIT}, s{S_SPLIT}, s{S_T1}")
    if int(os.environ.get("MAPA", "0")):
        a.e(f"s_and_b32 s{S_T0}, s2, 7")
        a.e(f"s_mul_i32 s{S_T0}, s{S_T0}, 24")
        a.e(f"s_lshr_b32 s{S_T1}, s2, 3")
        a.e(f"s_add_u32 s{S_T0}, s{S_T0}, s{S_T1}")
        a.e(f"s_lshr_b32 s{S_SPLIT}, s{S_T0}, 4")
        a.e(f"s_and_b32 s{S_RB}, s{S_T0}, 15")
    mlp(a)
    a.label("L_att")
    a.e(f"s_mov_b32 s{S_HG}, s{S_T0}")
    try:
        import gen_att
        gen_att.att(a)
    except ImportError:
        pass
    a.label("L_k1_end")
    a.e("s_endpgm")


def desc(name, vgpr, sgpr):
    return f""".p2align 6
.amdhsa_kernel {name}
  .amdhsa_next_free_vgpr {vgpr}
  .amdhsa_next_free_sgpr {sgpr}
  .amdhsa_accum_offset {(vgpr+3)//4*4}
  .amdhsa_group_segment_fixed_size 0
  .amdhsa_kernarg_size 80
  .amdhsa_user_sgpr_count 2
  .amdhsa_user_sgpr_kernarg_segment_ptr 1
  .amdhsa_system_sgpr_workgroup_id_x 1
.end_amdhsa_kernel"""


def main():
    a = Asm()
    a.raw(f"; @launch kernel=k1_kernel grid=(256,1,1) block=(512,1,1) lds={LDS_SZ}")
    have_k2 = False
    if have_k2:
        a.raw(gen_k2.LAUNCH)
    a.raw('.amdgcn_target "amdgcn-amd-amdhsa--gfx950"\n.text')
    k1(a)
    if have_k2:
        b = Asm()
        gen_k2.k2(b)
        a.raw(b.text())
    a.raw('.section .rodata,"a"')
    a.raw(desc("k1_kernel", 256, 102))
    if have_k2:
        a.raw(desc("k2_kernel", gen_k2.VGPRS, 48))
    sys.stdout.write(a.text())


if __name__ == "__main__":
    main()
```

```python
import re

_REG = re.compile(r"^(-?\|?)([vsa])(?:(\d+)|\[(\d+):(\d+)\])\|?$")
TRANS = ("v_exp_f32", "v_rcp_f32", "v_rsq_f32", "v_sqrt_f32", "v_log_f32")


def regs_of(tok):
    tok = tok.strip()
    if tok == "vcc":
        return "s", {106, 107}
    if tok == "exec":
        return "s", {126, 127}
    if tok == "m0":
        return "s", {124}
    m = _REG.match(tok)
    if not m:
        return None, set()
    f = m.group(2)
    if m.group(3) is not None:
        lo = hi = int(m.group(3))
    else:
        lo, hi = int(m.group(4)), int(m.group(5))
    return f, set(range(lo, hi + 1))


class Ins:
    __slots__ = ("text", "kind", "vw", "vr", "sw", "sr", "ws", "ab", "c", "op")


def parse(text):
    t = text.split(";")[0].strip()
    i = Ins()
    i.text = text
    i.vw, i.vr, i.sw, i.sr, i.ab, i.c = set(), set(), set(), set(), set(), set()
    i.ws = 1
    parts = t.split(None, 1)
    op = parts[0]
    i.op = op
    rest = parts[1] if len(parts) > 1 else ""
    rest = re.sub(r"\b(op_sel|op_sel_hi|neg_lo|neg_hi):\[[^\]]*\]", "", rest)
    ops = [o.strip() for o in rest.split(",")] if rest else []
    toks = []
    mods = []
    for k, o in enumerate(ops):
        sp = o.split()
        if not sp:
            continue
        toks.append(sp[0])
        mods += sp[1:]

    def rd(tok):
        f, r = regs_of(tok)
        if f == "v":
            i.vr |= r
        elif f == "s":
            i.sr |= r
        return r if f == "v" else set()

    def wr(tok):
        f, r = regs_of(tok)
        if f == "v":
            i.vw |= r
        elif f == "s":
            i.sw |= r

    if op.startswith("v_mfma"):
        i.kind = "mfma"
        wr(toks[0])
        i.ab = rd(toks[1]) | rd(toks[2])
        i.c = rd(toks[3])
    elif op.startswith("v_cmpx"):
        raise ValueError("no cmpx")
    elif op.startswith("v_cmp"):
        i.kind = "valu"
        wr(toks[0])
        for x in toks[1:]:
            rd(x)
    elif op.startswith("v_readfirstlane") or op.startswith("v_readlane"):
        i.kind = "valu"
        wr(toks[0])
        for x in toks[1:]:
            rd(x)
    elif op.startswith("v_writelane"):
        i.kind = "valu"
        wr(toks[0])
        for x in toks[1:]:
            rd(x)
    elif op.startswith("v_permlane"):
        i.kind = "valu"
        for x in toks[:2]:
            wr(x)
            rd(x)
    elif op.startswith("v_"):
        i.kind = "trans" if op.replace("_e32", "").replace("_e64", "") in TRANS else "valu"
        wr(toks[0])
        if op.startswith("v_fmac") or op.startswith("v_dot2c"):
            rd(toks[0])
        for x in toks[1:]:
            rd(x)
    elif op.startswith("ds_read") or op.startswith("ds_bpermute"):
        i.kind = "ds"
        wr(toks[0])
        for x in toks[1:]:
            rd(x)
    elif op.startswith("ds_write"):
        i.kind = "ds"
        for x in toks:
            rd(x)
    elif op.startswith("buffer_load"):
        if "lds" in mods:
            i.kind = "dma"
            for x in toks:
                rd(x)
            i.sr |= {124}
        else:
            i.kind = "vld"
            wr(toks[0])
            for x in toks[1:]:
                rd(x)
    elif op.startswith("buffer_store"):
        i.kind = "vst"
        for x in toks:
            rd(x)
        i.c = regs_of(toks[0])[1] if ("x4" in op or "x3" in op) else set()
    elif op.startswith("buffer_atomic"):
        i.kind = "vst"
        for x in toks:
            rd(x)
        if "sc0" in mods:
            wr(toks[0])
    elif op == "s_waitcnt":
        i.kind = "salu"
    elif op == "s_nop":
        i.kind = "nop"
        i.ws = int(toks[0], 0) + 1
    elif op.startswith("s_"):
        i.kind = "salu"
        nodst = ("s_cmp", "s_waitcnt", "s_barrier", "s_branch", "s_cbranch", "s_endpgm", "s_setprio", "s_sleep", "s_bitcmp")
        if any(op.startswith(x) for x in nodst):
            for x in toks:
                rd(x)
        else:
            if toks:
                wr(toks[0])
            for x in toks[1:]:
                rd(x)
            if "saveexec" in op:
                i.sw |= {126, 127}
    else:
        raise ValueError("unknown op " + text)
    return i


def need(p, c):
    n = 0
    pv = p.kind in ("valu", "trans")
    cv = c.kind in ("valu", "trans")
    cmem = c.kind in ("ds", "vld", "vst", "dma")
    if pv:
        if c.kind == "mfma" and (p.vw & c.vr):
            n = max(n, 2)
        if p.kind == "trans" and c.kind == "valu" and (p.vw & (c.vr | c.vw)):
            n = max(n, 1)
        if p.kind == "trans" and (cmem or c.kind == "mfma") and (p.vw & c.vr):
            n = max(n, 1)
        if p.sw:
            if c.kind in ("vld", "vst", "dma") and (p.sw & c.sr):
                n = max(n, 5)
            if cv and (p.sw & c.sr):
                n = max(n, 4 if c.op.startswith("v_readlane") else 2)
            if c.kind == "salu" and (p.sw & c.sr):
                n = max(n, 1)
        if (c.op.startswith("v_readfirstlane") or c.op.startswith("v_readlane")) and (p.vw & c.vr):
            n = max(n, 1)
        if c.op.startswith("v_permlane") and (p.vw & c.vr):
            n = max(n, 2)
        if "dpp" in c.text and (p.vw & c.vr):
            n = max(n, 2)
    if p.kind == "mfma":
        passes = 4 if "16x16x32" in p.op else 8
        big = {4: 8, 8: 12}[passes]
        if c.kind == "mfma":
            if p.vw & c.ab:
                n = max(n, big)
            if (p.vw & c.c) and p.vw != c.c:
                n = max(n, big - 2)
            if (p.vw & c.vw) and p.vw != c.c:
                n = max(n, big)
        elif (cv or cmem) and (p.vw & (c.vr | c.vw)):
            n = max(n, big)
        if cv and (p.c & c.vw):
            n = max(n, {4: 3, 8: 7}[passes])
    if p.kind == "salu" and 124 in p.sw and c.kind == "dma":
        n = max(n, 1)
    if p.kind == "vst" and p.c and (p.c & c.vw):
        n = max(n, 2 if cv else 1)
    if p.kind == "salu" and (p.sw & {126, 127}) and False:
        pass
    return n


class Asm:
    def __init__(self):
        self.out = []
        self.hist = []
        self.vm = 0
        self.lg = 0
        self.vm_done = 0
        self.lg_done = 0
        self.nins = 0
        self.always = False

    def raw(self, s):
        self.out.append(s)

    def label(self, name):
        self.out.append(name + ":")
        self.barrier_hist()

    def barrier_hist(self):
        self.hist = []

    def e(self, text):
        ins = parse(text)
        dist = 0
        req = 0
        for p in reversed(self.hist):
            n = need(p, ins)
            if n > dist:
                req = max(req, n - dist)
            dist += p.ws
            if dist >= 20:
                break
        if req > 0:
            nop = parse(f"s_nop {req-1}")
            self.out.append(f"    s_nop {req-1}")
            self.hist.append(nop)
            self.nins += 1
        self.out.append("    " + text)
        self.hist.append(ins)
        if len(self.hist) > 40:
            self.hist = self.hist[-30:]
        self.nins += 1
        if ins.kind in ("vld", "vst", "dma"):
            self.vm += 1
            return self.vm
        if ins.kind == "ds":
            self.lg += 1
            return self.lg
        return None

    def e_untracked(self, text):
        vm, lg = self.vm, self.lg
        self.e(text)
        self.vm, self.lg = vm, lg

    def wait_vm(self, ticket):
        if ticket is None or (ticket <= self.vm_done and not self.always):
            return
        n = min(self.vm - ticket, 63)
        self.e(f"s_waitcnt vmcnt({n})")
        self.vm_done = max(self.vm_done, self.vm - n)

    def wait_lg(self, ticket):
        if ticket is None or (ticket <= self.lg_done and not self.always):
            return
        n = min(self.lg - ticket, 15)
        self.e(f"s_waitcnt lgkmcnt({n})")
        self.lg_done = max(self.lg_done, self.lg - n)

    def wait_all(self):
        self.e("s_waitcnt vmcnt(0) lgkmcnt(0)")
        self.vm_done = self.vm
        self.lg_done = self.lg

    def wait_lg0(self):
        self.e("s_waitcnt lgkmcnt(0)")
        self.lg_done = self.lg

    def wait_vm0(self):
        self.e("s_waitcnt vmcnt(0)")
        self.vm_done = self.vm

    def text(self):
        return "\n".join(self.out) + "\n"


def vr(a, n=1):
    return f"v{a}" if n == 1 else f"v[{a}:{a+n-1}]"


def sr(a, n=1):
    return f"s{a}" if n == 1 else f"s[{a}:{a+n-1}]"
```

```python
import os
from asmlib import vr, sr
import __main__ as G

Q0 = 0x3000000
QX = 0x3200000
QSCALE = 0x3EAE1B5D


def att(a):
    import struct, math
    qs = struct.unpack("<I", struct.pack("<f", (18 ** -0.5) * math.log2(math.e)))[0]
    (S_W, S_R, S_C, S_RB, S_HG, S_T0, S_T1, S_T2, S_T3) = (G.S_W, G.S_R, G.S_C, G.S_RB, G.S_HG, G.S_T0, G.S_T1, G.S_T2, G.S_T3)
    R_X, R_W1, R_W2, R_WS, R_DBG, R_A, R_B = G.R_X, G.R_W1, G.R_W2, G.R_WS, G.R_DBG, G.R_A, G.R_B
    V_LANE, V_L16, V_RD, FR, ACC, X = G.V_LANE, G.V_L16, G.V_RD, G.FR, G.ACC, G.X
    PD = G.PD
    S_WLDS, S_W1B, S_W2B, S_RT0, S_RT1, S_HB, S_KS, S_W2X = 61, 62, 63, 64, 65, 66, 67, 68
    VD = (3, 4, 76)
    VDX = (77, 78, 79)
    V_L8 = 80
    V_ONE = 81
    NS, SB = 8, 18432
    stamp = G.stamp

    G.srd(a, R_W1, G.S_WQKV, 1990656)
    G.srd(a, R_W2, G.S_WO, 663552)
    stamp(a)
    a.e(f"s_lshl_b32 s{S_T0}, s{S_HG}, 3")
    a.e(f"s_add_u32 s{S_T0}, s{S_T0}, s{S_W}")
    a.e(f"s_cmp_eq_u32 s{S_T0}, 0")
    a.e("s_cbranch_scc0 L_noinit")
    for k in range(4):
        a.e(f"v_mov_b32 v{16+k}, 0")
    a.e(f"s_lshl_b32 s{S_T0}, s{S_RB}, 11")
    a.e(f"s_add_u32 s{S_T0}, s{S_T0}, {G.FLG}")
    a.e_untracked(f"buffer_store_dwordx4 v[16:19], v{V_L16}, {sr(R_WS,4)}, s{S_T0} offen sc1")
    a.e("s_waitcnt vmcnt(0)")
    a.e(f"v_mov_b32 v17, 1")
    a.e(f"s_lshl_b32 s{S_T0}, s{S_RB}, 2")
    a.e("s_mov_b64 exec, 1")
    a.e_untracked(f"buffer_store_dword v17, v16, {sr(R_DBG,4)}, s{S_T0} offen offset:64 sc1")
    a.e("s_mov_b64 exec, -1")
    a.raw("L_noinit:")
    xtk = G.x_stage_issue(a)
    t0, t1, t2, t3 = 82, 83, 84, 85
    a.e(f"s_lshl_b32 s{S_T0}, s{S_W}, 6")
    a.e(f"v_add_u32 v{t0}, s{S_T0}, v{V_LANE}")
    a.e(f"v_lshrrev_b32 v{t1}, 3, v{t0}")
    a.e(f"v_and_b32 v{t2}, 7, v{t0}")
    a.e(f"v_min_u32 v{t2}, 5, v{t2}")
    a.e(f"v_lshlrev_b32 v{t2}, 6, v{t2}")
    a.e(f"v_min_u32 v{t2}, 284, v{t2}")
    a.e(f"v_cmp_gt_u32 vcc, 36, v{t1}")
    a.e(f"v_mul_u32_u24 v{t3}, 3456, v{t1}")
    a.e(f"v_add_u32 v{t3}, v{t3}, v{t2}")
    a.e(f"v_cndmask_b32 v{t3}, -1, v{t3}, vcc")
    a.e(f"v_mul_u32_u24 v{t1}, 1152, v{t1}")
    a.e(f"v_add_u32 v{t1}, v{t1}, v{t2}")
    a.e(f"v_cndmask_b32 v{t1}, -1, v{t1}, vcc")
    a.e(f"s_mul_i32 s{S_T0}, s{S_RB}, {36*3456}")
    a.e(f"s_mul_i32 s{S_T1}, s{S_HG}, 288")
    a.e(f"s_add_u32 s{S_T0}, s{S_T0}, s{S_T1}")
    for sec in (1, 2, 0):
        a.e(f"s_add_u32 s{S_T2}, s{S_T0}, {sec*1152}")
        a.e(f"buffer_load_dword v0, v{t3}, {sr(R_W1,4)}, s{S_T2} offen")
    a.e(f"s_mul_i32 s{S_T0}, s{S_RB}, {36*1152}")
    a.e(f"s_add_u32 s{S_T0}, s{S_T0}, s{S_T1}")
    a.e(f"buffer_load_dword v0, v{t1}, {sr(R_W2,4)}, s{S_T0} offen")

    def dma_voffs(pitch, extras=False):
        for n in range(3):
            a.e(f"v_add_u32 v{t0}, {64*n}, v{V_LANE}")
            a.e(f"v_mul_u32_u24 v{t1}, 3641, v{t0}")
            a.e(f"v_lshrrev_b32 v{t1}, 16, v{t1}")
            a.e(f"v_mul_u32_u24 v{t2}, 18, v{t1}")
            a.e(f"v_sub_u32 v{t2}, v{t0}, v{t2}")
            a.e(f"v_mul_u32_u24 v{t3}, {pitch}, v{t1}")
            a.e(f"v_lshl_add_u32 v{VD[n]}, v{t2}, 4, v{t3}")
            if extras:
                a.e(f"v_lshrrev_b32 v{t3}, 2, v{t1}")
                a.e(f"v_mul_u32_u24 v{t3}, {32*pitch}, v{t3}")
                a.e(f"v_add_u32 v{VDX[n]}, v{VD[n]}, v{t3}")
    dma_voffs(3456)
    a.e(f"s_mul_i32 s{S_WLDS}, s{S_W}, 2304")
    a.e(f"s_mul_i32 s{S_W1B}, s{S_W}, {8*3456}")
    a.e(f"s_mul_i32 s{S_T1}, s{S_HG}, 288")
    a.e(f"s_add_u32 s{S_W1B}, s{S_W1B}, s{S_T1}")
    a.e(f"s_mul_i32 s{S_T0}, s{S_C}, 36")
    a.e(f"s_lshl_b32 s{S_T2}, s{S_R}, 3")
    a.e(f"s_add_u32 s{S_T0}, s{S_T0}, s{S_T2}")
    a.e(f"s_lshr_b32 s{S_T2}, s{S_R}, 1")
    a.e(f"s_lshl_b32 s{S_T3}, s{S_T2}, 2")
    a.e(f"s_add_u32 s{S_T0}, s{S_T0}, s{S_T3}")
    a.e(f"s_mul_i32 s{S_W2B}, s{S_T0}, 1152")
    a.e(f"s_add_u32 s{S_W2B}, s{S_W2B}, s{S_T1}")
    a.e(f"s_lshl_b32 s{S_T0}, s{S_C}, 1")
    a.e(f"s_add_u32 s{S_T0}, s{S_T0}, s{S_T2}")
    a.e(f"s_mul_i32 s{S_T0}, s{S_T0}, 144")
    a.e(f"s_and_b32 s{S_T2}, s{S_R}, 1")
    a.e(f"s_mul_i32 s{S_T2}, s{S_T2}, 72")
    a.e(f"s_add_u32 s{S_T0}, s{S_T0}, s{S_T2}")
    a.e(f"s_add_u32 s{S_T0}, s{S_T0}, 16")
    a.e(f"s_mul_i32 s{S_W2X}, s{S_T0}, 1152")
    a.e(f"s_add_u32 s{S_W2X}, s{S_W2X}, s{S_T1}")
    def rd_bases():
        a.e(f"v_lshrrev_b32 v{t0}, 2, v{V_LANE}")
        a.e(f"v_mul_u32_u24 v{t0}, 288, v{t0}")
        a.e(f"v_and_b32 v{t1}, 3, v{V_LANE}")
        a.e(f"v_lshl_add_u32 v{t2}, v{t1}, 3, v{t0}")
        a.e(f"s_mul_i32 s{S_T0}, s{S_C}, 144")
        a.e(f"v_add_u32 v{V_RD}, s{S_T0}, v{t2}")
        a.e(f"v_mul_u32_u24 v{t1}, 72, v{t1}")
        a.e(f"v_add3_u32 v{V_RD+3}, v{t0}, v{t1}, 32")
        for k in (1, 2):
            a.e(f"v_add_u32 v{V_RD+k}, {49152*k}, v{V_RD}")
            a.e(f"v_add_u32 v{V_RD+3+k}, {49152*k}, v{V_RD+3}")
    rd_bases()
    a.e(f"v_lshlrev_b32 v{V_L8}, 3, v{V_LANE}")
    a.e(f"v_mov_b32 v{V_ONE}, 0x3f803f80")
    a.e(f"s_lshl_b32 s{S_T0}, s{S_RB}, 3")
    a.e(f"s_lshl_b32 s{S_T1}, s{S_R}, 1")
    a.e(f"s_add_u32 s{S_T0}, s{S_T0}, s{S_T1}")
    a.e(f"s_add_u32 s{S_T0}, s{S_T0}, s{S_C}")
    a.e(f"s_mov_b32 s{S_RT0}, s{S_T0}")
    a.e(f"s_xor_b32 s{S_RT1}, s{S_T0}, 1")
    a.e(f"s_lshl_b32 s{S_HB}, s{S_HG}, 3")
    a.e(f"s_lshl_b32 s{S_T1}, s{S_C}, 2")
    a.e(f"s_add_u32 s{S_HB}, s{S_HB}, s{S_T1}")
    a.e(f"s_lshl_b32 s{S_HB}, s{S_HB}, 16")
    a.e(f"s_lshl_b32 s{S_KS}, s{S_RB}, 2")
    a.e(f"s_add_u32 s{S_KS}, s{S_KS}, s{S_R}")
    a.e(f"s_lshl_b32 s{S_KS}, s{S_KS}, 10")
    itk = []

    def after_x():
        a.e(f"v_min_u32 v{t0}, 2, v{V_LANE}")
        a.e(f"v_sub_u32 v{t0}, s{S_RB}, v{t0}")
        a.e(f"v_max_i32 v{t0}, 0, v{t0}")
        a.e(f"v_lshlrev_b32 v{t0}, 2, v{t0}")
        itk.append(G.init_issue(a, t0, t1))
    G.layernorm(a, xtk, after_x=after_x)
    stamp(a, 'f')

    dtk = {}
    SEC = {0: 1152, 1: 2304, 2: 0}

    def dma(Gs, n):
        if Gs >= 37 or Gs == 27:
            return
        p, s = (Gs // 9, Gs % 9) if Gs < 27 else (3, Gs - 28)
        a.e(f"s_add_u32 m0, s{S_WLDS}, {(Gs % NS)*SB + n*1024}")
        if p < 3:
            a.e(f"s_add_u32 s{S_T3}, s{S_W1B}, {s*64*3456 + SEC[p]}")
            v, rs = VD[n], R_W1
        elif s < 8:
            a.e(f"s_add_u32 s{S_T3}, s{S_W2B}, {s*72*1152}")
            v, rs = VD[n], R_W2
        else:
            a.e(f"s_mov_b32 s{S_T3}, s{S_W2X}")
            v, rs = VDX[n], R_W2
        if n == 2:
            a.e("s_mov_b64 exec, 0xffff")
        dtk[Gs] = a.e(f"buffer_load_dwordx4 v{v}, {sr(rs,4)}, s{S_T3} offen lds")
        if n == 2:
            a.e("s_mov_b64 exec, -1")

    def acc(t, rho):
        return ACC + (t * 2 + rho) * 4 if t < 4 else ACC + 32

    TOFF = (0, 40, 72, 112)

    def gemm_pass(p, issue_next, extra_wait=None, after_bar=None, hooks=None):
        swap = (p == 1)
        frags = []
        for ks in range(18):
            Gs = p * 9 + ks // 2 + (1 if p == 3 else 0)
            base = (Gs % NS) * SB + (ks & 1) * 9216
            for t in range(5):
                A = base + (TOFF[t] if t < 4 else 0)
                k = A // 49152
                vb = V_RD + k + (3 if t == 4 else 0)
                im = A - 49152 * k

                def mk(ac, b, first):
                    if swap:
                        return lambda r: f"v_mfma_f32_16x16x32_bf16 {vr(ac,4)}, {vr(b,4)}, {vr(r,4)}, {'0' if first else vr(ac,4)}"
                    return lambda r: f"v_mfma_f32_16x16x32_bf16 {vr(ac,4)}, {vr(r,4)}, {vr(b,4)}, {'0' if first else vr(ac,4)}"
                frags.append(dict(stage=Gs, first=(ks % 2 == 0 and t == 0), rd=[(vb, im), (vb, im + 4608)],
                                  mf=[mk(acc(t, rho), X(rho, ks), ks == 0) for rho in range(2 if t < 4 else 1)]))
        fill = {}
        for s in range(9):
            tgt = p * 9 + s + NS - 2
            if tgt >= (p + 1) * 9 and not issue_next:
                continue
            if p == 3:
                tgt += 1
            n0 = max(s * 10 - PD + 2, 0)
            for n in range(3):
                fill.setdefault(n0 + 2 * n, []).append(lambda tgt=tgt, n=n: dma(tgt, n))

        for n_, fn in (hooks or {}).items():
            fill.setdefault(n_, []).extend(fn)

        def on_stage(Gs):
            tk = dtk[Gs]
            if extra_wait and Gs in extra_wait:
                tk = max(tk, extra_wait[Gs])
            a.wait_vm(tk)
            a.e("s_barrier")
            if after_bar and Gs in after_bar:
                after_bar[Gs]()
        G.run_stream(a, frags, fill, on_stage)

    def pack_pairs(name):
        a.e(f"s_cmp_eq_u32 s{S_C}, 0")
        a.e(f"s_cbranch_scc0 L_pp_{name}1")
        for cc in range(2):
            if cc:
                a.e(f"s_branch L_pp_{name}x")
                a.raw(f"L_pp_{name}1:")
                a.e("s_nop 7")
            for t in range(4):
                A, B = acc(t, 0), acc(t, 1)
                if cc == 0:
                    a.e(f"v_cvt_pk_bf16_f32 v{A}, v{A}, v{A+1}")
                    a.e(f"v_cvt_pk_bf16_f32 v{A+1}, v{A+2}, v{A+3}")
                    a.e(f"v_cvt_pk_bf16_f32 v{A+2}, v{B}, v{B+1}")
                    a.e(f"v_cvt_pk_bf16_f32 v{A+3}, v{B+2}, v{B+3}")
                else:
                    a.e(f"v_cvt_pk_bf16_f32 v{A+3}, v{A+2}, v{A+3}")
                    a.e(f"v_cvt_pk_bf16_f32 v{A+2}, v{A}, v{A+1}")
                    a.e(f"v_cvt_pk_bf16_f32 v{A}, v{B}, v{B+1}")
                    a.e(f"v_cvt_pk_bf16_f32 v{A+1}, v{B+2}, v{B+3}")
        a.raw(f"L_pp_{name}x:")

    def store_pairs(base):
        for t in range(4):
            a.e(f"s_add_u32 s{S_T0}, s{S_KS}, s{S_HB}")
            a.e(f"s_add_u32 s{S_T0}, s{S_T0}, {base + t*65536}")
            a.e(f"buffer_store_dwordx4 {vr(acc(t,0),4)}, v{V_L16}, {sr(R_WS,4)}, s{S_T0} offen sc1")

    def epi_kq(base0, basex, scale):
        pack_pairs("k")
        store_pairs(base0)
        A = acc(4, 0)
        a.e(f"v_cvt_pk_bf16_f32 v{A}, v{A}, v{A+1}")
        a.e(f"v_cvt_pk_bf16_f32 v{A+1}, v{A+2}, v{A+3}")
        a.e(f"s_lshl_b32 s{S_T0}, s{S_RT0}, 9")
        a.e(f"s_lshl_b32 s{S_T1}, s{S_HG}, 16")
        a.e(f"s_add_u32 s{S_T0}, s{S_T0}, s{S_T1}")
        a.e(f"s_add_u32 s{S_T0}, s{S_T0}, {basex}")
        return a.e(f"buffer_store_dwordx2 {vr(A,2)}, v{V_L8}, {sr(R_WS,4)}, s{S_T0} offen sc1")

    def epi_v():
        pack_pairs("v")
        store_pairs(G.V0)
        A = acc(4, 0)
        a.e(f"v_cvt_pk_bf16_f32 v{A}, v{A}, v{A+1}")
        a.e(f"v_cvt_pk_bf16_f32 v{A+1}, v{A+2}, v{A+3}")
        a.e(f"v_and_b32 v{t0}, 8, v{V_LANE}")
        a.e(f"v_cmp_eq_u32 vcc, 0, v{t0}")
        a.e(f"v_cndmask_b32 v{A+2}, v{V_ONE}, v{A}, vcc")
        a.e(f"v_cndmask_b32 v{A+3}, v{V_ONE}, v{A+1}, vcc")
        a.e(f"v_cndmask_b32 v{A}, v{A}, v{V_ONE}, vcc")
        a.e(f"v_cndmask_b32 v{A+1}, v{A+1}, v{V_ONE}, vcc")
        a.e(f"s_lshl_b32 s{S_T0}, s{S_C}, 3")
        a.e(f"s_add_u32 s{S_T0}, s{S_T0}, s{S_KS}")
        a.e(f"s_lshl_b32 s{S_T1}, s{S_HG}, 17")
        a.e(f"s_add_u32 s{S_T0}, s{S_T0}, s{S_T1}")
        a.e(f"s_add_u32 s{S_T0}, s{S_T0}, {G.VX}")
        a.e(f"buffer_store_dwordx2 {vr(A+2,2)}, v{V_L16}, {sr(R_WS,4)}, s{S_T0} offen sc1")
        a.e(f"s_add_u32 s{S_T0}, s{S_T0}, 65536")
        tk = a.e(f"buffer_store_dwordx2 {vr(A,2)}, v{V_L16}, {sr(R_WS,4)}, s{S_T0} offen sc1")
        return tk

    def set_flag(val, name):
        a.e(f"s_cmp_eq_u32 s{S_W}, 0")
        a.e(f"s_cbranch_scc0 L_fl_{name}")
        a.e(f"s_lshl_b32 s{S_T0}, s{S_RB}, 11")
        a.e(f"s_lshl_b32 s{S_T1}, s{S_HG}, 2")
        a.e(f"s_add_u32 s{S_T0}, s{S_T0}, s{S_T1}")
        a.e(f"s_add_u32 s{S_T0}, s{S_T0}, {G.FLG}")
        a.e(f"v_mov_b32 v{t0}, {val}")
        a.e(f"v_mov_b32 v{t1}, 0")
        a.e("s_mov_b64 exec, 1")
        a.e_untracked(f"buffer_store_dword v{t0}, v{t1}, {sr(R_WS,4)}, s{S_T0} offen sc1")
        a.e("s_mov_b64 exec, -1")
        a.raw(f"L_fl_{name}:")

    def poll(name, vaddr, vtmp, want, one_wave=True):
        if one_wave:
            a.e(f"s_cmp_eq_u32 s{S_W}, 0")
            a.e(f"s_cbranch_scc0 L_poll_{name}_x")
        a.e(f"s_mov_b32 s{S_T2}, 0")
        a.e(f"s_mov_b32 s{S_T0}, {G.FLG}")
        a.raw(f"L_poll_{name}:")
        a.e_untracked(f"buffer_load_dword v{vtmp}, v{vaddr}, {sr(R_WS,4)}, s{S_T0} offen sc1")
        a.e(f"s_add_u32 s{S_T2}, s{S_T2}, 1")
        a.e(f"s_cmp_gt_u32 s{S_T2}, 0x40000")
        a.e(f"s_cbranch_scc1 L_poll_{name}_x")
        a.e("s_waitcnt vmcnt(0)")
        a.e(f"v_cmp_gt_u32 vcc, {want}, v{vtmp}")
        a.e(f"s_cbranch_vccz L_poll_{name}_x")
        a.e("s_sleep 2")
        a.e(f"s_branch L_poll_{name}")
        a.raw(f"L_poll_{name}_x:")
        if one_wave:
            a.e("s_barrier")

    for Gs in range(NS - 2):
        for n in range(3):
            dma(Gs, n)
    G.init_check(a, "a", t0, t1, itk[0])
    stamp(a, 'n')
    gemm_pass(0, True)
    stamp(a, 'o')
    epi_kq(G.K0, G.KX, False)
    stamp(a, 'p')
    gemm_pass(1, True)
    stamp(a, 'q')
    tkv = epi_v()
    stamp(a, 'r')
    order = [X(r_, s_) for s_ in range(18) for r_ in range(2)]
    want = [x_ for g_ in (8, 4, 0) for i_ in range(4) for x_ in (('k', 2 * (g_ + i_)), ('v', g_ + i_))] + \
           [('k', 2 * i_ + 1) for i_ in range(12)]
    RM = {w_: order[i_] for i_, w_ in enumerate(want)}

    def KR(k):
        return RM[('k', k)]

    def VR(v):
        return RM[('v', v)]
    TQ, MQ, CQ, QA, O0, OX, VXB = 16, 48, 52, 60, 68, 12, 92
    vNEG, vM, vT1, vT2, vOA, vOB = 86, 87, 88, 89, 90, 91
    vQ, vVX = 248, 249
    XS = 250
    vL8 = V_L8
    S_P, S_KT0 = 71, 73
    M = [4, 6, 8, 10]
    MQ0, MQ1, MVER, MODD, MP = 12, 14, 16, 18, 100
    SO = [75, 69, 70]
    LQ0, LQX, LKX, LVX = 0, 32768, 36864, 49152
    XK, XV = 86, 92
    vS1, vS2 = 250, 251

    def mk_srd(rs, off_sgpr, size=65536):
        a.e(f"s_add_u32 s{rs}, s{G.S_WS}, s{off_sgpr}")
        a.e(f"s_addc_u32 s{rs+1}, s{G.S_WS+1}, 0")
        a.e(f"s_mov_b32 s{rs+2}, {size}")
        a.e(f"s_mov_b32 s{rs+3}, 0x20000")
    tks_ = {}

    def att_setup():
        a.e(f"s_lshr_b32 s{S_P}, s{S_W}, 1")
        a.e(f"s_lshl_b32 s{S_KT0}, s{S_RB}, 3")
        a.e(f"s_sub_u32 s{S_KT0}, s{S_KT0}, 16")
        for b in range(3):
            a.e(f"s_add_u32 s{S_T0}, s{S_KT0}, {8*b}")
            a.e(f"s_lshl_b32 s{SO[b]}, s{S_T0}, 9")
            a.e(f"s_cmp_lt_i32 s{S_T0}, 0")
            a.e(f"s_cselect_b32 s{SO[b]}, 0x70000000, s{SO[b]}")
        a.e(f"s_lshl_b32 s{S_T0}, s{S_HG}, 16")
        a.e(f"s_add_u32 s{S_T0}, s{S_T0}, {G.KX}")
        mk_srd(R_X, S_T0)
        a.e(f"s_lshl_b32 s{S_T0}, s{S_HG}, 1")
        a.e(f"s_add_u32 s{S_T0}, s{S_T0}, s{S_C}")
        a.e(f"s_lshl_b32 s{S_T0}, s{S_T0}, 16")
        a.e(f"s_add_u32 s{S_T0}, s{S_T0}, {G.VX}")
        mk_srd(R_W1, S_T0)
        a.e(f"s_lshl_b32 s{S_T1}, s{S_HG}, 3")
        a.e(f"s_add_u32 s{S_T1}, s{S_T1}, s{S_W}")
        a.e(f"s_lshl_b32 s{S_T1}, s{S_T1}, 16")
        for rs, base in ((R_A, G.K0), (R_B, G.V0)):
            a.e(f"s_add_u32 s{S_T0}, s{S_T1}, {base}")
            mk_srd(rs, S_T0)
        a.e(f"s_lshl_b32 s{S_T2}, s{S_W}, 9")
        a.e(f"v_add_u32 v{vS1}, s{S_T2}, v{vL8}")
        a.e(f"s_lshl_b32 s{S_T2}, s{S_R}, 10")
        a.e(f"v_add_u32 v{vS2}, s{S_T2}, v{V_L16}")

    def att_poll():
        a.e(f"v_and_b32 v{t0}, 1, v{V_LANE}")
        a.e(f"v_add_u32 v{t0}, 1, v{t0}")
        a.e(f"v_sub_u32 v{t0}, s{S_RB}, v{t0}")
        a.e(f"v_max_i32 v{t0}, 0, v{t0}")
        a.e(f"v_lshlrev_b32 v{t0}, 11, v{t0}")
        a.e(f"s_lshl_b32 s{S_T0}, s{S_HG}, 2")
        a.e(f"v_add_u32 v{t0}, s{S_T0}, v{t0}")
        poll("kv", t0, t1, 1, one_wave=False)

    def lsh(b):
        def f():
            a.e(f"buffer_load_dwordx2 {vr(XK+2*b,2)}, v{vS1}, {sr(R_X,4)}, s{SO[b]} offen sc1")
            tks_['sh'] = a.e(f"buffer_load_dwordx4 {vr(XV+4*b,4)}, v{vS2}, {sr(R_W1,4)}, s{SO[b]} offen sc1")
        return f

    def lk(k):
        def f():
            tks_['kv'] = a.e(f"buffer_load_dwordx4 {vr(KR(k),4)}, v{V_L16}, {sr(R_A,4)}, s{SO[k//8]} offen offset:{(k%8)*512} sc1")
        return f

    def lv(k):
        def f():
            tks_['kv'] = a.e(f"buffer_load_dwordx4 {vr(VR(k),4)}, v{V_L16}, {sr(R_B,4)}, s{SO[k//4]} offen offset:{(k%4)*1024} sc1")
        return f
    FST = int(os.environ.get("FST", "3"))
    KSP = int(os.environ.get("KSP", "12"))
    lds_ = [(lk if w_[0] == 'k' else lv)(w_[1]) for w_ in want[:24]]
    n_own = FST * 10 - PD + 2
    hooks = {n_own: [att_setup]}
    rest = []
    pos = n_own + 1
    for i_, f_ in enumerate([lsh(2)] + lds_[:8]):
        free_at = ((i_ - 1) // 2 + 1) * 5 + 1
        pos = max(pos + 1, free_at)
        hooks.setdefault(pos, []).append(f_)
    hooks.setdefault(KSP * 5, []).append(att_poll)
    pos = KSP * 5
    for i_, f_ in enumerate([lsh(1), lsh(0)] + lds_[8:]):
        qi = i_ - 2 + 8
        free_at = (qi // 2 + 1) * 5 + 1 if i_ >= 2 else 0
        pos = max(pos + 1, free_at)
        if pos < 89:
            hooks.setdefault(pos, []).append(f_)
        else:
            rest.append(f_)
    gemm_pass(2, False, extra_wait={18 + FST: tkv}, after_bar={18 + FST: lambda: set_flag(1, "kv")}, hooks=hooks)
    for f_ in rest:
        f_()
    tsh = tks_['sh']
    tvv = [tks_['kv']]
    for t in range(5):
        for rho in range(2 if t < 4 else 1):
            A = acc(t, rho)
            for i in range(4):
                a.e(f"v_mul_f32 v{A+i}, 0x{qs:x}, v{A+i}")
            a.e(f"v_cvt_pk_bf16_f32 v{A}, v{A}, v{A+1}")
            a.e(f"v_cvt_pk_bf16_f32 v{A+1}, v{A+2}, v{A+3}")
    a.e(f"s_and_b32 s{S_T0}, s{S_RT0}, 7")
    a.e(f"s_lshl_b32 s{S_T0}, s{S_T0}, 9")
    a.e(f"v_add_u32 v252, s{S_T0}, v{vL8}")
    a.e(f"s_lshl_b32 s{S_T1}, s{S_C}, 14")
    a.e(f"v_add_u32 v253, s{S_T1}, v252")
    a.e(f"v_xor_b32 v254, 512, v253")
    stamp(a, 'i')
    a.wait_lg0()
    a.e("s_barrier")
    for t in range(4):
        for rho in range(2):
            a.e(f"ds_write_b64 v{253 if rho == 0 else 254}, {vr(acc(t,rho),2)} offset:{LQ0 + t*4096}")
    a.e(f"ds_write_b64 v252, {vr(acc(4,0),2)} offset:{LQX}")
    a.e(f"s_mul_i32 s{S_T1}, s{S_C}, 12288")
    a.e(f"v_add_u32 v{vS2}, s{S_T1}, v{vS2}")
    a.wait_vm(tsh)
    for b in range(3):
        a.e(f"ds_write_b64 v{vS1}, {vr(XK+2*b,2)} offset:{LKX + b*4096}")
        a.e(f"ds_write_b128 v{vS2}, {vr(XV+4*b,4)} offset:{LVX + b*4096}")
    a.wait_lg0()
    a.e(f"v_mov_b32 v{vNEG}, 0xf149f2ca")
    a.e(f"v_and_b32 v{vT1}, 15, v{V_LANE}")
    a.e(f"v_lshrrev_b32 v{vT2}, 4, v{V_LANE}")
    a.e(f"v_cmp_eq_u32 {sr(MP,2)}, s{S_P}, v{vT2}")
    a.e(f"v_lshlrev_b32 v{vT2}, 2, v{vT2}")
    for i in range(4):
        a.e(f"v_add_u32 v{vM}, {i}, v{vT2}")
        a.e(f"v_cmp_gt_u32 {sr(M[i],2)}, v{vM}, v{vT1}")
    a.e(f"s_cmp_lt_u32 s{S_P}, 2")
    a.e(f"s_cselect_b64 {sr(MVER,2)}, -1, 0")
    a.e(f"s_bitcmp0_b32 s{S_W}, 0")
    a.e(f"s_cselect_b64 {sr(MQ0,2)}, {sr(MP,2)}, 0")
    a.e(f"s_cselect_b64 {sr(MQ1,2)}, 0, {sr(MP,2)}")
    a.e(f"s_cselect_b64 {sr(MODD,2)}, 0, -1")
    a.e(f"s_lshl_b32 s{S_T0}, s{S_W}, 12")
    a.e(f"v_add_u32 v{vQ}, s{S_T0}, v{vL8}")
    a.e(f"s_mul_i32 s{S_T0}, s{S_C}, 12288")
    a.e(f"s_add_u32 s{S_T0}, s{S_T0}, {LVX}")
    a.e(f"v_add_u32 v{vVX}, s{S_T0}, v{V_L16}")
    S_OA, S_OB = 72, 74
    vO = 252
    a.e(f"s_mul_i32 s{S_T0}, s{S_RB}, {4*36864}")
    a.e(f"s_add_u32 s{S_T0}, s{S_T0}, {G.OF}")
    a.e(f"s_lshl_b32 s{S_T1}, s{S_HG}, 3")
    a.e(f"s_add_u32 s{S_T1}, s{S_T1}, s{S_W}")
    a.e(f"s_lshl_b32 s{S_T1}, s{S_T1}, 10")
    a.e(f"s_add_u32 s{S_OA}, s{S_T1}, s{S_T0}")
    a.e(f"s_add_u32 s{S_T1}, s{S_HG}, 32")
    a.e(f"s_lshl_b32 s{S_T1}, s{S_T1}, 10")
    a.e(f"s_and_b32 s{S_T3}, s{S_W}, 1")
    a.e(f"s_lshl_b32 s{S_T2}, s{S_T3}, 2")
    a.e(f"s_add_u32 s{S_T1}, s{S_T1}, s{S_T2}")
    a.e(f"s_add_u32 s{S_OB}, s{S_T1}, s{S_T0}")
    a.e(f"v_bfe_u32 v{vT2}, v{V_LANE}, 4, 1")
    a.e(f"v_lshlrev_b32 v{vO}, 9, v{vT2}")
    a.e(f"v_lshl_add_u32 v{vO}, v{vT1}, 4, v{vO}")
    a.e(f"v_lshrrev_b32 v{vT2}, 5, v{V_LANE}")
    a.e(f"v_lshl_add_u32 v{vO}, v{vT2}, 3, v{vO}")
    a.wait_lg0()
    a.e("s_barrier")
    a.wait_vm(tvv[-1])
    for k in range(0, 24, 2):
        a.e(f"v_mov_b32 v{KR(k+1)}, v{KR(k)+2}")
        a.e(f"v_mov_b32 v{KR(k+1)+1}, v{KR(k)+3}")
    for k in range(24):
        a.e(f"ds_read_b64 {vr(KR(k)+2,2)}, v{vL8} offset:{LKX + k*512}")

    def ld_q(j):
        q = QA + 4 * (j & 1)
        a.e(f"ds_read_b64 {vr(q,2)}, v{vQ} offset:{LQ0 + j*512}")
        return a.e(f"ds_read_b64 {vr(q+2,2)}, v{vL8} offset:{LQX + j*512}")
    ld_q(0)
    a.wait_vm(tvv[-1])
    a.wait_lg0()
    stamp(a, 'k')
    a.e(f"s_cmp_lt_i32 s{S_KT0}, 0")
    a.e("s_cbranch_scc1 L_head_neg")

    def heads(neg):
        sfx = "_neg" if neg else ""
        a.raw(f"L_head{sfx}:")
        a.barrier_hist()
        tq = None
        for j in range(8):
            o = j & 1
            q = QA + 4 * (j & 1)
            PM = os.environ.get("APRIO", "none")
            if PM == "alt" or (PM == "young" and j == 0):
                a.e(f"s_cmp_eq_u32 s{S_C}, {(j + 1) & 1}")
                a.e(f"s_cbranch_scc1 L_pr{sfx}{j}a")
                a.e("s_setprio 0")
                a.e(f"s_branch L_pr{sfx}{j}b")
                a.raw(f"L_pr{sfx}{j}a:")
                a.e("s_setprio 1")
                a.raw(f"L_pr{sfx}{j}b:")
            if tq is not None:
                a.wait_lg(tq)
            a.e(f"v_cndmask_b32 v{q+2}, 0, v{q+2}, {sr(MQ0,2)}")
            a.e(f"v_cndmask_b32 v{q+3}, 0, v{q+3}, {sr(MQ1,2)}")
            if j < 7:
                tq = ld_q(j + 1)
            if neg:
                for b in range(2):
                    a.e(f"s_cmp_eq_u32 s{SO[b]}, 0x70000000")
                    a.e(f"s_cselect_b32 s{S_T0}, 0xf149f2ca, 0")
                    for i in range(4):
                        a.e(f"v_mov_b32 v{CQ+4*b+i}, s{S_T0}")

            def cin(k, second):
                b = k >> 3
                if neg and b < 2:
                    return vr(CQ + 4 * b, 4)
                return vr(MQ, 4) if second else "0"
            LA = 4

            def tq_(t):
                return TQ + 4 * (t % 8)

            def s1(t):
                a.e(f"v_mfma_f32_16x16x32_bf16 {vr(tq_(t),4)}, {vr(KR(j+t),4)}, {vr(q,4)}, {cin(j+t, False)}")
            for t in range(LA):
                s1(t)
            for t in range(17):
                if t + LA < 17:
                    s1(t + LA)
                r = tq_(t)
                if t == 0:
                    for i in range(4):
                        a.e(f"v_cndmask_b32 v{r+i}, v{vNEG}, v{r+i}, {sr(M[i],2)}")
                    a.e(f"v_max_f32 v{vM}, v{r}, v{r+1}")
                    a.e(f"v_max_f32 v{vT1}, v{r+2}, v{r+3}")
                    continue
                if t == 16:
                    for i in range(4):
                        a.e(f"v_cndmask_b32 v{r+i}, v{r+i}, v{vNEG}, {sr(M[i],2)}")
                a.e(f"v_max3_f32 v{vM}, v{vM}, v{r}, v{r+1}")
                a.e(f"v_max3_f32 v{vT1}, v{vT1}, v{r+2}, v{r+3}")
            tvx = {}

            def ld_vx(u):
                tvx[u] = a.e(f"ds_read_b128 {vr(VXB+4*(u%3),4)}, v{vVX} offset:{((j>>1)+u)*1024}")
            ld_vx(0)
            ld_vx(1)
            a.e(f"v_max_f32 v{vM}, v{vM}, v{vT1}")
            a.e(f"v_mov_b32 v{vT1}, v{vM}")
            a.e(f"v_permlane32_swap_b32 v{vM}, v{vT1}")
            a.e(f"v_max_f32 v{vM}, v{vM}, v{vT1}")
            a.e(f"v_mov_b32 v{vT1}, v{vM}")
            a.e(f"v_permlane16_swap_b32 v{vM}, v{vT1}")
            a.e(f"v_max_f32 v{vM}, v{vM}, v{vT1}")
            for i in range(4):
                a.e(f"v_sub_f32 v{MQ+i}, 0, v{vM}")
            if neg:
                for b in range(2):
                    for i in range(4):
                        a.e(f"v_add_f32 v{CQ+4*b+i}, v{CQ+4*b+i}, v{MQ}")

            def sq(sl):
                return TQ + 4 * (sl % 8)

            def s2m(sl):
                t = sl - o
                if 0 <= t <= 16:
                    return [f"v_mfma_f32_16x16x32_bf16 {vr(sq(sl),4)}, {vr(KR(j+t),4)}, {vr(q,4)}, {cin(j+t, True)}"]
                return []

            def pvm(u):
                vs = (j >> 1) + u
                return [f"v_mfma_f32_16x16x32_bf16 {vr(O0,4)}, {vr(VR(vs),4)}, {vr(sq(2*u),4)}, {vr(O0,4) if u else '0'}",
                        f"v_mfma_f32_16x16x32_bf16 {vr(OX,4)}, {vr(VXB+4*(u%3),4)}, {vr(sq(2*u),4)}, {vr(OX,4) if u else '0'}"]
            for sl in range(4):
                for m_ in s2m(sl):
                    a.e(m_)
            for u in range(9):
                mm = (pvm(u - 1) if u else []) + (s2m(2 * u + 4) + s2m(2 * u + 5) if u + 2 < 9 else [])
                if u:
                    a.wait_lg(tvx[u - 1])
                vv = []
                for h in range(2):
                    sl = 2 * u + h
                    t = sl - o
                    if not 0 <= t <= 16:
                        continue
                    r = sq(sl)
                    if t == 0:
                        vv += [f"v_cndmask_b32 v{r+i}, v{vNEG}, v{r+i}, {sr(M[i],2)}" for i in range(4)]
                    if t == 16:
                        vv += [f"v_cndmask_b32 v{r+i}, v{r+i}, v{vNEG}, {sr(M[i],2)}" for i in range(4)]
                    vv += [f"v_exp_f32 v{r+i}, v{r+i}" for i in range(4)]
                for h in range(2):
                    sl = 2 * u + h
                    t = sl - o
                    for k2 in range(2):
                        d = sq(2 * u) + 2 * h + k2
                        vv.append(f"v_cvt_pk_bf16_f32 v{d}, v{sq(sl)+2*k2}, v{sq(sl)+2*k2+1}" if 0 <= t <= 16 else f"v_mov_b32 v{d}, 0")
                step = max(1, len(vv) // max(1, len(mm)))
                for k_, v_ in enumerate(vv):
                    if mm and k_ % step == 0:
                        a.e(mm.pop(0))
                    a.e(v_)
                for m_ in mm:
                    a.e(m_)
                if u + 2 < 9:
                    ld_vx(u + 2)
            a.wait_lg(tvx[8])
            for m_ in pvm(8):
                a.e(m_)
            a.e(f"v_mov_b32 v{vT1}, v{OX}")
            a.e(f"v_mov_b32 v{vT2}, v{OX}")
            a.e(f"v_permlane32_swap_b32 v{vT1}, v{vT2}")
            a.e(f"v_cndmask_b32 v{vT1}, v{vT1}, v{vT2}, {sr(MVER,2)}")
            a.e(f"v_rcp_f32 v{vT1}, v{vT1}")
            a.e(f"v_cndmask_b32 v{OX}, v{OX}, v{OX+2}, {sr(MODD,2)}")
            a.e(f"v_cndmask_b32 v{OX+1}, v{OX+1}, v{OX+3}, {sr(MODD,2)}")
            for i in range(4):
                a.e(f"v_mul_f32 v{O0+i}, v{O0+i}, v{vT1}")
            a.e(f"v_mul_f32 v{OX}, v{OX}, v{vT1}")
            a.e(f"v_mul_f32 v{OX+1}, v{OX+1}, v{vT1}")
            a.e(f"v_cvt_pk_bf16_f32 v{vOA}, v{O0}, v{O0+1}")
            a.e(f"v_cvt_pk_bf16_f32 v{vOB}, v{O0+2}, v{O0+3}")
            a.e(f"v_cvt_pk_bf16_f32 v{vT2}, v{OX}, v{OX+1}")
            a.e(f"s_add_u32 s{S_T1}, s{S_OA}, {(j>>1)*36864 + (j&1)*256}")
            a.e(f"buffer_store_dwordx2 {vr(vOA,2)}, v{vO}, {sr(R_WS,4)}, s{S_T1} offen sc1")
            a.e(f"s_add_u32 s{S_T1}, s{S_OB}, {(j>>1)*36864 + (j&1)*256}")
            a.e(f"s_mov_b64 exec, {sr(MP,2)}")
            a.e(f"buffer_store_dword v{vT2}, v{vO}, {sr(R_WS,4)}, s{S_T1} offen sc1")
            a.e("s_mov_b64 exec, -1")
        if not neg:
            a.e("s_branch L_att_done")
    heads(False)
    heads(True)
    ool = []
    a.raw("L_att_done:")
    a.barrier_hist()
    a.e("s_setprio 0")
    stamp(a, 'j')
    def assign():
        a.e(f"s_lshl_b32 s{G.T_CE}, s{S_HG}, 6")
        a.e(f"s_lshr_b32 s{S_T0}, s{S_HG}, 1")
        a.e(f"s_add_u32 s{S_T0}, s{S_T0}, 4")
        a.e(f"s_lshl_b32 s{G.T_CL}, s{S_T0}, 6")
        a.e(f"s_and_b32 s{S_T0}, s{S_HG}, 1")
        a.e(f"s_lshl_b32 s{S_T0}, s{S_T0}, 1")
        a.e(f"s_and_b32 s{S_T1}, s{S_W}, 1")
        a.e(f"s_add_u32 s{S_T0}, s{S_T0}, s{S_T1}")
        a.e(f"s_cmp_eq_u32 s{S_C}, 0")
        a.e(f"s_cselect_b32 s{G.T_TR}, s{S_R}, s{S_T0}")
        a.e(f"s_cmp_lt_u32 s{S_W}, 6")
        a.e(f"s_cselect_b32 s{G.T_ACT}, 1, 0")

    def between():
        stamp(a, 'l')
        set_flag(2, "o")
    G.tail(a, "a", assign, between, late_c1=False)
    stamp(a, 'h')
    G.stamp_out(a)
    a.e("s_endpgm")
    for t_ in ool:
        a.raw(t_)
```

```python
import sys
from asmlib import Asm, vr, sr

HS = 0x0000000
PART = 0x1200000
PSZ = 2359296
QF = 0x3000000
K0 = 0x3400000
V0 = 0x3600000
KX = 0x3800000
VX = 0x3840000
OF = 0x3900000
FLG = 0x3E00000
WS_SZ = 0x4000000
XBASE = 16384
LDS_SZ = 163840
LOG2E = 0x3FB8AA3B
NLOG2E = 0xBFB8AA3B

S_X, S_WQKV, S_WO, S_BX, S_WG, S_WU, S_WD, S_OUT, S_DBG, S_WS = 4, 6, 8, 10, 12, 14, 16, 18, 20, 22
R_X, R_W1, R_W2, R_WS, R_DBG, R_A, R_B = 24, 28, 32, 36, 40, 44, 48
S_W, S_R, S_C, S_RB, S_SPLIT, S_T0, S_T1, S_T2, S_T3 = 52, 53, 54, 55, 56, 57, 58, 59, 60
S_WLDS, S_W1B, S_W2B, S_H0, S_H1, S_P0, S_P1, S_NL2E, S_XREG, S_XPAR = 61, 62, 63, 64, 65, 66, 67, 68, 69, 70
S_HG = S_SPLIT

V_LANE, V_L16, V_D1, V_D2 = 1, 2, 3, 4
V_RD = 5
V_T = 11
FR = 16
NFR = int(__import__("os").environ.get("NFR", "6"))
PD = NFR - 2
ACC = 40
XN = 104


def X(rho, s):
    return XN + (rho * 18 + s) * 4


def X32(s):
    return XN + s * 4


import os
STAMP = int(os.environ.get("STAMP", "0"))
def FLAG(n):
    return int(os.environ.get(n, "0"))
MAPC = int(os.environ.get("MAPC", "0"))
_nst = [0]
STSEL = os.environ.get("STSEL", "a,b,f,g,h").split(",")
def stamp(a, name="a"):
    if not STAMP or name not in STSEL:
        return
    k = _nst[0]; _nst[0] += 1
    a.e(f"s_memtime s[{76+4*k}:{77+4*k}]")
    a.e(f"s_memrealtime s[{78+4*k}:{79+4*k}]")
    a.wait_lg0()

def stamp_out(a):
    if not STAMP:
        return
    n = _nst[0]; _nst[0] = 0
    a.e(f"s_lshl_b32 s{S_T0}, s2, 6")
    a.e(f"s_add_u32 s{S_T0}, s{S_T0}, 0x3F00000")
    a.e(f"v_mov_b32 v20, 0")
    a.e(f"s_cmp_eq_u32 s{S_W}, {os.environ.get('STW', '0')}")
    a.e(f"s_cbranch_scc0 L_nostamp{id(a)}_{a.nins}")
    lab = a.out[-1].split()[-1]
    for k in range(n):
        a.e(f"v_mov_b32 v16, s{76+4*k}")
        a.e(f"v_mov_b32 v17, s{78+4*k}")
        a.e(f"buffer_store_dwordx2 v[16:17], v20, {sr(R_WS,4)}, s{S_T0} offen offset:{8*k}")
        a.e("s_nop 2")
    a.label(lab)


def srd(a, d, base, nbytes):
    a.e(f"s_mov_b32 s{d}, s{base}")
    a.e(f"s_mov_b32 s{d+1}, s{base+1}")
    a.e(f"s_mov_b32 s{d+2}, {nbytes}")
    a.e(f"s_mov_b32 s{d+3}, 0x20000")


def bf16_round(a, v, tmp=None):
    a.e(f"v_cvt_pk_bf16_f32 v{v}, v{v}, v{v}")
    a.e(f"v_lshlrev_b32 v{v}, 16, v{v}")


def x_stage_issue(a):
    t0, t1, t2 = V_T, V_T + 1, V_T + 2
    a.e(f"v_lshrrev_b32 v{t0}, 3, v{V_LANE}")
    a.e(f"v_and_b32 v{t1}, 7, v{V_LANE}")
    a.e(f"v_lshrrev_b32 v{t2}, 1, v{t0}")
    a.e(f"v_xor_b32 v{t1}, v{t1}, v{t2}")
    a.e(f"v_mul_u32_u24 v{t0}, 1152, v{t0}")
    a.e(f"v_lshl_add_u32 v{t2}, v{t1}, 4, v{t0}")
    a.e(f"v_xor_b32 v{t1}, 4, v{t1}")
    a.e(f"v_lshl_add_u32 v{t1}, v{t1}, 4, v{t0}")
    a.e(f"v_add_u32 v{t1}, {8*1152-1024}, v{t1}")
    a.e(f"s_lshl_b32 s{S_T0}, s{S_RB}, 7")
    a.e(f"s_lshl_b32 s{S_T1}, s{S_R}, 5")
    a.e(f"s_add_u32 s{S_T0}, s{S_T0}, s{S_T1}")
    a.e(f"s_lshl_b32 s{S_T1}, s{S_C}, 4")
    a.e(f"s_add_u32 s{S_T0}, s{S_T0}, s{S_T1}")
    a.e(f"s_mul_i32 s{S_T0}, s{S_T0}, 1152")
    a.e(f"s_lshl_b32 s{S_T1}, s{S_R}, 1")
    a.e(f"s_add_u32 s{S_T2}, s{S_T1}, s{S_C}")
    a.e(f"s_mul_i32 s{S_XREG}, s{S_T2}, 18432")
    a.e(f"s_add_u32 s{S_XREG}, s{S_XREG}, {XBASE}")
    a.e(f"s_xor_b32 s{S_T2}, s{S_T2}, 1")
    a.e(f"s_mul_i32 s{S_XPAR}, s{S_T2}, 18432")
    a.e(f"s_add_u32 s{S_XPAR}, s{S_XPAR}, {XBASE}")
    tk = None
    a.e(f"s_lshr_b32 s{S_T2}, s2, {5 if MAPC else 6}")
    a.e(f"s_lshl_b32 s{S_T2}, s{S_T2}, {7 if MAPC else 8}")
    for cb in range(9):
        a.e(f"s_lshl_b32 s{S_T3}, s{S_T2}, 4")
        a.e(f"s_add_u32 m0, s{S_XREG}, s{S_T3}")
        a.e(f"s_add_u32 s{S_T1}, s{S_T0}, s{S_T2}")
        a.e(f"buffer_load_dwordx4 v{t2}, {sr(R_X,4)}, s{S_T1} offen lds")
        tk = a.e(f"buffer_load_dwordx4 v{t1}, {sr(R_X,4)}, s{S_T1} offen offset:1024 lds")
        if cb < 8:
            a.e(f"s_add_u32 s{S_T2}, s{S_T2}, 128")
            a.e(f"s_cmp_eq_u32 s{S_T2}, 1152")
            a.e(f"s_cselect_b32 s{S_T2}, 0, s{S_T2}")
    return tk


def init_issue(a, vaddr, vtmp):
    return a.e(f"buffer_load_dword v{vtmp}, v{vaddr}, {sr(R_DBG,4)}, 0 offen sc1")


def init_check(a, name, vaddr, vtmp, tk):
    a.wait_vm(tk)
    a.e(f"v_cmp_eq_u32 vcc, 0, v{vtmp}")
    a.e(f"s_cbranch_vccz L_ic_{name}_x")
    a.e(f"s_mov_b32 s{S_T2}, 0")
    a.raw(f"L_ic_{name}:")
    a.e_untracked(f"buffer_load_dword v{vtmp}, v{vaddr}, {sr(R_DBG,4)}, 0 offen sc1")
    a.e(f"s_add_u32 s{S_T2}, s{S_T2}, 1")
    a.e(f"s_cmp_gt_u32 s{S_T2}, 0x40000")
    a.e(f"s_cbranch_scc1 L_ic_{name}_x")
    a.e("s_waitcnt vmcnt(0)")
    a.e(f"v_cmp_eq_u32 vcc, 0, v{vtmp}")
    a.e(f"s_cbranch_vccnz L_ic_{name}")
    a.raw(f"L_ic_{name}_x:")


def layernorm(a, xtk, after_x=None, m32=False):
    T = ACC
    m, q = T, T + 1
    a.e(f"v_and_b32 v{m}, 15, v{V_LANE}")
    a.e(f"v_lshrrev_b32 v{q}, 4, v{V_LANE}")
    b = T + 2
    a.e(f"v_and_b32 v{b}, 1, v{q}")
    a.e(f"v_lshlrev_b32 v{b}, 3, v{b}")
    a.e(f"v_lshl_add_u32 v{b}, v{m}, 7, v{b}")
    a.e(f"v_add_u32 v{b}, s{S_XREG}, v{b}")
    sw = T + 3
    a.e(f"v_lshrrev_b32 v{sw}, 1, v{m}")
    if m32:
        a.e(f"v_and_b32 v{T+4}, 2, v{q}")
    else:
        a.e(f"v_lshrrev_b32 v{T+4}, 1, v{q}")
    a.e(f"v_xor_b32 v{sw}, v{sw}, v{T+4}")
    ad = T + 8
    for k in range(4):
        a.e(f"v_xor_b32 v{T+4}, {(4*(k>>1) + (k&1)) if m32 else 2*k}, v{sw}")
        a.e(f"v_lshl_add_u32 v{ad+k}, v{T+4}, 4, v{b}")
    ones = T + 12
    for k in range(4):
        a.e(f"v_mov_b32 v{ones+k}, 0x3f803f80")
    a.wait_vm(xtk)
    stamp(a, 'b')
    s1, s2 = T + 16, T + 20
    tks = []
    for s in range(18):
        for j in range(2):
            tk = a.e(f"ds_read_b64 {vr(X(0,s)+2*j,2)}, v{ad+2*(s&1)+j} offset:{(s>>1)*2048}")
        tks.append(tk)
        if s >= 4:
            ss = s - 4
            a.wait_lg(tks[ss])
            a.e(f"v_mfma_f32_16x16x32_bf16 {vr(s1,4)}, {vr(ones,4)}, {vr(X(0,ss),4)}, {vr(s1,4) if ss else '0'}")
            a.e(f"v_mfma_f32_16x16x32_bf16 {vr(s2,4)}, {vr(X(0,ss),4)}, {vr(X(0,ss),4)}, {vr(s2,4) if ss else '0'}")
    for ss in range(14, 18):
        a.wait_lg(tks[ss])
        a.e(f"v_mfma_f32_16x16x32_bf16 {vr(s1,4)}, {vr(ones,4)}, {vr(X(0,ss),4)}, {vr(s1,4)}")
        a.e(f"v_mfma_f32_16x16x32_bf16 {vr(s2,4)}, {vr(X(0,ss),4)}, {vr(X(0,ss),4)}, {vr(s2,4)}")
    t = T + 4
    a.e(f"v_and_b32 v{t}, 3, v{m}")
    a.e(f"v_cmp_eq_u32 vcc, 1, v{t}")
    a.e(f"v_cndmask_b32 v{s2}, v{s2}, v{s2+1}, vcc")
    a.e(f"v_cmp_eq_u32 vcc, 2, v{t}")
    a.e(f"v_cndmask_b32 v{s2}, v{s2}, v{s2+2}, vcc")
    a.e(f"v_cmp_eq_u32 vcc, 3, v{t}")
    a.e(f"v_cndmask_b32 v{s2}, v{s2}, v{s2+3}, vcc")
    a.e(f"v_lshrrev_b32 v{t}, 2, v{m}")
    a.e(f"v_lshl_add_u32 v{t}, v{t}, 4, v{m}")
    a.e(f"v_lshlrev_b32 v{t}, 2, v{t}")
    tk = a.e(f"ds_bpermute_b32 v{s2}, v{t}, v{s2}")
    inv = 0x3AE38E39
    a.e(f"v_mul_f32 v{s1}, 0x{inv:x}, v{s1}")
    a.wait_lg(tk)
    a.e(f"v_mul_f32 v{s2}, 0x{inv:x}, v{s2}")
    a.e(f"v_fma_f32 v{s2}, -v{s1}, v{s1}, v{s2}")
    a.e(f"v_max_f32 v{s2}, 0, v{s2}")
    bf16_round(a, s2)
    a.e(f"v_add_f32 v{s2}, 0x3727c5ac, v{s2}")
    bf16_round(a, s2)
    a.e(f"v_sqrt_f32 v{s2}, v{s2}")
    bf16_round(a, s2)
    a.e(f"v_rcp_f32 v{s2}, v{s2}")
    bf16_round(a, s1)
    a.e(f"v_mul_f32 v{s1}, v{s1}, v{s2}")
    a.e(f"v_sub_f32 v{s1}, 0, v{s1}")
    stamp(a, 'c')
    wa = T + 5
    a.e(f"v_add_u32 v{wa}, s{S_XREG}, v{V_L16}")
    tmp = T + 24
    for s in range(18):
        for k in range(4):
            xr = X(0, s) + k
            lo = tmp + 2 * k
            a.e(f"v_lshlrev_b32 v{lo}, 16, v{xr}")
            a.e(f"v_and_b32 v{lo+1}, 0xffff0000, v{xr}")
        for k in range(4):
            lo = tmp + 2 * k
            a.e(f"v_fma_f32 v{lo}, v{lo}, v{s2}, v{s1}")
            a.e(f"v_fma_f32 v{lo+1}, v{lo+1}, v{s2}, v{s1}")
        for k in range(4):
            lo = tmp + 2 * k
            a.e(f"v_cvt_pk_bf16_f32 v{X(0,s)+k}, v{lo}, v{lo+1}")
        a.e(f"ds_write_b128 v{wa}, {vr(X(0,s),4)} offset:{s*1024}")
    if m32:
        a.e(f"s_min_u32 s{S_T0}, s{S_XREG}, s{S_XPAR}")
        a.e(f"v_bfe_u32 v{T+4}, v{V_LANE}, 4, 1")
        a.e(f"v_mul_u32_u24 v{wa}, 18432, v{T+4}")
        a.e(f"v_lshrrev_b32 v{T+4}, 5, v{V_LANE}")
        a.e(f"v_lshl_add_u32 v{wa}, v{T+4}, 8, v{wa}")
        a.e(f"v_lshl_add_u32 v{wa}, v{m}, 4, v{wa}")
        a.e(f"v_add_u32 v{wa}, s{S_T0}, v{wa}")
    else:
        a.e(f"v_add_u32 v{wa}, s{S_XPAR}, v{V_L16}")
    a.wait_lg0()
    stamp(a, 'd')
    a.e("s_barrier")
    stamp(a, 'e')
    if after_x:
        after_x()
    if m32:
        for s in range(36):
            a.e(f"ds_read_b128 {vr(X32(s),4)}, v{wa} offset:{s*512}")
    else:
        for s in range(18):
            a.e(f"ds_read_b128 {vr(X(1,s),4)}, v{wa} offset:{s*1024}")
    a.wait_lg0()
    a.e("s_barrier")


def run_stream(a, frags, fill, on_stage, wrap=False, prime=True, tick=None, base=0):
    N = len(frags)
    assert (not wrap) or N % NFR == 0
    if tick is None:
        tick = {}

    def rd(m, j):
        f = frags[m % N]
        if j == 0 and f.get("first"):
            on_stage(f["stage"] + (1000 if m >= N else 0))
        r = FR + 4 * (m % NFR)
        vb, imm = f["rd"][j]
        if FLAG("NORD") and not prime:
            tick[m] = a.lg
            return
        tick[m] = a.e(f"ds_read_b64_tr_b16 {vr(r+2*j,2)}, v{vb} offset:{imm}")

    if prime:
        for m in range(min(PD, N)):
            rd(m, 0)
            rd(m, 1)
        if wrap:
            return tick
    for n in range(N):
        f = frags[n]
        r = FR + 4 * (n % NFR)
        fl = list(fill.get(n, []))
        nm = len(f["mf"])
        for c in f.get("pre", []):
            c()
        a.wait_lg(tick[n])
        for k, mf in enumerate(f["mf"]):
            a.e(mf(r))
            if n + PD < N or wrap:
                if nm == 1:
                    rd(n + PD, 0)
                    rd(n + PD, 1)
                elif k < 2:
                    rd(n + PD, k)
            cnt = (len(fl) + (nm - k) - 1) // (nm - k)
            for c in fl[:cnt]:
                c()
            fl = fl[cnt:]
    if wrap:
        return {m: tick[N + m] for m in range(PD)}
    return tick


def loop(a, label, body, niter_sgpr_dec):
    a.raw(label + ":")
    n0 = len(a.out)
    body()
    niter_sgpr_dec(label)
    t1 = a.out[n0:]
    n1 = len(a.out)
    body()
    niter_sgpr_dec(label)
    t2 = a.out[n1:]
    if t1 != t2:
        for x, y in zip(t1, t2):
            if x != y:
                sys.stderr.write(f"LOOP MISMATCH {label}: {x!r} vs {y!r}\n")
        assert len(t1) == len(t2), "loop body length mismatch"
        import re
        for k, (x, y) in enumerate(zip(t1, t2)):
            if x != y:
                mx, my = re.match(r"\s*s_waitcnt (vm|lgkm)cnt\((\d+)\)", x), re.match(r"\s*s_waitcnt (vm|lgkm)cnt\((\d+)\)", y)
                assert mx and my and mx.group(1) == my.group(1), (x, y)
                t1[k] = x if int(mx.group(2)) <= int(my.group(2)) else y
        a.out[n0:n1] = t1
    del a.out[n1:]


V_FW, V_FR, V_FV, V_FT = 248, 249, 252, 253
FLAGS = 147456


class Sync:
    def __init__(self, a, tag):
        self.a, self.tag, self.slow, self.tk, self.n = a, tag, {}, None, 0

    def setup(self):
        a = self.a
        a.e(f"s_lshl_b32 s{S_T0}, s{S_W}, 8")
        a.e(f"s_add_u32 s{S_T0}, s{S_T0}, {FLAGS+64}")
        a.e(f"v_lshlrev_b32 v{V_FW}, 2, v{V_LANE}")
        a.e(f"v_add_u32 v{V_FW}, s{S_T0}, v{V_FW}")
        a.e(f"s_lshl_b32 s{S_T0}, s{S_W}, 2")
        a.e(f"s_add_u32 s{S_T0}, s{S_T0}, {FLAGS}")
        a.e(f"v_mov_b32 v{V_FT}, s{S_T0}")
        a.e(f"v_cmp_eq_u32 vcc, 0, v{V_LANE}")
        a.e(f"v_cndmask_b32 v{V_FW}, v{V_FW}, v{V_FT}, vcc")
        a.e(f"v_and_b32 v{V_FR}, 7, v{V_LANE}")
        a.e(f"v_lshlrev_b32 v{V_FR}, 2, v{V_FR}")
        a.e(f"v_add_u32 v{V_FR}, {FLAGS}, v{V_FR}")
        a.e(f"v_mov_b32 v{V_FV}, 0")
        a.e(f"ds_write_b32 v{V_FW}, v{V_FV}")

    def arrive(self, tk):
        a = self.a
        a.e(f"v_add_u32 v{V_FV}, 1, v{V_FV}")
        a.wait_vm(tk)
        a.e(f"ds_write_b32 v{V_FW}, v{V_FV}")

    def read(self):
        self.tk = self.a.e(f"ds_read_b32 v{V_FT}, v{V_FR}")

    def check(self, name):
        a = self.a
        if FLAG("NOBAR"):
            return
        a.wait_lg(self.tk)
        a.e(f"v_cmp_lt_u32 vcc, v{V_FT}, v{V_FV}")
        a.e(f"s_cbranch_vccnz L_slow_{self.tag}_{name}")
        a.raw(f"L_back_{self.tag}_{name}:")
        self.slow[name] = 1

    def emit_slow(self):
        a = self.a
        for name in self.slow:
            a.raw(f"L_slow_{self.tag}_{name}:")
            a.raw(f"    ds_read_b32 v{V_FT}, v{V_FR}")
            a.raw(f"    s_waitcnt lgkmcnt(0)")
            a.raw(f"    v_cmp_lt_u32 vcc, v{V_FT}, v{V_FV}")
            a.raw(f"    s_cbranch_vccnz L_slow_{self.tag}_{name}")
            a.raw(f"    s_branch L_back_{self.tag}_{name}")


def spread(fill, items, n0, n1):
    L = len(items)
    span = n1 - n0
    for i, it in enumerate(items):
        n = n0 + (i * span) // L
        fill.setdefault(n, []).append(it)


def rd_bases(a):
    t0, t1, t2 = V_T, V_T + 1, V_T + 2
    a.e(f"v_lshrrev_b32 v{t0}, 4, v{V_LANE}")
    a.e(f"v_lshrrev_b32 v{t1}, 1, v{t0}")
    a.e(f"v_lshlrev_b32 v{t1}, 10, v{t1}")
    a.e(f"v_and_b32 v{t0}, 1, v{t0}")
    a.e(f"v_lshl_add_u32 v{t1}, v{t0}, 8, v{t1}")
    a.e(f"v_lshl_add_u32 v{t1}, v{t0}, 5, v{t1}")
    a.e(f"v_bfe_u32 v{t2}, v{V_LANE}, 2, 2")
    a.e(f"v_lshl_add_u32 v{t1}, v{t2}, 6, v{t1}")
    a.e(f"v_and_b32 v{t2}, 3, v{V_LANE}")
    a.e(f"v_lshl_add_u32 v{t1}, v{t2}, 3, v{t1}")
    a.e(f"s_lshl_b32 s{S_T0}, s{S_C}, 9")
    a.e(f"v_add_u32 v{V_RD}, s{S_T0}, v{t1}")
    a.e(f"v_xor_b32 v{V_RD+3}, 32, v{V_RD}")
    for k in (1, 2):
        a.e(f"v_add_u32 v{V_RD+k}, {49152*k}, v{V_RD}")
        a.e(f"v_add_u32 v{V_RD+3+k}, {49152*k}, v{V_RD+3}")


def rd_bases32(a):
    t1, t2 = V_T + 1, V_T + 2
    a.e(f"v_lshrrev_b32 v{t1}, 5, v{V_LANE}")
    a.e(f"v_lshlrev_b32 v{t1}, 8, v{t1}")
    a.e(f"v_bfe_u32 v{t2}, v{V_LANE}, 2, 2")
    a.e(f"v_lshl_add_u32 v{t1}, v{t2}, 6, v{t1}")
    a.e(f"v_bfe_u32 v{t2}, v{V_LANE}, 4, 1")
    a.e(f"v_lshl_add_u32 v{t1}, v{t2}, 5, v{t1}")
    a.e(f"v_and_b32 v{t2}, 3, v{V_LANE}")
    a.e(f"v_lshl_add_u32 v{t1}, v{t2}, 3, v{t1}")
    a.e(f"s_lshl_b32 s{S_T0}, s{S_C}, 9")
    a.e(f"v_add_u32 v{V_RD}, s{S_T0}, v{t1}")
    for k in (1, 2):
        a.e(f"v_add_u32 v{V_RD+k}, {49152*k}, v{V_RD}")


T_CE, T_CL, T_TR, T_TC, T_ACT, T_FE, T_FS, T_AE, T_AL, T_BK0, T_BK1, T_NG, T_RB_, T_XB = 66, 70, 72, 71, 73, 63, 62, 64, 65, 74, 75, 69, 67, 98


def tail(a, tag, assign, between, late_c1):
    a.e("s_load_dwordx2 s[4:5], s[0:1], 56")
    a.e("s_load_dwordx2 s[6:7], s[0:1], 16")
    a.e("s_load_dwordx2 s[8:9], s[0:1], 0")
    a.wait_lg0()
    VF1, VF2, VFL, VFO, VG = 248, 249, 250, 251, V_T + 2
    a.e(f"v_min_u32 v{VF1}, 11, v{V_LANE}")
    a.e(f"v_lshlrev_b32 v{VF1}, 2, v{VF1}")
    a.e(f"v_and_b32 v{VF2}, 3, v{V_LANE}")
    a.e(f"v_lshlrev_b32 v{VF2}, 2, v{VF2}")
    assign()
    a.e(f"s_cmp_eq_u32 s{S_C}, 0")
    a.e(f"s_cselect_b32 s{T_TC}, s{T_CE}, s{T_CL}")
    a.e(f"s_lshr_b32 s{T_NG}, s{T_TC}, 7")
    a.e(f"s_bfe_u32 s{S_T0}, s{T_TC}, 0x10006")
    a.e(f"s_lshl_b32 s{T_BK0}, s{S_T0}, 3")
    a.e(f"s_lshl_b32 s{S_T0}, s{T_TR}, 1")
    a.e(f"s_add_u32 s{T_BK0}, s{T_BK0}, s{S_T0}")
    a.e(f"s_add_u32 s{T_BK1}, s{T_BK0}, 1")
    a.e(f"s_lshl_b32 s{T_FS}, s{S_RB}, 11")
    a.e(f"s_add_u32 s{T_FS}, s{T_FS}, {FLG}")
    a.e(f"s_lshl_b32 s{S_T1}, s{T_NG}, 6")
    a.e(f"s_add_u32 s{T_FE}, s{T_FS}, s{S_T1}")
    a.e(f"s_add_u32 s{T_FE}, s{T_FE}, 128")
    a.e(f"s_lshl_b32 s{S_T0}, s{S_RB}, 2")
    a.e(f"s_add_u32 s{S_T0}, s{S_T0}, s{T_TR}")
    a.e(f"s_mul_i32 s{S_T0}, s{S_T0}, {32*1152}")
    a.e(f"s_add_u32 s{T_AE}, s{S_T0}, s{T_TC}")
    a.e(f"s_add_u32 s{T_AL}, s{T_AE}, 32")
    srd(a, R_A, 4, 2359296)
    srd(a, R_B, 6, 663552)
    srd(a, R_X, 8, 2359296)
    a.e(f"s_mov_b32 s{S_NL2E}, 0x{NLOG2E:x}")
    a.e(f"s_lshl_b32 s{S_WLDS}, s{S_W}, 10")
    rd_bases32(a)
    a.e(f"v_and_b32 v{VG}, 31, v{V_LANE}")
    a.e(f"v_mul_u32_u24 v{VG}, 1152, v{VG}")
    a.e(f"v_lshrrev_b32 v{VFL}, 5, v{V_LANE}")
    a.e(f"v_lshl_add_u32 v{VG}, v{VFL}, 3, v{VG}")
    a.e(f"s_sub_u32 s{S_T0}, s{T_CL}, s{T_CE}")
    a.e(f"v_mul_lo_u32 v{V_D2}, v{VFL}, s{S_T0}")
    a.e(f"v_bfe_u32 v{VFL}, v{V_LANE}, 2, 3")
    a.e(f"v_mul_u32_u24 v{VFL}, 1152, v{VFL}")
    a.e(f"v_add_u32 v{V_D2}, v{V_D2}, v{VFL}")
    a.e(f"v_and_b32 v{VFL}, 3, v{V_LANE}")
    a.e(f"v_lshl_add_u32 v{V_D2}, v{VFL}, 4, v{V_D2}")
    a.e(f"v_bfe_u32 v{VFL}, v{V_LANE}, 4, 1")
    a.e(f"v_mul_u32_u24 v{VFL}, {32*1152}, v{VFL}")
    a.e(f"v_add_u32 v{V_D1}, v{V_D2}, v{VFL}")
    a.e(f"s_lshr_b32 s{S_T0}, s{S_W}, 1")
    a.e(f"s_mul_i32 s{S_T1}, s{S_T0}, 18")
    a.e(f"s_and_b32 s{S_T2}, s{S_T0}, 1")
    a.e(f"s_lshl_b32 s{S_T2}, s{S_T2}, 1")
    a.e(f"s_add_u32 s{S_T1}, s{S_T1}, s{S_T2}")
    a.e(f"s_and_b32 s{S_T2}, s{S_W}, 1")
    a.e(f"s_lshl_b32 s{S_T3}, s{S_T2}, 3")
    a.e(f"s_add_u32 s{S_T1}, s{S_T1}, s{S_T3}")
    a.e(f"s_mul_i32 s{S_T1}, s{S_T1}, 1152")
    a.e(f"s_add_u32 s{T_RB_}, s{S_T1}, s{T_CE}")
    a.e(f"s_mul_i32 s{S_T0}, s{S_T0}, 144")
    a.e(f"s_mul_i32 s{S_T2}, s{S_T2}, 72")
    a.e(f"s_add_u32 s{S_T0}, s{S_T0}, s{S_T2}")
    a.e(f"s_add_u32 s{S_T0}, s{S_T0}, 16")
    a.e(f"s_mul_i32 s{S_T0}, s{S_T0}, 1152")
    a.e(f"s_add_u32 s{T_XB}, s{S_T0}, s{T_CE}")
    a.e(f"buffer_load_dword v{VFO}, v{VF2}, {sr(R_WS,4)}, s{T_FS} offen sc1")
    tst = a.e(f"buffer_load_dword v{VFL}, v{VF1}, {sr(R_WS,4)}, s{T_FE} offen sc1")
    a.e("s_barrier")
    for k in range(8):
        a.e(f"s_add_u32 m0, s{S_WLDS}, {k*8192}")
        a.e(f"s_add_u32 s{S_T3}, s{T_RB_}, {k*72*1152}")
        a.e(f"buffer_load_dwordx4 v{V_D2}, {sr(R_B,4)}, s{S_T3} offen lds")
    a.e(f"s_add_u32 m0, s{S_WLDS}, {8*8192}")
    a.e("s_nop 0")
    a.e(f"buffer_load_dwordx4 v{V_D1}, {sr(R_B,4)}, s{T_XB} offen lds")
    a.wait_vm(tst)
    a.e("s_barrier")
    between()
    a.e(f"s_cmp_lg_u32 s{T_ACT}, 0")
    a.e(f"s_cbranch_scc1 L_{tag}_work")
    a.e("s_waitcnt vmcnt(0)")
    a.e("s_barrier")
    a.e(f"s_branch L_{tag}_fin")
    a.raw(f"L_{tag}_work:")

    def addr(A):
        k = A // 49152
        return [(V_RD + k, A - 49152 * k), (V_RD + k, A - 49152 * k + 1024)]

    def mk(acc, b, first):
        return lambda r: f"v_mfma_f32_32x32x16_bf16 {vr(acc,16)}, {vr(r,4)}, {vr(b,4)}, {'0' if first else vr(acc,16)}"

    def spin(name, vaddr, soff, want, preloaded=False, VFL=VFL):
        name = tag + name
        a.e(f"s_mov_b32 s{S_T2}, 0")
        if preloaded:
            a.e(f"s_branch L_sp_{name}_c")
        a.raw(f"L_sp_{name}:")
        a.e_untracked(f"buffer_load_dword v{VFL}, v{vaddr}, {sr(R_WS,4)}, s{soff} offen sc1")
        a.e(f"s_add_u32 s{S_T2}, s{S_T2}, 1")
        a.e(f"s_cmp_gt_u32 s{S_T2}, 0x40000")
        a.e(f"s_cbranch_scc1 L_sp_{name}_x")
        a.e("s_waitcnt vmcnt(0)")
        a.raw(f"L_sp_{name}_c:")
        a.e(f"v_cmp_gt_u32 vcc, {want}, v{VFL}")
        a.e(f"s_cbranch_vccz L_sp_{name}_x")
        a.e("s_sleep 4")
        a.e(f"s_branch L_sp_{name}")
        a.raw(f"L_sp_{name}_x:")

    def ld_part(dst, bk, xr, aoff):
        a.e(f"s_mul_i32 s{S_T0}, s{S_RB}, 9")
        a.e(f"s_add_u32 s{S_T0}, s{S_T0}, s{T_NG}")
        a.e(f"s_lshl_b32 s{S_T0}, s{S_T0}, 4")
        a.e(f"s_add_u32 s{S_T0}, s{S_T0}, s{bk}")
        a.e(f"s_lshl_b32 s{S_T0}, s{S_T0}, 10")
        a.e(f"s_add_u32 s{S_T0}, s{S_T0}, {PART}")
        for p in range(12):
            a.e(f"buffer_load_dwordx4 {vr(dst+4*p,4)}, v{V_L16}, {sr(R_WS,4)}, s{S_T0} offen sc1")
            if p < 11:
                a.e(f"s_add_u32 s{S_T0}, s{S_T0}, {PSZ}")
        a.e(f"buffer_load_dwordx2 {vr(xr,2)}, v{VG}, {sr(R_X,4)}, s{aoff} offen")
        a.e(f"buffer_load_dwordx2 {vr(xr+2,2)}, v{VG}, {sr(R_X,4)}, s{aoff} offen offset:16")

    def unp(dst, src):
        for k in range(4):
            a.e(f"v_lshlrev_b32 v{dst+2*k}, 16, v{src+k}")
            a.e(f"v_and_b32 v{dst+2*k+1}, 0xffff0000, v{src+k}")

    def rnd(F, Pk):
        for k in range(4):
            a.e(f"v_cvt_pk_bf16_f32 v{Pk+k}, v{F+2*k}, v{F+2*k+1}")
        unp(F, Pk)

    def silu_sum(src, F, T, Pk):
        for p in range(12):
            unp(F if p == 0 else T, src + 4 * p)
            if p:
                for k in range(8):
                    a.e(f"v_add_f32 v{F+k}, v{F+k}, v{T+k}")
        rnd(F, Pk)
        for k in range(8):
            a.e(f"v_mul_f32 v{T+k}, s{S_NL2E}, v{F+k}")
        for k in range(8):
            a.e(f"v_exp_f32 v{T+k}, v{T+k}")
        for k in range(8):
            a.e(f"v_add_f32 v{T+k}, 1.0, v{T+k}")
        for k in range(8):
            a.e(f"v_rcp_f32 v{T+k}, v{T+k}")
        for k in range(8):
            a.e(f"v_mul_f32 v{F+k}, v{F+k}, v{T+k}")
        rnd(F, Pk)

    def finish(F, T, Pk, sreg, xr, aoff):
        rnd(sreg, Pk)
        for k in range(8):
            a.e(f"v_mul_f32 v{F+k}, v{F+k}, v{sreg+k}")
        rnd(F, Pk)
        unp(T, xr)
        for k in range(8):
            a.e(f"v_add_f32 v{F+k}, v{F+k}, v{T+k}")
        for k in range(4):
            a.e(f"v_cvt_pk_bf16_f32 v{Pk+k}, v{F+2*k}, v{F+2*k+1}")
        a.e(f"buffer_store_dwordx2 {vr(Pk,2)}, v{VG}, {sr(R_A,4)}, s{aoff} offen")
        a.e(f"buffer_store_dwordx2 {vr(Pk+2,2)}, v{VG}, {sr(R_A,4)}, s{aoff} offen offset:16")
    PE, PL = X32(0), X32(12)
    XE, XL_ = ACC, ACC + 4
    FE, FL_, TT, PK, PK2, SACC = ACC + 8, ACC + 16, ACC + 24, ACC + 32, ACC + 36, ACC + 48

    to = {}

    def ld_o(ks):
        a.e(f"s_lshl_b32 s{S_T0}, s{S_RB}, 2")
        a.e(f"s_add_u32 s{S_T0}, s{S_T0}, s{T_TR}")
        a.e(f"s_mul_i32 s{S_T0}, s{S_T0}, 36864")
        a.e(f"s_add_u32 s{S_T0}, s{S_T0}, {OF + ks[0]*1024}")
        for n, k in enumerate(ks):
            if n % 4 == 0 and n:
                a.e(f"s_add_u32 s{S_T0}, s{S_T0}, 4096")
            to[k] = a.e(f"buffer_load_dwordx4 {vr(X32(k),4)}, v{V_L16}, {sr(R_WS,4)}, s{S_T0} offen offset:{(n%4)*1024} sc1")

    def gemm(order):
        fr3 = [dict(stage=0, first=False, rd=addr(k * 2048), pre=[lambda k=k: a.wait_vm(to[k])], mf=[mk(SACC, X32(k), n == 0)]) for n, k in enumerate(order)]
        run_stream(a, fr3, {}, None)
    if late_c1:
        a.e(f"s_cmp_eq_u32 s{S_C}, 0")
        a.e(f"s_cbranch_scc0 L_{tag}_late")
    spin("ea", VF1, T_FE, 1, preloaded=True)
    ld_part(PE, T_BK0, XE, T_AE)
    ld_part(PL, T_BK1, XL_, T_AL)
    a.e(f"buffer_load_dword v{VFO}, v{VF2}, {sr(R_WS,4)}, s{T_FS} offen sc1")
    a.wait_vm0()
    a.e("s_barrier")
    spin("oa", VF2, T_FS, 2, preloaded=True, VFL=VFO)
    ld_o(list(range(24, 36)))
    silu_sum(PE, FE, TT, PK)
    ld_o(list(range(0, 12)))
    silu_sum(PL, FL_, TT, PK)
    ld_o(list(range(12, 24)))
    stamp(a, 't')
    gemm(list(range(24, 36)) + list(range(0, 24)))
    if late_c1:
        a.e(f"s_branch L_{tag}_join")
        a.raw(f"L_{tag}_late:")
        a.barrier_hist()
        a.wait_vm0()
        a.e("s_barrier")
        spin("ob", VF2, T_FS, 2, preloaded=True, VFL=VFO)
        ld_o(list(range(36)))
        tf = a.e(f"buffer_load_dword v{VFL}, v{VF1}, {sr(R_WS,4)}, s{T_FE} offen sc1")
        gemm(list(range(36)))
        stamp(a, 'u')
        a.wait_vm(tf)
        spin("eb", VF1, T_FE, 1, preloaded=True)
        ld_part(PE, T_BK0, XE, T_AE)
        tp = a.vm
        ld_part(PL, T_BK1, XL_, T_AL)
        a.wait_vm(tp)
        silu_sum(PE, FE, TT, PK)
        a.wait_vm0()
        silu_sum(PL, FL_, TT, PK)
        a.raw(f"L_{tag}_join:")
        a.e("s_nop 7")
        a.e("s_nop 7")
    finish(FE, TT, PK, SACC, XE, T_AE)
    finish(FL_, TT, PK2, SACC + 8, XL_, T_AL)
    a.raw(f"L_{tag}_fin:")


def mlp(a):
    KPS = int(os.environ.get("KPS", "3"))
    NS = 18 // KPS
    SB = KPS * 8192
    FPS = KPS * 4
    USEBAR = os.environ.get("SYNC", "bar") == "bar"
    SL = int(os.environ.get("SLACK", str(FPS - 4)))
    t0, t1, t2 = V_T + 3, V_T + 4, ACC
    a.e(f"s_cmp_lt_u32 s{S_W}, 4")
    a.e(f"s_cselect_b32 s{R_W1}, s{S_WG}, s{S_WU}")
    a.e(f"s_cselect_b32 s{R_W1+1}, s{S_WG+1}, s{S_WU+1}")
    a.e(f"s_mov_b32 s{R_W1+2}, 5308416")
    a.e(f"s_mov_b32 s{R_W1+3}, 0x20000")
    srd(a, R_W2, S_WD, 5308416)
    stamp(a)
    xtk = x_stage_issue(a)
    a.e(f"v_bfe_u32 v{t0}, v{V_LANE}, 2, 3")
    a.e(f"v_and_b32 v{t1}, 3, v{V_LANE}")
    a.e(f"v_lshrrev_b32 v{t2}, 5, v{V_LANE}")
    a.e(f"v_lshlrev_b32 v{t2}, 6, v{t2}")
    a.e(f"v_lshl_add_u32 v{t1}, v{t1}, 4, v{t2}")
    a.e(f"v_mul_u32_u24 v{V_D1}, 9216, v{t0}")
    a.e(f"v_add_u32 v{V_D1}, v{V_D1}, v{t1}")
    a.e(f"v_mul_u32_u24 v{V_D2}, 1152, v{t0}")
    a.e(f"v_add_u32 v{V_D2}, v{V_D2}, v{t1}")
    a.e(f"s_lshl_b32 s{S_WLDS}, s{S_W}, 10")
    a.e(f"s_mul_i32 s{S_T0}, s{S_SPLIT}, 384")
    a.e(f"s_mul_i32 s{S_W1B}, s{S_R}, {8*9216}")
    a.e(f"s_lshl_b32 s{S_T1}, s{S_T0}, 1")
    a.e(f"s_add_u32 s{S_W1B}, s{S_W1B}, s{S_T1}")
    a.e(f"s_lshl_b32 s{S_T1}, s{S_W}, 3")
    a.e(f"s_add_u32 s{S_T1}, s{S_T1}, s{S_T0}")
    a.e(f"s_mul_i32 s{S_W2B}, s{S_T1}, 1152")
    V_PF, V_PF2 = 8, 9
    S_PFO, S_PFS = S_H1, 98
    R_PF = R_B
    p0, p1 = FR, FR + 1
    NL = 36 if MAPC else 18
    a.e(f"s_and_b32 s{S_T0}, s{S_RB}, {3 if MAPC else 7}")
    a.e(f"s_lshl_b32 s{S_T1}, s{S_T0}, 2")
    a.e(f"s_add_u32 s{S_T1}, s{S_T1}, s{S_R}")
    a.e(f"s_mul_i32 s{S_T1}, s{S_T1}, {NL}")
    a.e(f"v_add_u32 v{p0}, s{S_T1}, v{V_LANE}")
    a.e(f"v_mul_u32_u24 v{p0}, 9216, v{p0}")
    a.e(f"v_cmp_gt_u32 vcc, {NL}, v{V_LANE}")
    a.e(f"v_cndmask_b32 v{V_PF}, -1, v{p0}, vcc")
    a.e(f"v_mul_u32_u24 v{p0}, 86, v{V_LANE}")
    a.e(f"v_lshrrev_b32 v{p0}, 8, v{p0}")
    a.e(f"v_mul_u32_u24 v{p1}, 3, v{p0}")
    a.e(f"v_sub_u32 v{p1}, v{V_LANE}, v{p1}")
    a.e(f"s_lshl_b32 s{S_T1}, s{S_T0}, 3")
    a.e(f"s_add_u32 s{S_T1}, s{S_T1}, s{S_W}")
    a.e(f"s_mul_i32 s{S_T1}, s{S_T1}, {NL // 3}")
    a.e(f"v_add_u32 v{p0}, s{S_T1}, v{p0}")
    a.e(f"v_mul_u32_u24 v{p0}, 1152, v{p0}")
    a.e(f"v_lshl_add_u32 v{p0}, v{p1}, 7, v{p0}")
    a.e(f"v_cndmask_b32 v{V_PF2}, -1, v{p0}, vcc")
    for k in range(4):
        a.e(f"s_mov_b32 s{R_PF+k}, s{R_W1+k}")
    a.e(f"s_mul_i32 s{S_PFO}, s{S_SPLIT}, 768")
    a.e(f"s_mov_b32 s{S_PFS}, 128")

    def pf():
        if not FLAG("NOPF"):
            a.e(f"buffer_load_dword v0, v{V_PF}, {sr(R_PF,4)}, s{S_PFO} offen")
        if FLAG("PF64"):
            a.e(f"buffer_load_dword v0, v{V_PF}, {sr(R_PF,4)}, s{S_PFO} offen offset:64")
        a.e(f"s_add_u32 s{S_PFO}, s{S_PFO}, s{S_PFS}")

    dtk = {}

    def dma_raw(g, i, voff, srd_, soff, mid=None):
        if FLAG("NODMA") and a.always:
            dtk[g % NS] = a.vm
            return
        a.e(f"s_add_u32 m0, s{S_WLDS}, {(g % NS) * SB + i*8192}")
        if mid:
            a.e(mid)
        dtk[g % NS] = a.e(f"buffer_load_dwordx4 v{voff}, {sr(srd_,4)}, s{soff} offen lds")

    def dma_p0(d):
        dma_raw(d // KPS, d % KPS, V_D1, R_W1, S_T3, f"s_add_u32 s{S_T3}, s{S_W1B}, {d*294912}")

    dma_p0(0)
    dma_p0(1)
    for _ in range(int(os.environ.get("PFD", "2")) - 1):
        pf()
    rd_bases32(a)
    a.e(f"s_lshl_b32 s{S_T0}, s{S_SPLIT}, 4")
    a.e(f"s_add_u32 s{S_T0}, s{S_T0}, s{S_RB}")
    a.e(f"s_mul_i32 s{S_T0}, s{S_T0}, 98304")
    a.e(f"s_lshl_b32 s{S_T2}, s{S_R}, 10")
    a.e(f"s_add_u32 s{S_H0}, s{S_T0}, s{S_T2}")
    a.e(f"s_mul_i32 s{S_T0}, s{S_SPLIT}, {PSZ}")
    a.e(f"s_mul_i32 s{S_T3}, s{S_RB}, {9*16384}")
    a.e(f"s_add_u32 s{S_T0}, s{S_T0}, s{S_T3}")
    a.e(f"s_lshl_b32 s{S_T3}, s{S_C}, 13")
    a.e(f"s_add_u32 s{S_T0}, s{S_T0}, s{S_T3}")
    a.e(f"s_add_u32 s{S_T0}, s{S_T0}, {PART}")
    a.e(f"s_lshl_b32 s{S_T2}, s{S_R}, 11")
    a.e(f"s_add_u32 s{S_P0}, s{S_T0}, s{S_T2}")
    a.e(f"s_mov_b32 s{S_NL2E}, 0x{NLOG2E:x}")
    itk = []

    def after_x():
        a.e(f"s_lshl_b32 s{S_T0}, s{S_RB}, 2")
        a.e(f"v_mov_b32 v{V_T+2}, s{S_T0}")
        itk.append(init_issue(a, V_T + 2, V_T + 3))
        pf()
    layernorm(a, xtk, m32=True, after_x=after_x)
    stamp(a, 'f')
    for d in range(2, (NS - 2) * KPS):
        dma_p0(d)
    init_check(a, "m", V_T + 2, V_T + 3, itk[0])
    V_DN = V_T + 4
    VEX = V_T
    S_IT, S_CUR, S_PTR, S_STEP, S_ADJ, S_HST = 71, 72, 73, 74, 75, S_XREG
    R_N = R_A
    a.e(f"s_mov_b32 s{S_IT}, 0")
    a.e(f"s_mov_b32 s{S_CUR}, s{S_W1B}")
    a.e(f"s_mov_b32 s{S_HST}, 0x70000000")
    sy = Sync(a, "m")
    if not USEBAR:
        sy.setup()

    def addr(A):
        k = A // 49152
        return [(V_RD + k, A - 49152 * k), (V_RD + k, A - 49152 * k + 1024)]

    def acc1(st, mat):
        return ACC + st * 32 + mat * 16

    def mk(acc, b, first):
        return lambda r: f"v_mfma_f32_32x32x16_bf16 {vr(acc,16)}, {vr(r,4)}, {vr(b,4)}, {'0' if first else vr(acc,16)}"

    def E(text):
        return lambda: a.e(text)

    def copy_items(mat):
        A_, E_ = acc1(0, mat), acc1(1, mat)
        return [E(f"v_mul_f32 v{E_+i}, s{S_NL2E}, v{A_+i}") if mat == 0 else E(f"v_mov_b32 v{E_+i}, v{A_+i}") for i in range(16)]

    hst = {}

    def epi1(last):
        items = []
        G0, U0 = acc1(1, 0), acc1(1, 1)
        for u in range(2):
            for h in range(2):
                G, U = G0 + 8 * u + 4 * h, U0 + 8 * u + 4 * h
                items += [E(f"v_exp_f32 v{G+i}, v{G+i}") for i in range(4)]
                items += [E(f"v_add_f32 v{G+i}, 1.0, v{G+i}") for i in range(4)]
                items += [E(f"v_rcp_f32 v{G+i}, v{G+i}") for i in range(4)]
                items += [E(f"v_mul_f32 v{U+i}, v{U+i}, v{G+i}") for i in range(4)]
            D, U = G0 + 8 * u, U0 + 8 * u
            items += [E(f"v_cvt_pk_bf16_f32 v{D+k}, v{U+2*k}, v{U+2*k+1}") for k in range(4)]
            if not last:
                def st(u=u, D=D):
                    a.e(f"s_add_u32 s{S_T0}, s{S_HST}, {u*4096}")
                    hst[0] = a.e(f"buffer_store_dwordx4 {vr(D,4)}, v{V_L16}, {sr(R_WS,4)}, s{S_T0} offen {os.environ.get('HSTM','')}")
                items.append(st)
            else:
                def st(u=u, D=D):
                    hst[5] = a.e(f"ds_write_b128 v{VEX+1}, {vr(D,4)} offset:{u*4096}")
                items.append(st)
        return items

    ool = []
    frags = []
    for s16 in range(36):
        ks = s16 // 2
        g = ks // KPS
        for mat in range(2):
            A = g * SB + (ks % KPS) * 8192 + mat * 4096 + (s16 & 1) * 2048
            frags.append(dict(stage=g, first=(len(frags) % FPS == 0), rd=addr(A),
                              pre=copy_items(mat) if (s16 == 0 and not FLAG("NOEPI")) else [],
                              mf=[mk(acc1(0, mat), X32(s16), s16 == 0)]))
    DSP = FPS // KPS - 1
    GL = NS - 1

    def place_dma(fl, fn, setf):
        for g in range(NS):
            n0 = max(g * FPS - PD + 2, 0)
            if g == 2 and setf:
                fl.setdefault(n0 - 1, []).append(setf)
            for i in range(KPS):
                fl.setdefault(n0 + DSP * i, []).append(fn(g, i))

    def pf1():
        a.e(f"s_cmp_eq_u32 s{S_IT}, 4")
        a.e(f"s_cbranch_scc1 L_p1_pf")
        a.raw("L_p1_pfb:")
        pf()
    ool.append("\n".join(["L_p1_pf:",
        f"    s_mul_i32 s{S_PFO}, s{S_SPLIT}, {384*1152}", f"    s_mov_b32 s{S_PFS}, 384",
        f"    s_mov_b32 s{R_PF}, s{R_W2}", f"    s_mov_b32 s{R_PF+1}, s{R_W2+1}", f"    v_mov_b32 v{V_PF}, v{V_PF2}", "    s_nop 1", "    s_branch L_p1_pfb"]))
    hld = {}

    def build_fill(last):
        fl = {}
        spread(fl, epi1(False), 3, int(os.environ.get("EPIEND", "36")))

        def dma1(g, i):
            def f():
                if g < 2:
                    dma_raw(g + NS - 2, i, V_D1, R_W1, S_T3, f"s_add_u32 s{S_T3}, s{S_CUR}, {((g+NS-2)*KPS+i)*294912}")
                else:
                    d = (g - 2) * KPS + i
                    if not last:
                        dma_raw(g - 2, i, V_D1, R_W1, S_T3, f"s_add_u32 s{S_T3}, s{S_CUR}, {128 + d*294912}")
                    else:
                        dma_raw(g - 2, i, V_D2, R_W2, S_T3, f"s_add_u32 s{S_T3}, s{S_W2B}, {(d%6)*73728 + (d//6)*128}")
            return f
        place_dma(fl, dma1, None)
        fl.setdefault(5, []).append(pf if last else pf1)
        if last:
            def hload(kap):
                def f():
                    a.e(f"s_add_u32 s{S_T0}, s{S_H0}, {HS + kap*4096}")
                    if FLAG("NOHLD"):
                        hld[0] = a.vm
                        return
                    hld[0] = a.e(f"buffer_load_dwordx4 {vr(X32(kap),4)}, v{V_L16}, {sr(R_WS,4)}, s{S_T0} offen")
                return f
            NHE = int(os.environ.get("NHE", "13"))
            for kap in range(NHE):
                fl.setdefault((66 * kap) // NHE + 4, []).append(hload(kap))
            hld['late'] = [hload(kap) for kap in range(NHE, 20)]
        return fl
    fill = build_fill(False)

    def add_sync(fl, extra=None):
        if USEBAR:
            return
        for g in range(NS):
            def arr(g=g):
                tk = dtk[g]
                if extra and g in extra:
                    tk = max(tk, extra[g]())
                sy.arrive(tk)
            fl.setdefault((FPS * g - PD - SL) % 72, []).insert(0, arr)
            fl.setdefault((FPS * g - PD - 2) % 72, []).insert(0, sy.read)
    add_sync(fill, {GL: lambda: hst[0]})
    first1 = [True]

    def on_stage1(g):
        g %= 1000
        if first1[0]:
            first1[0] = False
            a.wait_vm(dtk[0])
            a.wait_lg0()
            a.e("s_barrier")
            stamp(a, 'i')
            if FLAG("ITST"):
                a.e("s_memtime s[94:95]")
                a.wait_lg0()
                a.e(f"v_writelane_b32 v255, s94, 0")
            return
        if USEBAR:
            a.wait_vm(max(dtk[g], hst[0]) if g == GL else dtk[g])
            if not FLAG("NOBAR"):
                a.e("s_barrier")
        else:
            sy.check(f"a{g}")

    a.always = True
    tk1 = [run_stream(a, frags, fill, on_stage1, wrap=True, prime=True)]

    def body1():
        tk1[0] = run_stream(a, frags, fill, on_stage1, wrap=True, prime=False, tick=dict(tk1[0]))

    def dec1(label):
        if FLAG("ITST"):
            a.e("s_memtime s[94:95]")
            a.wait_lg0()
            a.e(f"s_add_u32 m0, s{S_IT}, 1")
            a.e("s_nop 1")
            a.e(f"v_writelane_b32 v255, s94, m0")
        a.e(f"s_lshl_b32 s{S_T0}, s{S_C}, 13")
        a.e(f"s_lshl_b32 s{S_HST}, s{S_IT}, 14")
        a.e(f"s_add_u32 s{S_HST}, s{S_HST}, s{S_T0}")
        a.e(f"s_add_u32 s{S_HST}, s{S_HST}, s{S_H0}")
        a.e(f"s_add_u32 s{S_CUR}, s{S_CUR}, 128")
        a.e(f"s_add_u32 s{S_IT}, s{S_IT}, 1")
        a.e(f"s_cmp_lt_u32 s{S_IT}, 5")
        a.e(f"s_cbranch_scc1 {label}")
    loop(a, "L_p1", body1, dec1)
    run_stream(a, frags, build_fill(True), on_stage1, wrap=False, prime=False, tick=dict(tk1[0]))
    if FLAG("ITST"):
        a.e("s_memtime s[94:95]")
        a.wait_lg0()
        a.e(f"v_writelane_b32 v255, s94, 6")
    a.always = False
    for f_ in hld['late']:
        f_()
    ND = (NS - 2) * KPS
    a.e(f"s_add_u32 s{S_PTR}, s{S_W2B}, {(ND%6)*73728 + (ND//6)*128}")
    a.e(f"s_lshl_b32 s{S_T0}, s{S_R}, 10")
    a.e(f"s_add_u32 s{S_T0}, s{S_T0}, {(NS-1)*SB}")
    a.e(f"v_add_u32 v{VEX}, s{S_T0}, v{V_L16}")
    a.e(f"s_lshl_b32 s{S_T0}, s{S_C}, 13")
    a.e(f"v_add_u32 v{VEX+1}, s{S_T0}, v{VEX}")
    for it in copy_items(0) + copy_items(1):
        it()
    its = epi1(True)
    a.wait_lg0()
    for it in its[:20]:
        it()
    a.e("s_barrier")
    for it in its[20:]:
        it()
    a.wait_vm(max(dtk[0], hld[0]))
    a.wait_lg0()
    a.e("s_barrier")
    stamp(a, 'j')
    if FLAG("ITST"):
        a.e("s_memtime s[94:95]")
        a.wait_lg0()
        a.e(f"v_writelane_b32 v255, s94, 7")
    pf()
    for kap in range(20, 24):
        a.e(f"ds_read_b128 {vr(X32(kap),4)}, v{VEX} offset:{(kap-20)*4096}")
    def acc2(j):
        return ACC + j * 16
    S_PST = S_HST
    a.e(f"s_mov_b32 s{S_IT}, 0")
    a.e(f"s_mov_b32 s{S_PST}, 0x70000000")

    def epi2(j, off_sgpr, off_imm):
        items = []
        for u in range(2):
            P = acc2(j) + 8 * u
            items += [E(f"v_cvt_pk_bf16_f32 v{P+k}, v{P+2*k}, v{P+2*k+1}") for k in range(4)]

            def st(u=u, P=P):
                if u == 0:
                    a.e(f"s_add_u32 s{S_P1}, s{S_P0}, {('s%d' % off_sgpr) if off_sgpr is not None else off_imm}")
                pst[j] = a.e(f"buffer_store_dwordx4 {vr(P,4)}, v{V_L16}, {sr(R_WS,4)}, s{S_P1} offen offset:{u*1024} sc1")
            items.append(st)
        return items
    pst = {}
    S_TRG, S_SITE, S_RNG, S_RBLK, S_NG0 = S_CUR, S_STEP, S_ADJ, S_W1B, S_PFS
    RB_, F_, T_, VG = X32(24), ACC + 48, ACC + 56, V_T + 2
    a.e(f"s_lshr_b32 s{S_RNG}, s{S_SPLIT}, 1")
    a.e(f"s_add_u32 s{S_TRG}, s{S_RNG}, {3 if not FLAG('NORED') else 100}")
    a.e(f"s_and_b32 s{S_RBLK}, s{S_SPLIT}, 1")
    a.e(f"s_lshl_b32 s{S_RBLK}, s{S_RBLK}, 3")
    a.e(f"s_add_u32 s{S_RBLK}, s{S_RBLK}, s{S_W}")
    a.e(f"s_mov_b32 s{S_NG0}, 0")
    S_TR2 = S_W2B
    a.e(f"s_mov_b32 s{S_TR2}, 100")
    a.e(f"v_and_b32 v{VG}, 31, v{V_LANE}")
    a.e(f"v_mul_u32_u24 v{VG}, 1152, v{VG}")
    a.e(f"v_lshrrev_b32 v{VG+1}, 5, v{V_LANE}")
    a.e(f"v_lshl_add_u32 v{VG}, v{VG+1}, 3, v{VG}")

    def sub(name, body, nsite):
        b = Asm()
        b.raw(f"L_{name}:")
        body(b)
        for k in range(nsite - 1):
            b.e(f"s_cmp_eq_u32 s{S_SITE}, {k}")
            b.e(f"s_cbranch_scc1 L_{name}_b{k}")
        b.e(f"s_branch L_{name}_b{nsite-1}")
        for k in range(nsite - 1):
            b.raw(f"L_{name}_t{k}:")
            b.e(f"s_mov_b32 s{S_SITE}, {k}")
            b.e(f"s_branch L_{name}")
        ool.append(b.text())

    def flag_addr(b):
        b.e(f"s_lshl_b32 s{S_T0}, s{S_RB}, 11")
        b.e(f"s_lshl_b32 s{S_T1}, s{S_RNG}, 6")
        b.e(f"s_add_u32 s{S_T0}, s{S_T0}, s{S_T1}")
        b.e(f"s_add_u32 s{S_T0}, s{S_T0}, {FLG + 128}")

    def r0(b):
        flag_addr(b)
        b.e(f"v_min_u32 v{T_}, 11, v{V_LANE}")
        b.e(f"v_lshlrev_b32 v{T_}, 2, v{T_}")
        b.e(f"buffer_load_dword v{T_+1}, v{T_}, {sr(R_WS,4)}, s{S_T0} offen sc1")

    def r1(b):
        b.e("s_waitcnt vmcnt(R1WAIT)")
        b.e(f"v_cmp_eq_u32 vcc, 0, v{T_+1}")
        b.e(f"s_add_u32 s{S_T3}, s{S_T0}, 1")
        b.e("s_cbranch_vccz L_r1_px")
        b.e(f"s_cmp_lt_u32 s{S_SITE}, 3")
        b.e("s_cbranch_scc1 L_r1_ret")
        flag_addr(b)
        b.e(f"s_mov_b32 s{S_T2}, 0")
        b.raw("L_r1_poll:")
        b.e(f"buffer_load_dword v{T_+1}, v{T_}, {sr(R_WS,4)}, s{S_T0} offen sc1")
        b.e(f"s_add_u32 s{S_T2}, s{S_T2}, 1")
        b.e(f"s_cmp_gt_u32 s{S_T2}, 0x40000")
        b.e("s_cbranch_scc1 L_r1_px")
        b.e("s_waitcnt vmcnt(0)")
        b.e(f"v_cmp_eq_u32 vcc, 0, v{T_+1}")
        b.e("s_cbranch_vccz L_r1_px")
        b.e("s_sleep 2")
        b.e("s_branch L_r1_poll")
        b.raw("L_r1_px:")
        b.e(f"s_mov_b32 s{S_TRG}, 100")
        b.e(f"s_mov_b32 s{S_TR2}, s{S_T3}")
        b.e(f"s_mul_i32 s{S_T0}, s{S_RB}, 9")
        b.e(f"s_add_u32 s{S_T0}, s{S_T0}, s{S_RNG}")
        b.e(f"s_lshl_b32 s{S_T0}, s{S_T0}, 4")
        b.e(f"s_add_u32 s{S_T0}, s{S_T0}, s{S_RBLK}")
        b.e(f"s_lshl_b32 s{S_T0}, s{S_T0}, 10")
        b.e(f"s_add_u32 s{S_T0}, s{S_T0}, {PART}")
        for p in range(12):
            b.e(f"buffer_load_dwordx4 {vr(RB_+4*p,4)}, v{V_L16}, {sr(R_WS,4)}, s{S_T0} offen sc1")
            if p < 11:
                b.e(f"s_add_u32 s{S_T0}, s{S_T0}, {PSZ}")
        b.raw("L_r1_ret:")

    def r2(b):
        b.e(f"s_mov_b32 s{S_TR2}, 100")
        b.e("s_waitcnt vmcnt(R2WAIT)")
        for p in range(12):
            for k in range(4):
                r = RB_ + 4 * p + k
                d = F_ if p == 0 else T_
                b.e(f"v_lshlrev_b32 v{d+2*k}, 16, v{r}")
                b.e(f"v_and_b32 v{d+2*k+1}, 0xffff0000, v{r}")
            if p:
                for k in range(8):
                    b.e(f"v_add_f32 v{F_+k}, v{F_+k}, v{T_+k}")
        for k in range(4):
            b.e(f"v_cvt_pk_bf16_f32 v{T_+k}, v{F_+2*k}, v{F_+2*k+1}")
        for k in range(4):
            b.e(f"v_lshlrev_b32 v{F_+2*k}, 16, v{T_+k}")
            b.e(f"v_and_b32 v{F_+2*k+1}, 0xffff0000, v{T_+k}")
        for k in range(8):
            b.e(f"v_mul_f32 v{T_+k}, s{S_NL2E}, v{F_+k}")
        for k in range(8):
            b.e(f"v_exp_f32 v{T_+k}, v{T_+k}")
        for k in range(8):
            b.e(f"v_add_f32 v{T_+k}, 1.0, v{T_+k}")
        for k in range(8):
            b.e(f"v_rcp_f32 v{T_+k}, v{T_+k}")
        for k in range(8):
            b.e(f"v_mul_f32 v{F_+k}, v{F_+k}, v{T_+k}")
        for k in range(4):
            b.e(f"v_cvt_pk_bf16_f32 v{T_+k}, v{F_+2*k}, v{F_+2*k+1}")
        b.e(f"s_bfe_u32 s{S_T0}, s{S_RBLK}, 0x20001")
        b.e(f"s_lshl_b32 s{S_T1}, s{S_RB}, 2")
        b.e(f"s_add_u32 s{S_T0}, s{S_T0}, s{S_T1}")
        b.e(f"s_mul_i32 s{S_T0}, s{S_T0}, {32*1152}")
        b.e(f"s_lshl_b32 s{S_T1}, s{S_RNG}, 7")
        b.e(f"s_add_u32 s{S_T0}, s{S_T0}, s{S_T1}")
        b.e(f"s_lshr_b32 s{S_T1}, s{S_RBLK}, 3")
        b.e(f"s_lshl_b32 s{S_T1}, s{S_T1}, 6")
        b.e(f"s_add_u32 s{S_T0}, s{S_T0}, s{S_T1}")
        b.e(f"s_and_b32 s{S_T1}, s{S_RBLK}, 1")
        b.e(f"s_lshl_b32 s{S_T1}, s{S_T1}, 5")
        b.e(f"s_add_u32 s{S_T0}, s{S_T0}, s{S_T1}")
        b.e(f"s_add_u32 s{S_T0}, s{S_T0}, {PART + 12*PSZ}")
        b.e(f"buffer_store_dwordx2 {vr(T_,2)}, v{VG}, {sr(R_WS,4)}, s{S_T0} offen sc1")
        b.e(f"buffer_store_dwordx2 {vr(T_+2,2)}, v{VG}, {sr(R_WS,4)}, s{S_T0} offen offset:16 sc1")
        b.e("s_nop 1")
    vmat = {}

    def site(name, j, d=0):
        def f():
            vmat.setdefault((name, j), []).append(a.vm)
            a.e(f"s_add_u32 s{S_T0}, s{S_NG0}, {j}")
            a.e(f"s_cmp_eq_u32 s{S_T0}, s{S_TR2}" if d else f"s_cmp_ge_u32 s{S_T0}, s{S_TRG}")
            a.e(f"s_cbranch_scc1 L_{name}_t{j}")
            a.raw(f"L_{name}_b{j}:")
        return f

    def signal_code(off_lines, skip0=None, name=""):
        t = [f"L_sg{name}:"]
        if skip0:
            t += [f"    s_cmp_eq_u32 s{S_IT}, 0", f"    s_cbranch_scc1 L_sg{name}_b"]
        t += ["    " + x for x in off_lines]
        t += [f"    s_lshl_b32 s{S_T1}, s{S_RB}, 11", f"    s_add_u32 s{S_T0}, s{S_T0}, s{S_T1}", f"    s_lshl_b32 s{S_T1}, s{S_SPLIT}, 2",
              f"    s_add_u32 s{S_T0}, s{S_T0}, s{S_T1}",
              f"    v_mov_b32 v{VG+1}, 1", f"    v_mov_b32 v0, 0", "    s_mov_b64 exec, 1",
              f"    buffer_store_dword v{VG+1}, v0, {sr(R_WS,4)}, s{S_T0} offen sc1", "    s_mov_b64 exec, -1", f"    s_branch L_sg{name}_b"]
        ool.append("\n".join(t))

    def signal_site(name):
        a.e(f"s_cmp_eq_u32 s{S_W}, 0")
        a.e(f"s_cbranch_scc1 L_sg{name}")
        a.raw(f"L_sg{name}_b:")
    for j in range(3):
        signal_code([f"s_lshl_b32 s{S_T0}, s{S_NG0}, 6", f"s_add_u32 s{S_T0}, s{S_T0}, {FLG + 128 + 64*(j-2)}"], skip0=(j < 2), name=f"p{j}")
    frags2 = []
    for j in range(3):
        for kap in range(24):
            A = j * 49152 + kap * 2048
            frags2.append(dict(stage=A // SB, first=(len(frags2) % FPS == 0), rd=addr(A),
                               mf=[mk(acc2(j), X32(kap), kap == 0)]))
    fill2 = {}
    spread(fill2, epi2(2, S_PST, 0), 2, 8)
    spread(fill2, epi2(0, None, 0), 24 + 2, 24 + 8)
    spread(fill2, epi2(1, None, 16384), 48 + 2, 48 + 8)
    for j in range(3):
        pass

    def dma2(g, i):
        def f():
            t = (g + NS - 2) % NS
            d = t * KPS + i
            dma_raw(t, i, V_D2, R_W2, S_T3, f"s_mov_b32 s{S_T3}, s{S_PTR}")
            a.e(f"s_add_u32 s{S_PTR}, s{S_PTR}, {73728 if d % 6 != 5 else (128 - 5*73728) & 0xffffffff}")
        return f

    def setend():
        a.e(f"s_cmp_eq_u32 s{S_IT}, 2")
        a.e(f"s_cselect_b32 s{S_PTR}, 0x70000000, s{S_PTR}")
    place_dma(fill2, dma2, setend)
    add_sync(fill2)
    first2 = [True]

    def on_stage2(g):
        g %= 1000
        if first2[0]:
            first2[0] = False
            return
        SPG = NS // 3
        if g % SPG == SPG - 1:
            j = g // SPG
            a.wait_vm(max(dtk[g], pst.get((j - 2) % 3, 0) if not FLAG("NOPSTW") else 0))
            a.e("s_barrier")
            signal_site(f"p{j}")
        else:
            a.wait_vm(dtk[g])
            a.e("s_barrier")
    a.always = True
    tk2 = [run_stream(a, frags2, fill2, on_stage2, wrap=True, prime=True)]

    def body2():
        tk2[0] = run_stream(a, frags2, fill2, on_stage2, wrap=True, prime=False, tick=dict(tk2[0]))

    def dec2(label):
        if FLAG("ITST"):
            a.e("s_memtime s[94:95]")
            a.wait_lg0()
            a.e(f"s_add_u32 m0, s{S_IT}, 8")
            a.e("s_nop 1")
            a.e(f"v_writelane_b32 v255, s94, m0")
        a.e(f"s_add_u32 s{S_P0}, s{S_P0}, {3*16384}")
        a.e(f"s_mov_b32 s{S_PST}, {(-16384) & 0xffffffff}")
        a.e(f"s_add_u32 s{S_NG0}, s{S_NG0}, 3")
        a.e(f"s_add_u32 s{S_IT}, s{S_IT}, 1")
        a.e(f"s_cmp_lt_u32 s{S_IT}, 3")
        a.e(f"s_cbranch_scc1 {label}")
    loop(a, "L_p2", body2, dec2)
    a.always = False
    for it in epi2(2, S_PST, 0):
        it()
    if FLAG("ITST"):
        a.e(f"s_lshl_b32 s{S_T0}, s2, 11")
        a.e(f"s_lshl_b32 s{S_T1}, s{S_W}, 8")
        a.e(f"s_add_u32 s{S_T0}, s{S_T0}, s{S_T1}")
        a.e(f"s_add_u32 s{S_T0}, s{S_T0}, 0x3D00000")
        a.e(f"v_lshlrev_b32 v254, 2, v{V_LANE}")
        a.e(f"buffer_store_dword v255, v254, {sr(R_WS,4)}, s{S_T0} offen")
    stamp(a, 'v')
    def assign():
        a.e(f"s_lshr_b32 s{S_T0}, s{S_SPLIT}, 1")
        a.e(f"s_add_u32 s{T_CL}, s{S_T0}, 12")
        a.e(f"s_lshl_b32 s{T_CL}, s{T_CL}, 6")
        a.e(f"s_sub_u32 s{T_CE}, s{T_CL}, 384")
        a.e(f"s_and_b32 s{S_T0}, s{S_SPLIT}, 1")
        a.e(f"s_lshl_b32 s{S_T0}, s{S_T0}, 1")
        a.e(f"s_and_b32 s{S_T1}, s{S_W}, 1")
        a.e(f"s_add_u32 s{T_TR}, s{S_T0}, s{S_T1}")
        a.e(f"s_cmp_lt_u32 s{S_R}, 2")
        a.e(f"s_cselect_b32 s{T_ACT}, 1, 0")

    def between():
        stamp(a, 'g')
        signal_code([f"s_mov_b32 s{S_T0}, {FLG + 128 + 64*7}"], name="p3")
        signal_site("p3")
        signal_code([f"s_mov_b32 s{S_T0}, {FLG + 128 + 64*8}"], name="p4")
        signal_site("p4")
    tail(a, "m", assign, between, late_c1=True)
    stamp(a, 'h')
    stamp_out(a)
    a.e("s_endpgm")
    sy.emit_slow()
    for t in ool:
        a.raw(t)


def k1(a):
    a.raw(".globl k1_kernel\n.p2align 8\n.type k1_kernel,@function\nk1_kernel:")
    a.e("s_cmp_ge_u32 s2, 256")
    a.e("s_cbranch_scc1 L_k1_end")
    a.e("s_load_dwordx16 s[4:19], s[0:1], 0")
    a.e("s_load_dwordx4 s[20:23], s[0:1], 64")
    a.e(f"v_and_b32 v{V_LANE}, 63, v0")
    a.e(f"v_lshlrev_b32 v{V_L16}, 4, v{V_LANE}")
    a.e(f"v_lshrrev_b32 v{V_T}, 6, v0")
    a.e(f"v_readfirstlane_b32 s{S_W}, v{V_T}")
    a.e(f"s_and_b32 s{S_R}, s{S_W}, 3")
    a.e(f"s_lshr_b32 s{S_C}, s{S_W}, 2")
    a.e(f"s_and_b32 s{S_T0}, s2, 7")
    a.e(f"s_lshr_b32 s{S_T1}, s2, 3")
    if MAPC:
        a.e(f"s_and_b32 s{S_T2}, s{S_T0}, 3")
        a.e(f"s_lshl_b32 s{S_T2}, s{S_T2}, 2")
        a.e(f"s_and_b32 s{S_T3}, s{S_T1}, 3")
        a.e(f"s_add_u32 s{S_RB}, s{S_T2}, s{S_T3}")
        a.e(f"s_lshr_b32 s{S_T0}, s{S_T0}, 2")
        a.e(f"s_lshr_b32 s{S_T1}, s{S_T1}, 2")
    else:
        a.e(f"s_and_b32 s{S_T2}, s{S_T0}, 1")
        a.e(f"s_lshl_b32 s{S_T2}, s{S_T2}, 3")
        a.e(f"s_and_b32 s{S_T3}, s{S_T1}, 7")
        a.e(f"s_add_u32 s{S_RB}, s{S_T2}, s{S_T3}")
        a.e(f"s_lshr_b32 s{S_T0}, s{S_T0}, 1")
        a.e(f"s_lshr_b32 s{S_T1}, s{S_T1}, 3")
    a.e("s_waitcnt lgkmcnt(0)")
    srd(a, R_X, S_X, 2359296)
    srd(a, R_WS, S_WS, WS_SZ)
    srd(a, R_DBG, S_DBG, 256)
    if int(os.environ.get("CODEPF", "0")):
        a.e(f"s_getpc_b64 s[{R_A}:{R_A+1}]")
        a.raw("L_pc0:")
        a.e(f"s_mov_b32 s{R_A+2}, L_k1_end-L_pc0")
        a.e(f"s_mov_b32 s{R_A+3}, 0x20000")
        a.e(f"v_lshlrev_b32 v{V_T}, 6, v0")
        for k in range((int(os.environ.get('CODEPF'))+31)//32):
            a.e(f"s_mov_b32 s{S_T2}, {k*32768}")
            a.e(f"buffer_load_dword v0, v{V_T}, {sr(R_A,4)}, s{S_T2} offen")
    a.e(f"s_cmp_ge_u32 s{S_T1}, {6 if MAPC else 3}")
    a.e("s_cbranch_scc1 L_att")
    a.e(f"s_mul_i32 s{S_SPLIT}, s{S_T0}, {6 if MAPC else 3}")
    a.e(f"s_add_u32 s{S_SPLIT}, s{S_SPLIT}, s{S_T1}")
    if FLAG("MAPA"):
        a.e(f"s_and_b32 s{S_T0}, s2, 7")
        a.e(f"s_mul_i32 s{S_T0}, s{S_T0}, 24")
        a.e(f"s_lshr_b32 s{S_T1}, s2, 3")
        a.e(f"s_add_u32 s{S_T0}, s{S_T0}, s{S_T1}")
        a.e(f"s_lshr_b32 s{S_SPLIT}, s{S_T0}, 4")
        a.e(f"s_and_b32 s{S_RB}, s{S_T0}, 15")
    mlp(a)
    a.label("L_att")
    if MAPC:
        a.e(f"s_lshl_b32 s{S_HG}, s{S_T0}, 1")
        a.e(f"s_add_u32 s{S_HG}, s{S_HG}, s{S_T1}")
        a.e(f"s_sub_u32 s{S_HG}, s{S_HG}, 6")
    else:
        a.e(f"s_mov_b32 s{S_HG}, s{S_T0}")
    try:
        import gen_att
        gen_att.att(a)
    except ImportError:
        pass
    a.label("L_k1_end")
    a.e("s_endpgm")


def desc(name, vgpr, sgpr):
    return f""".p2align 6
.amdhsa_kernel {name}
  .amdhsa_next_free_vgpr {vgpr}
  .amdhsa_next_free_sgpr {sgpr}
  .amdhsa_accum_offset {(vgpr+3)//4*4}
  .amdhsa_group_segment_fixed_size 0
  .amdhsa_kernarg_size 80
  .amdhsa_user_sgpr_count 2
  .amdhsa_user_sgpr_kernarg_segment_ptr 1
  .amdhsa_system_sgpr_workgroup_id_x 1
.end_amdhsa_kernel"""


def main():
    a = Asm()
    a.raw(f"; @launch kernel=k1_kernel grid=(256,1,1) block=(512,1,1) lds={LDS_SZ}")
    have_k2 = False
    if have_k2:
        a.raw(gen_k2.LAUNCH)
    a.raw('.amdgcn_target "amdgcn-amd-amdhsa--gfx950"\n.text')
    k1(a)
    if have_k2:
        b = Asm()
        gen_k2.k2(b)
        a.raw(b.text())
    a.raw('.section .rodata,"a"')
    a.raw(desc("k1_kernel", 256, 102))
    if have_k2:
        a.raw(desc("k2_kernel", gen_k2.VGPRS, 48))
    sys.stdout.write(a.text())


if __name__ == "__main__":
    main()
```

```python
import sys
from asmlib import Asm, vr, sr

HS = 0x0000000
PART = 0x1200000
PSZ = 2359296
QF = 0x3000000
K0 = 0x3400000
V0 = 0x3600000
KX = 0x3800000
VX = 0x3840000
OF = 0x3900000
FLG = 0x3E00000
WS_SZ = 0x4000000
XBASE = 16384
LDS_SZ = 163840
LOG2E = 0x3FB8AA3B
NLOG2E = 0xBFB8AA3B

S_X, S_WQKV, S_WO, S_BX, S_WG, S_WU, S_WD, S_OUT, S_DBG, S_WS = 4, 6, 8, 10, 12, 14, 16, 18, 20, 22
R_X, R_W1, R_W2, R_WS, R_DBG, R_A, R_B = 24, 28, 32, 36, 40, 44, 48
S_W, S_R, S_C, S_RB, S_SPLIT, S_T0, S_T1, S_T2, S_T3 = 52, 53, 54, 55, 56, 57, 58, 59, 60
S_WLDS, S_W1B, S_W2B, S_H0, S_H1, S_P0, S_P1, S_NL2E, S_XREG, S_XPAR = 61, 62, 63, 64, 65, 66, 67, 68, 69, 70
S_HG = S_SPLIT

V_LANE, V_L16, V_D1, V_D2 = 1, 2, 3, 4
V_RD = 5
V_T = 11
FR = 16
NFR = int(__import__("os").environ.get("NFR", "6"))
PD = NFR - 2
ACC = 40
XN = 104


def X(rho, s):
    return XN + (rho * 18 + s) * 4


def X32(s):
    return XN + s * 4


import os
STAMP = int(os.environ.get("STAMP", "0"))
def FLAG(n):
    return int(os.environ.get(n, "0"))
MAPC = int(os.environ.get("MAPC", "0"))
_nst = [0]
STSEL = os.environ.get("STSEL", "a,b,f,g,h").split(",")
def stamp(a, name="a"):
    if not STAMP or name not in STSEL:
        return
    k = _nst[0]; _nst[0] += 1
    a.e(f"s_memtime s[{76+4*k}:{77+4*k}]")
    a.e(f"s_memrealtime s[{78+4*k}:{79+4*k}]")
    a.wait_lg0()

def stamp_out(a):
    if not STAMP:
        return
    n = _nst[0]; _nst[0] = 0
    a.e(f"s_lshl_b32 s{S_T0}, s2, 6")
    a.e(f"s_add_u32 s{S_T0}, s{S_T0}, 0x3F00000")
    a.e(f"v_mov_b32 v20, 0")
    a.e(f"s_cmp_eq_u32 s{S_W}, {os.environ.get('STW', '0')}")
    a.e(f"s_cbranch_scc0 L_nostamp{id(a)}_{a.nins}")
    lab = a.out[-1].split()[-1]
    for k in range(n):
        a.e(f"v_mov_b32 v16, s{76+4*k}")
        a.e(f"v_mov_b32 v17, s{78+4*k}")
        a.e(f"buffer_store_dwordx2 v[16:17], v20, {sr(R_WS,4)}, s{S_T0} offen offset:{8*k}")
        a.e("s_nop 2")
    if FLAG("STDBG"):
        a.e(f"s_and_b32 s{S_T0}, s2, 63")
        a.e(f"s_cmp_eq_u32 s{S_T0}, 9")
        a.e(f"s_cbranch_scc0 {lab}")
        a.e(f"s_lshr_b32 s{S_T0}, s2, 6")
        a.e(f"s_cmp_eq_u32 s{S_T0}, 0")
        a.e(f"s_cselect_b32 s{S_T1}, 0, 32")
        a.e(f"s_add_u32 s{S_T0}, s{S_T0}, 1")
        a.e(f"s_and_b32 s{S_T0}, s{S_T0}, 2")
        a.e(f"s_cbranch_scc1 {lab}")
        for k in range(1, n):
            a.e(f"s_sub_u32 s{S_T0}, s{78+4*k}, s78")
            a.e(f"v_mov_b32 v16, s{S_T0}")
            a.e(f"buffer_store_dword v16, v20, {sr(R_DBG,4)}, s{S_T1} offen offset:{4*(k-1)}")
            a.e("s_nop 2")
    a.label(lab)


def srd(a, d, base, nbytes):
    a.e(f"s_mov_b32 s{d}, s{base}")
    a.e(f"s_mov_b32 s{d+1}, s{base+1}")
    a.e(f"s_mov_b32 s{d+2}, {nbytes}")
    a.e(f"s_mov_b32 s{d+3}, 0x20000")


def bf16_round(a, v, tmp=None):
    a.e(f"v_cvt_pk_bf16_f32 v{v}, v{v}, v{v}")
    a.e(f"v_lshlrev_b32 v{v}, 16, v{v}")


def x_stage_issue(a):
    t0, t1, t2 = V_T, V_T + 1, V_T + 2
    a.e(f"v_lshrrev_b32 v{t0}, 3, v{V_LANE}")
    a.e(f"v_and_b32 v{t1}, 7, v{V_LANE}")
    a.e(f"v_lshrrev_b32 v{t2}, 1, v{t0}")
    a.e(f"v_xor_b32 v{t1}, v{t1}, v{t2}")
    a.e(f"v_mul_u32_u24 v{t0}, 1152, v{t0}")
    a.e(f"v_lshl_add_u32 v{t2}, v{t1}, 4, v{t0}")
    a.e(f"v_xor_b32 v{t1}, 4, v{t1}")
    a.e(f"v_lshl_add_u32 v{t1}, v{t1}, 4, v{t0}")
    a.e(f"v_add_u32 v{t1}, {8*1152-1024}, v{t1}")
    a.e(f"s_lshl_b32 s{S_T0}, s{S_RB}, 7")
    a.e(f"s_lshl_b32 s{S_T1}, s{S_R}, 5")
    a.e(f"s_add_u32 s{S_T0}, s{S_T0}, s{S_T1}")
    a.e(f"s_lshl_b32 s{S_T1}, s{S_C}, 4")
    a.e(f"s_add_u32 s{S_T0}, s{S_T0}, s{S_T1}")
    a.e(f"s_mul_i32 s{S_T0}, s{S_T0}, 1152")
    a.e(f"s_lshl_b32 s{S_T1}, s{S_R}, 1")
    a.e(f"s_add_u32 s{S_T2}, s{S_T1}, s{S_C}")
    a.e(f"s_mul_i32 s{S_XREG}, s{S_T2}, 18432")
    a.e(f"s_add_u32 s{S_XREG}, s{S_XREG}, {XBASE}")
    a.e(f"s_xor_b32 s{S_T2}, s{S_T2}, 1")
    a.e(f"s_mul_i32 s{S_XPAR}, s{S_T2}, 18432")
    a.e(f"s_add_u32 s{S_XPAR}, s{S_XPAR}, {XBASE}")
    tk = None
    a.e(f"s_lshr_b32 s{S_T2}, s2, {5 if MAPC else 6}")
    a.e(f"s_lshl_b32 s{S_T2}, s{S_T2}, {7 if MAPC else 8}")
    for cb in range(9):
        a.e(f"s_lshl_b32 s{S_T3}, s{S_T2}, 4")
        a.e(f"s_add_u32 m0, s{S_XREG}, s{S_T3}")
        a.e(f"s_add_u32 s{S_T1}, s{S_T0}, s{S_T2}")
        a.e(f"buffer_load_dwordx4 v{t2}, {sr(R_X,4)}, s{S_T1} offen lds")
        tk = a.e(f"buffer_load_dwordx4 v{t1}, {sr(R_X,4)}, s{S_T1} offen offset:1024 lds")
        if cb < 8:
            a.e(f"s_add_u32 s{S_T2}, s{S_T2}, 128")
            a.e(f"s_cmp_eq_u32 s{S_T2}, 1152")
            a.e(f"s_cselect_b32 s{S_T2}, 0, s{S_T2}")
    return tk


def init_issue(a, vaddr, vtmp):
    return a.e(f"buffer_load_dword v{vtmp}, v{vaddr}, {sr(R_DBG,4)}, 0 offen offset:64 sc1")


def init_check(a, name, vaddr, vtmp, tk):
    a.wait_vm(tk)
    a.e(f"v_cmp_eq_u32 vcc, 0, v{vtmp}")
    a.e(f"s_cbranch_vccz L_ic_{name}_x")
    a.e(f"s_mov_b32 s{S_T2}, 0")
    a.raw(f"L_ic_{name}:")
    a.e_untracked(f"buffer_load_dword v{vtmp}, v{vaddr}, {sr(R_DBG,4)}, 0 offen offset:64 sc1")
    a.e(f"s_add_u32 s{S_T2}, s{S_T2}, 1")
    a.e(f"s_cmp_gt_u32 s{S_T2}, 0x40000")
    a.e(f"s_cbranch_scc1 L_ic_{name}_x")
    a.e("s_waitcnt vmcnt(0)")
    a.e(f"v_cmp_eq_u32 vcc, 0, v{vtmp}")
    a.e(f"s_cbranch_vccnz L_ic_{name}")
    a.raw(f"L_ic_{name}_x:")


def layernorm(a, xtk, after_x=None, m32=False):
    T = ACC
    m, q = T, T + 1
    a.e(f"v_and_b32 v{m}, 15, v{V_LANE}")
    a.e(f"v_lshrrev_b32 v{q}, 4, v{V_LANE}")
    b = T + 2
    a.e(f"v_and_b32 v{b}, 1, v{q}")
    a.e(f"v_lshlrev_b32 v{b}, 3, v{b}")
    a.e(f"v_lshl_add_u32 v{b}, v{m}, 7, v{b}")
    a.e(f"v_add_u32 v{b}, s{S_XREG}, v{b}")
    sw = T + 3
    a.e(f"v_lshrrev_b32 v{sw}, 1, v{m}")
    if m32:
        a.e(f"v_and_b32 v{T+4}, 2, v{q}")
    else:
        a.e(f"v_lshrrev_b32 v{T+4}, 1, v{q}")
    a.e(f"v_xor_b32 v{sw}, v{sw}, v{T+4}")
    ad = T + 8
    for k in range(4):
        a.e(f"v_xor_b32 v{T+4}, {(4*(k>>1) + (k&1)) if m32 else 2*k}, v{sw}")
        a.e(f"v_lshl_add_u32 v{ad+k}, v{T+4}, 4, v{b}")
    ones = T + 12
    for k in range(4):
        a.e(f"v_mov_b32 v{ones+k}, 0x3f803f80")
    a.wait_vm(xtk)
    stamp(a, 'b')
    s1, s2 = T + 16, T + 20
    tks = []
    for s in range(18):
        for j in range(2):
            tk = a.e(f"ds_read_b64 {vr(X(0,s)+2*j,2)}, v{ad+2*(s&1)+j} offset:{(s>>1)*2048}")
        tks.append(tk)
        if s >= 4:
            ss = s - 4
            a.wait_lg(tks[ss])
            a.e(f"v_mfma_f32_16x16x32_bf16 {vr(s1,4)}, {vr(ones,4)}, {vr(X(0,ss),4)}, {vr(s1,4) if ss else '0'}")
            a.e(f"v_mfma_f32_16x16x32_bf16 {vr(s2,4)}, {vr(X(0,ss),4)}, {vr(X(0,ss),4)}, {vr(s2,4) if ss else '0'}")
    for ss in range(14, 18):
        a.wait_lg(tks[ss])
        a.e(f"v_mfma_f32_16x16x32_bf16 {vr(s1,4)}, {vr(ones,4)}, {vr(X(0,ss),4)}, {vr(s1,4)}")
        a.e(f"v_mfma_f32_16x16x32_bf16 {vr(s2,4)}, {vr(X(0,ss),4)}, {vr(X(0,ss),4)}, {vr(s2,4)}")
    t = T + 4
    a.e(f"v_and_b32 v{t}, 3, v{m}")
    a.e(f"v_cmp_eq_u32 vcc, 1, v{t}")
    a.e(f"v_cndmask_b32 v{s2}, v{s2}, v{s2+1}, vcc")
    a.e(f"v_cmp_eq_u32 vcc, 2, v{t}")
    a.e(f"v_cndmask_b32 v{s2}, v{s2}, v{s2+2}, vcc")
    a.e(f"v_cmp_eq_u32 vcc, 3, v{t}")
    a.e(f"v_cndmask_b32 v{s2}, v{s2}, v{s2+3}, vcc")
    a.e(f"v_lshrrev_b32 v{t}, 2, v{m}")
    a.e(f"v_lshl_add_u32 v{t}, v{t}, 4, v{m}")
    a.e(f"v_lshlrev_b32 v{t}, 2, v{t}")
    tk = a.e(f"ds_bpermute_b32 v{s2}, v{t}, v{s2}")
    inv = 0x3AE38E39
    a.e(f"v_mul_f32 v{s1}, 0x{inv:x}, v{s1}")
    a.wait_lg(tk)
    a.e(f"v_mul_f32 v{s2}, 0x{inv:x}, v{s2}")
    a.e(f"v_fma_f32 v{s2}, -v{s1}, v{s1}, v{s2}")
    a.e(f"v_max_f32 v{s2}, 0, v{s2}")
    bf16_round(a, s2)
    a.e(f"v_add_f32 v{s2}, 0x3727c5ac, v{s2}")
    bf16_round(a, s2)
    a.e(f"v_sqrt_f32 v{s2}, v{s2}")
    bf16_round(a, s2)
    a.e(f"v_rcp_f32 v{s2}, v{s2}")
    bf16_round(a, s1)
    a.e(f"v_mul_f32 v{s1}, v{s1}, v{s2}")
    a.e(f"v_sub_f32 v{s1}, 0, v{s1}")
    stamp(a, 'c')
    wa = T + 5
    a.e(f"v_add_u32 v{wa}, s{S_XREG}, v{V_L16}")
    tmp = T + 24
    for s in range(18):
        for k in range(4):
            xr = X(0, s) + k
            lo = tmp + 2 * k
            a.e(f"v_lshlrev_b32 v{lo}, 16, v{xr}")
            a.e(f"v_and_b32 v{lo+1}, 0xffff0000, v{xr}")
        for k in range(4):
            lo = tmp + 2 * k
            a.e(f"v_fma_f32 v{lo}, v{lo}, v{s2}, v{s1}")
            a.e(f"v_fma_f32 v{lo+1}, v{lo+1}, v{s2}, v{s1}")
        for k in range(4):
            lo = tmp + 2 * k
            a.e(f"v_cvt_pk_bf16_f32 v{X(0,s)+k}, v{lo}, v{lo+1}")
        a.e(f"ds_write_b128 v{wa}, {vr(X(0,s),4)} offset:{s*1024}")
    if m32:
        a.e(f"s_min_u32 s{S_T0}, s{S_XREG}, s{S_XPAR}")
        a.e(f"v_bfe_u32 v{T+4}, v{V_LANE}, 4, 1")
        a.e(f"v_mul_u32_u24 v{wa}, 18432, v{T+4}")
        a.e(f"v_lshrrev_b32 v{T+4}, 5, v{V_LANE}")
        a.e(f"v_lshl_add_u32 v{wa}, v{T+4}, 8, v{wa}")
        a.e(f"v_lshl_add_u32 v{wa}, v{m}, 4, v{wa}")
        a.e(f"v_add_u32 v{wa}, s{S_T0}, v{wa}")
    else:
        a.e(f"v_add_u32 v{wa}, s{S_XPAR}, v{V_L16}")
    a.wait_lg0()
    stamp(a, 'd')
    a.e("s_barrier")
    stamp(a, 'e')
    if after_x:
        after_x()
    if m32:
        for s in range(36):
            a.e(f"ds_read_b128 {vr(X32(s),4)}, v{wa} offset:{s*512}")
    else:
        for s in range(18):
            a.e(f"ds_read_b128 {vr(X(1,s),4)}, v{wa} offset:{s*1024}")
    a.wait_lg0()
    a.e("s_barrier")


def run_stream(a, frags, fill, on_stage, wrap=False, prime=True, tick=None, base=0):
    N = len(frags)
    assert (not wrap) or N % NFR == 0
    if tick is None:
        tick = {}

    def rd(m, j):
        f = frags[m % N]
        if j == 0 and f.get("first"):
            on_stage(f["stage"] + (1000 if m >= N else 0))
        r = FR + 4 * (m % NFR)
        vb, imm = f["rd"][j]
        if FLAG("NORD") and not prime:
            tick[m] = a.lg
            return
        tick[m] = a.e(f"ds_read_b64_tr_b16 {vr(r+2*j,2)}, v{vb} offset:{imm}")

    if prime:
        for m in range(min(PD, N)):
            rd(m, 0)
            rd(m, 1)
        if wrap:
            return tick
    for n in range(N):
        f = frags[n]
        r = FR + 4 * (n % NFR)
        fl = list(fill.get(n, []))
        nm = len(f["mf"])
        for c in f.get("pre", []):
            c()
        a.wait_lg(tick[n])
        for k, mf in enumerate(f["mf"]):
            a.e(mf(r))
            if n + PD < N or wrap:
                if nm == 1:
                    rd(n + PD, 0)
                    rd(n + PD, 1)
                elif k < 2:
                    rd(n + PD, k)
            cnt = (len(fl) + (nm - k) - 1) // (nm - k)
            for c in fl[:cnt]:
                c()
            fl = fl[cnt:]
    if wrap:
        return {m: tick[N + m] for m in range(PD)}
    return tick


def loop(a, label, body, niter_sgpr_dec):
    a.raw(label + ":")
    n0 = len(a.out)
    body()
    niter_sgpr_dec(label)
    t1 = a.out[n0:]
    n1 = len(a.out)
    body()
    niter_sgpr_dec(label)
    t2 = a.out[n1:]
    if t1 != t2:
        for x, y in zip(t1, t2):
            if x != y:
                sys.stderr.write(f"LOOP MISMATCH {label}: {x!r} vs {y!r}\n")
        assert len(t1) == len(t2), "loop body length mismatch"
        import re
        for k, (x, y) in enumerate(zip(t1, t2)):
            if x != y:
                mx, my = re.match(r"\s*s_waitcnt (vm|lgkm)cnt\((\d+)\)", x), re.match(r"\s*s_waitcnt (vm|lgkm)cnt\((\d+)\)", y)
                assert mx and my and mx.group(1) == my.group(1), (x, y)
                t1[k] = x if int(mx.group(2)) <= int(my.group(2)) else y
        a.out[n0:n1] = t1
    del a.out[n1:]


V_FW, V_FR, V_FV, V_FT = 248, 249, 252, 253
FLAGS = 147456


class Sync:
    def __init__(self, a, tag):
        self.a, self.tag, self.slow, self.tk, self.n = a, tag, {}, None, 0

    def setup(self):
        a = self.a
        a.e(f"s_lshl_b32 s{S_T0}, s{S_W}, 8")
        a.e(f"s_add_u32 s{S_T0}, s{S_T0}, {FLAGS+64}")
        a.e(f"v_lshlrev_b32 v{V_FW}, 2, v{V_LANE}")
        a.e(f"v_add_u32 v{V_FW}, s{S_T0}, v{V_FW}")
        a.e(f"s_lshl_b32 s{S_T0}, s{S_W}, 2")
        a.e(f"s_add_u32 s{S_T0}, s{S_T0}, {FLAGS}")
        a.e(f"v_mov_b32 v{V_FT}, s{S_T0}")
        a.e(f"v_cmp_eq_u32 vcc, 0, v{V_LANE}")
        a.e(f"v_cndmask_b32 v{V_FW}, v{V_FW}, v{V_FT}, vcc")
        a.e(f"v_and_b32 v{V_FR}, 7, v{V_LANE}")
        a.e(f"v_lshlrev_b32 v{V_FR}, 2, v{V_FR}")
        a.e(f"v_add_u32 v{V_FR}, {FLAGS}, v{V_FR}")
        a.e(f"v_mov_b32 v{V_FV}, 0")
        a.e(f"ds_write_b32 v{V_FW}, v{V_FV}")

    def arrive(self, tk):
        a = self.a
        a.e(f"v_add_u32 v{V_FV}, 1, v{V_FV}")
        a.wait_vm(tk)
        a.e(f"ds_write_b32 v{V_FW}, v{V_FV}")

    def read(self):
        self.tk = self.a.e(f"ds_read_b32 v{V_FT}, v{V_FR}")

    def check(self, name):
        a = self.a
        if FLAG("NOBAR"):
            return
        a.wait_lg(self.tk)
        a.e(f"v_cmp_lt_u32 vcc, v{V_FT}, v{V_FV}")
        a.e(f"s_cbranch_vccnz L_slow_{self.tag}_{name}")
        a.raw(f"L_back_{self.tag}_{name}:")
        self.slow[name] = 1

    def emit_slow(self):
        a = self.a
        for name in self.slow:
            a.raw(f"L_slow_{self.tag}_{name}:")
            a.raw(f"    ds_read_b32 v{V_FT}, v{V_FR}")
            a.raw(f"    s_waitcnt lgkmcnt(0)")
            a.raw(f"    v_cmp_lt_u32 vcc, v{V_FT}, v{V_FV}")
            a.raw(f"    s_cbranch_vccnz L_slow_{self.tag}_{name}")
            a.raw(f"    s_branch L_back_{self.tag}_{name}")


def spread(fill, items, n0, n1):
    L = len(items)
    span = n1 - n0
    for i, it in enumerate(items):
        n = n0 + (i * span) // L
        fill.setdefault(n, []).append(it)


def rd_bases(a):
    t0, t1, t2 = V_T, V_T + 1, V_T + 2
    a.e(f"v_lshrrev_b32 v{t0}, 4, v{V_LANE}")
    a.e(f"v_lshrrev_b32 v{t1}, 1, v{t0}")
    a.e(f"v_lshlrev_b32 v{t1}, 10, v{t1}")
    a.e(f"v_and_b32 v{t0}, 1, v{t0}")
    a.e(f"v_lshl_add_u32 v{t1}, v{t0}, 8, v{t1}")
    a.e(f"v_lshl_add_u32 v{t1}, v{t0}, 5, v{t1}")
    a.e(f"v_bfe_u32 v{t2}, v{V_LANE}, 2, 2")
    a.e(f"v_lshl_add_u32 v{t1}, v{t2}, 6, v{t1}")
    a.e(f"v_and_b32 v{t2}, 3, v{V_LANE}")
    a.e(f"v_lshl_add_u32 v{t1}, v{t2}, 3, v{t1}")
    a.e(f"s_lshl_b32 s{S_T0}, s{S_C}, 9")
    a.e(f"v_add_u32 v{V_RD}, s{S_T0}, v{t1}")
    a.e(f"v_xor_b32 v{V_RD+3}, 32, v{V_RD}")
    for k in (1, 2):
        a.e(f"v_add_u32 v{V_RD+k}, {49152*k}, v{V_RD}")
        a.e(f"v_add_u32 v{V_RD+3+k}, {49152*k}, v{V_RD+3}")


def rd_bases32(a):
    t1, t2 = V_T + 1, V_T + 2
    a.e(f"v_lshrrev_b32 v{t1}, 5, v{V_LANE}")
    a.e(f"v_lshlrev_b32 v{t1}, 8, v{t1}")
    a.e(f"v_bfe_u32 v{t2}, v{V_LANE}, 2, 2")
    a.e(f"v_lshl_add_u32 v{t1}, v{t2}, 6, v{t1}")
    a.e(f"v_bfe_u32 v{t2}, v{V_LANE}, 4, 1")
    a.e(f"v_lshl_add_u32 v{t1}, v{t2}, 5, v{t1}")
    a.e(f"v_and_b32 v{t2}, 3, v{V_LANE}")
    a.e(f"v_lshl_add_u32 v{t1}, v{t2}, 3, v{t1}")
    a.e(f"s_lshl_b32 s{S_T0}, s{S_C}, 9")
    a.e(f"v_add_u32 v{V_RD}, s{S_T0}, v{t1}")
    for k in (1, 2):
        a.e(f"v_add_u32 v{V_RD+k}, {49152*k}, v{V_RD}")


T_CE, T_CL, T_TR, T_TC, T_ACT, T_FE, T_FS, T_AE, T_AL, T_BK0, T_BK1, T_NG, T_RB_, T_XB = 66, 70, 72, 71, 73, 63, 62, 64, 65, 74, 75, 69, 67, 98


def tail(a, tag, assign, between, late_c1):
    a.e("s_load_dwordx2 s[4:5], s[0:1], 56")
    a.e("s_load_dwordx2 s[6:7], s[0:1], 16")
    a.e("s_load_dwordx2 s[8:9], s[0:1], 0")
    a.wait_lg0()
    VF1, VF2, VFL, VFO, VG = 248, 249, 250, 251, V_T + 2
    a.e(f"v_min_u32 v{VF1}, 11, v{V_LANE}")
    a.e(f"v_lshlrev_b32 v{VF1}, 2, v{VF1}")
    a.e(f"v_and_b32 v{VF2}, 3, v{V_LANE}")
    a.e(f"v_lshlrev_b32 v{VF2}, 2, v{VF2}")
    assign()
    a.e(f"s_cmp_eq_u32 s{S_C}, 0")
    a.e(f"s_cselect_b32 s{T_TC}, s{T_CE}, s{T_CL}")
    a.e(f"s_lshr_b32 s{T_NG}, s{T_TC}, 7")
    a.e(f"s_bfe_u32 s{S_T0}, s{T_TC}, 0x10006")
    a.e(f"s_lshl_b32 s{T_BK0}, s{S_T0}, 3")
    a.e(f"s_lshl_b32 s{S_T0}, s{T_TR}, 1")
    a.e(f"s_add_u32 s{T_BK0}, s{T_BK0}, s{S_T0}")
    a.e(f"s_add_u32 s{T_BK1}, s{T_BK0}, 1")
    a.e(f"s_lshl_b32 s{T_FS}, s{S_RB}, 11")
    a.e(f"s_add_u32 s{T_FS}, s{T_FS}, {FLG}")
    a.e(f"s_lshl_b32 s{S_T1}, s{T_NG}, 6")
    a.e(f"s_add_u32 s{T_FE}, s{T_FS}, s{S_T1}")
    a.e(f"s_add_u32 s{T_FE}, s{T_FE}, 128")
    a.e(f"s_lshl_b32 s{S_T0}, s{S_RB}, 2")
    a.e(f"s_add_u32 s{S_T0}, s{S_T0}, s{T_TR}")
    a.e(f"s_mul_i32 s{S_T0}, s{S_T0}, {32*1152}")
    a.e(f"s_add_u32 s{T_AE}, s{S_T0}, s{T_TC}")
    a.e(f"s_add_u32 s{T_AL}, s{T_AE}, 32")
    srd(a, R_A, 4, 2359296)
    srd(a, R_B, 6, 663552)
    srd(a, R_X, 8, 2359296)
    a.e(f"s_mov_b32 s{S_NL2E}, 0x{NLOG2E:x}")
    a.e(f"s_lshl_b32 s{S_WLDS}, s{S_W}, 10")
    rd_bases32(a)
    a.e(f"v_and_b32 v{VG}, 31, v{V_LANE}")
    a.e(f"v_mul_u32_u24 v{VG}, 1152, v{VG}")
    a.e(f"v_lshrrev_b32 v{VFL}, 5, v{V_LANE}")
    a.e(f"v_lshl_add_u32 v{VG}, v{VFL}, 3, v{VG}")
    a.e(f"s_sub_u32 s{S_T0}, s{T_CL}, s{T_CE}")
    a.e(f"v_mul_lo_u32 v{V_D2}, v{VFL}, s{S_T0}")
    a.e(f"v_bfe_u32 v{VFL}, v{V_LANE}, 2, 3")
    a.e(f"v_mul_u32_u24 v{VFL}, 1152, v{VFL}")
    a.e(f"v_add_u32 v{V_D2}, v{V_D2}, v{VFL}")
    a.e(f"v_and_b32 v{VFL}, 3, v{V_LANE}")
    a.e(f"v_lshl_add_u32 v{V_D2}, v{VFL}, 4, v{V_D2}")
    a.e(f"v_bfe_u32 v{VFL}, v{V_LANE}, 4, 1")
    a.e(f"v_mul_u32_u24 v{VFL}, {32*1152}, v{VFL}")
    a.e(f"v_add_u32 v{V_D1}, v{V_D2}, v{VFL}")
    a.e(f"s_lshr_b32 s{S_T0}, s{S_W}, 1")
    a.e(f"s_mul_i32 s{S_T1}, s{S_T0}, 18")
    a.e(f"s_and_b32 s{S_T2}, s{S_T0}, 1")
    a.e(f"s_lshl_b32 s{S_T2}, s{S_T2}, 1")
    a.e(f"s_add_u32 s{S_T1}, s{S_T1}, s{S_T2}")
    a.e(f"s_and_b32 s{S_T2}, s{S_W}, 1")
    a.e(f"s_lshl_b32 s{S_T3}, s{S_T2}, 3")
    a.e(f"s_add_u32 s{S_T1}, s{S_T1}, s{S_T3}")
    a.e(f"s_mul_i32 s{S_T1}, s{S_T1}, 1152")
    a.e(f"s_add_u32 s{T_RB_}, s{S_T1}, s{T_CE}")
    a.e(f"s_mul_i32 s{S_T0}, s{S_T0}, 144")
    a.e(f"s_mul_i32 s{S_T2}, s{S_T2}, 72")
    a.e(f"s_add_u32 s{S_T0}, s{S_T0}, s{S_T2}")
    a.e(f"s_add_u32 s{S_T0}, s{S_T0}, 16")
    a.e(f"s_mul_i32 s{S_T0}, s{S_T0}, 1152")
    a.e(f"s_add_u32 s{T_XB}, s{S_T0}, s{T_CE}")
    a.e(f"buffer_load_dword v{VFO}, v{VF2}, {sr(R_WS,4)}, s{T_FS} offen sc1")
    tst = a.e(f"buffer_load_dword v{VFL}, v{VF1}, {sr(R_WS,4)}, s{T_FE} offen sc1")
    a.e("s_barrier")
    for k in range(8):
        a.e(f"s_add_u32 m0, s{S_WLDS}, {k*8192}")
        a.e(f"s_add_u32 s{S_T3}, s{T_RB_}, {k*72*1152}")
        a.e(f"buffer_load_dwordx4 v{V_D2}, {sr(R_B,4)}, s{S_T3} offen lds")
    a.e(f"s_add_u32 m0, s{S_WLDS}, {8*8192}")
    a.e("s_nop 0")
    a.e(f"buffer_load_dwordx4 v{V_D1}, {sr(R_B,4)}, s{T_XB} offen lds")
    a.wait_vm(tst)
    a.e("s_barrier")
    between()
    a.e(f"s_cmp_lg_u32 s{T_ACT}, 0")
    a.e(f"s_cbranch_scc1 L_{tag}_work")
    a.e("s_waitcnt vmcnt(0)")
    a.e("s_barrier")
    a.e(f"s_branch L_{tag}_fin")
    a.raw(f"L_{tag}_work:")

    def addr(A):
        k = A // 49152
        return [(V_RD + k, A - 49152 * k), (V_RD + k, A - 49152 * k + 1024)]

    def mk(acc, b, first):
        return lambda r: f"v_mfma_f32_32x32x16_bf16 {vr(acc,16)}, {vr(r,4)}, {vr(b,4)}, {'0' if first else vr(acc,16)}"

    def spin(name, vaddr, soff, want, preloaded=False, VFL=VFL):
        name = tag + name
        a.e(f"s_mov_b32 s{S_T2}, 0")
        if preloaded:
            a.e(f"s_branch L_sp_{name}_c")
        a.raw(f"L_sp_{name}:")
        a.e_untracked(f"buffer_load_dword v{VFL}, v{vaddr}, {sr(R_WS,4)}, s{soff} offen sc1")
        a.e(f"s_add_u32 s{S_T2}, s{S_T2}, 1")
        a.e(f"s_cmp_gt_u32 s{S_T2}, 0x40000")
        a.e(f"s_cbranch_scc1 L_sp_{name}_x")
        a.e("s_waitcnt vmcnt(0)")
        a.raw(f"L_sp_{name}_c:")
        a.e(f"v_cmp_gt_u32 vcc, {want}, v{VFL}")
        a.e(f"s_cbranch_vccz L_sp_{name}_x")
        a.e("s_sleep 4")
        a.e(f"s_branch L_sp_{name}")
        a.raw(f"L_sp_{name}_x:")

    def ld_part(dst, bk, xr, aoff):
        a.e(f"s_mul_i32 s{S_T0}, s{S_RB}, 9")
        a.e(f"s_add_u32 s{S_T0}, s{S_T0}, s{T_NG}")
        a.e(f"s_lshl_b32 s{S_T0}, s{S_T0}, 4")
        a.e(f"s_add_u32 s{S_T0}, s{S_T0}, s{bk}")
        a.e(f"s_lshl_b32 s{S_T0}, s{S_T0}, 10")
        a.e(f"s_add_u32 s{S_T0}, s{S_T0}, {PART}")
        for p in range(12):
            a.e(f"buffer_load_dwordx4 {vr(dst+4*p,4)}, v{V_L16}, {sr(R_WS,4)}, s{S_T0} offen sc1")
            if p < 11:
                a.e(f"s_add_u32 s{S_T0}, s{S_T0}, {PSZ}")
        a.e(f"buffer_load_dwordx2 {vr(xr,2)}, v{VG}, {sr(R_X,4)}, s{aoff} offen")
        a.e(f"buffer_load_dwordx2 {vr(xr+2,2)}, v{VG}, {sr(R_X,4)}, s{aoff} offen offset:16")

    def unp(dst, src):
        for k in range(4):
            a.e(f"v_lshlrev_b32 v{dst+2*k}, 16, v{src+k}")
            a.e(f"v_and_b32 v{dst+2*k+1}, 0xffff0000, v{src+k}")

    def rnd(F, Pk):
        for k in range(4):
            a.e(f"v_cvt_pk_bf16_f32 v{Pk+k}, v{F+2*k}, v{F+2*k+1}")
        unp(F, Pk)

    def silu_sum(src, F, T, Pk):
        for p in range(12):
            unp(F if p == 0 else T, src + 4 * p)
            if p:
                for k in range(8):
                    a.e(f"v_add_f32 v{F+k}, v{F+k}, v{T+k}")
        rnd(F, Pk)
        for k in range(8):
            a.e(f"v_mul_f32 v{T+k}, s{S_NL2E}, v{F+k}")
        for k in range(8):
            a.e(f"v_exp_f32 v{T+k}, v{T+k}")
        for k in range(8):
            a.e(f"v_add_f32 v{T+k}, 1.0, v{T+k}")
        for k in range(8):
            a.e(f"v_rcp_f32 v{T+k}, v{T+k}")
        for k in range(8):
            a.e(f"v_mul_f32 v{F+k}, v{F+k}, v{T+k}")
        rnd(F, Pk)

    def finish(F, T, Pk, sreg, xr, aoff):
        rnd(sreg, Pk)
        for k in range(8):
            a.e(f"v_mul_f32 v{F+k}, v{F+k}, v{sreg+k}")
        rnd(F, Pk)
        unp(T, xr)
        for k in range(8):
            a.e(f"v_add_f32 v{F+k}, v{F+k}, v{T+k}")
        for k in range(4):
            a.e(f"v_cvt_pk_bf16_f32 v{Pk+k}, v{F+2*k}, v{F+2*k+1}")
        a.e(f"buffer_store_dwordx2 {vr(Pk,2)}, v{VG}, {sr(R_A,4)}, s{aoff} offen")
        a.e(f"buffer_store_dwordx2 {vr(Pk+2,2)}, v{VG}, {sr(R_A,4)}, s{aoff} offen offset:16")
    PE, PL = X32(0), X32(12)
    XE, XL_ = ACC, ACC + 4
    FE, FL_, TT, PK, PK2, SACC = ACC + 8, ACC + 16, ACC + 24, ACC + 32, ACC + 36, ACC + 48

    to = {}

    def ld_o(ks):
        a.e(f"s_lshl_b32 s{S_T0}, s{S_RB}, 2")
        a.e(f"s_add_u32 s{S_T0}, s{S_T0}, s{T_TR}")
        a.e(f"s_mul_i32 s{S_T0}, s{S_T0}, 36864")
        a.e(f"s_add_u32 s{S_T0}, s{S_T0}, {OF + ks[0]*1024}")
        for n, k in enumerate(ks):
            if n % 4 == 0 and n:
                a.e(f"s_add_u32 s{S_T0}, s{S_T0}, 4096")
            to[k] = a.e(f"buffer_load_dwordx4 {vr(X32(k),4)}, v{V_L16}, {sr(R_WS,4)}, s{S_T0} offen offset:{(n%4)*1024} sc1")

    def gemm(order):
        fr3 = [dict(stage=0, first=False, rd=addr(k * 2048), pre=[lambda k=k: a.wait_vm(to[k])], mf=[mk(SACC, X32(k), n == 0)]) for n, k in enumerate(order)]
        run_stream(a, fr3, {}, None)
    if late_c1:
        a.e(f"s_cmp_eq_u32 s{S_C}, 0")
        a.e(f"s_cbranch_scc0 L_{tag}_late")
    spin("ea", VF1, T_FE, 1, preloaded=True)
    ld_part(PE, T_BK0, XE, T_AE)
    ld_part(PL, T_BK1, XL_, T_AL)
    a.e(f"buffer_load_dword v{VFO}, v{VF2}, {sr(R_WS,4)}, s{T_FS} offen sc1")
    a.wait_vm0()
    a.e("s_barrier")
    spin("oa", VF2, T_FS, 2, preloaded=True, VFL=VFO)
    ld_o(list(range(24, 36)))
    silu_sum(PE, FE, TT, PK)
    ld_o(list(range(0, 12)))
    silu_sum(PL, FL_, TT, PK)
    ld_o(list(range(12, 24)))
    stamp(a, 't')
    gemm(list(range(24, 36)) + list(range(0, 24)))
    if late_c1:
        a.e(f"s_branch L_{tag}_join")
        a.raw(f"L_{tag}_late:")
        a.barrier_hist()
        a.wait_vm0()
        a.e("s_barrier")
        spin("ob", VF2, T_FS, 2, preloaded=True, VFL=VFO)
        ld_o(list(range(36)))
        tf = a.e(f"buffer_load_dword v{VFL}, v{VF1}, {sr(R_WS,4)}, s{T_FE} offen sc1")
        gemm(list(range(36)))
        stamp(a, 'u')
        a.wait_vm(tf)
        spin("eb", VF1, T_FE, 1, preloaded=True)
        ld_part(PE, T_BK0, XE, T_AE)
        tp = a.vm
        ld_part(PL, T_BK1, XL_, T_AL)
        a.wait_vm(tp)
        silu_sum(PE, FE, TT, PK)
        a.wait_vm0()
        silu_sum(PL, FL_, TT, PK)
        a.raw(f"L_{tag}_join:")
        a.e("s_nop 7")
        a.e("s_nop 7")
    finish(FE, TT, PK, SACC, XE, T_AE)
    finish(FL_, TT, PK2, SACC + 8, XL_, T_AL)
    a.raw(f"L_{tag}_fin:")


def mlp(a):
    KPS = int(os.environ.get("KPS", "3"))
    NS = 18 // KPS
    SB = KPS * 8192
    FPS = KPS * 4
    USEBAR = os.environ.get("SYNC", "bar") == "bar"
    SL = int(os.environ.get("SLACK", str(FPS - 4)))
    t0, t1, t2 = V_T + 3, V_T + 4, ACC
    a.e(f"s_cmp_lt_u32 s{S_W}, 4")
    a.e(f"s_cselect_b32 s{R_W1}, s{S_WG}, s{S_WU}")
    a.e(f"s_cselect_b32 s{R_W1+1}, s{S_WG+1}, s{S_WU+1}")
    a.e(f"s_mov_b32 s{R_W1+2}, 5308416")
    a.e(f"s_mov_b32 s{R_W1+3}, 0x20000")
    srd(a, R_W2, S_WD, 5308416)
    stamp(a)
    xtk = x_stage_issue(a)
    a.e(f"v_bfe_u32 v{t0}, v{V_LANE}, 2, 3")
    a.e(f"v_and_b32 v{t1}, 3, v{V_LANE}")
    a.e(f"v_lshrrev_b32 v{t2}, 5, v{V_LANE}")
    a.e(f"v_lshlrev_b32 v{t2}, 6, v{t2}")
    a.e(f"v_lshl_add_u32 v{t1}, v{t1}, 4, v{t2}")
    a.e(f"v_mul_u32_u24 v{V_D1}, 9216, v{t0}")
    a.e(f"v_add_u32 v{V_D1}, v{V_D1}, v{t1}")
    a.e(f"v_mul_u32_u24 v{V_D2}, 1152, v{t0}")
    a.e(f"v_add_u32 v{V_D2}, v{V_D2}, v{t1}")
    a.e(f"s_lshl_b32 s{S_WLDS}, s{S_W}, 10")
    a.e(f"s_mul_i32 s{S_T0}, s{S_SPLIT}, 384")
    a.e(f"s_mul_i32 s{S_W1B}, s{S_R}, {8*9216}")
    a.e(f"s_lshl_b32 s{S_T1}, s{S_T0}, 1")
    a.e(f"s_add_u32 s{S_W1B}, s{S_W1B}, s{S_T1}")
    a.e(f"s_lshl_b32 s{S_T1}, s{S_W}, 3")
    a.e(f"s_add_u32 s{S_T1}, s{S_T1}, s{S_T0}")
    a.e(f"s_mul_i32 s{S_W2B}, s{S_T1}, 1152")
    V_PF, V_PF2 = 8, 9
    S_PFO, S_PFS = S_H1, 98
    R_PF = R_B
    p0, p1 = FR, FR + 1
    NL = 36 if MAPC else 18
    a.e(f"s_and_b32 s{S_T0}, s{S_RB}, {3 if MAPC else 7}")
    a.e(f"s_lshl_b32 s{S_T1}, s{S_T0}, 2")
    a.e(f"s_add_u32 s{S_T1}, s{S_T1}, s{S_R}")
    a.e(f"s_mul_i32 s{S_T1}, s{S_T1}, {NL}")
    a.e(f"v_add_u32 v{p0}, s{S_T1}, v{V_LANE}")
    a.e(f"v_mul_u32_u24 v{p0}, 9216, v{p0}")
    a.e(f"v_cmp_gt_u32 vcc, {NL}, v{V_LANE}")
    a.e(f"v_cndmask_b32 v{V_PF}, -1, v{p0}, vcc")
    a.e(f"v_mul_u32_u24 v{p0}, 86, v{V_LANE}")
    a.e(f"v_lshrrev_b32 v{p0}, 8, v{p0}")
    a.e(f"v_mul_u32_u24 v{p1}, 3, v{p0}")
    a.e(f"v_sub_u32 v{p1}, v{V_LANE}, v{p1}")
    a.e(f"s_lshl_b32 s{S_T1}, s{S_T0}, 3")
    a.e(f"s_add_u32 s{S_T1}, s{S_T1}, s{S_W}")
    a.e(f"s_mul_i32 s{S_T1}, s{S_T1}, {NL // 3}")
    a.e(f"v_add_u32 v{p0}, s{S_T1}, v{p0}")
    a.e(f"v_mul_u32_u24 v{p0}, 1152, v{p0}")
    a.e(f"v_lshl_add_u32 v{p0}, v{p1}, 7, v{p0}")
    a.e(f"v_cndmask_b32 v{V_PF2}, -1, v{p0}, vcc")
    for k in range(4):
        a.e(f"s_mov_b32 s{R_PF+k}, s{R_W1+k}")
    a.e(f"s_mul_i32 s{S_PFO}, s{S_SPLIT}, 768")
    a.e(f"s_mov_b32 s{S_PFS}, 128")

    def pf():
        if not FLAG("NOPF"):
            a.e(f"buffer_load_dword v0, v{V_PF}, {sr(R_PF,4)}, s{S_PFO} offen")
        if FLAG("PF64"):
            a.e(f"buffer_load_dword v0, v{V_PF}, {sr(R_PF,4)}, s{S_PFO} offen offset:64")
        a.e(f"s_add_u32 s{S_PFO}, s{S_PFO}, s{S_PFS}")

    dtk = {}

    def dma_raw(g, i, voff, srd_, soff, mid=None):
        if FLAG("NODMA") and a.always:
            dtk[g % NS] = a.vm
            return
        a.e(f"s_add_u32 m0, s{S_WLDS}, {(g % NS) * SB + i*8192}")
        if mid:
            a.e(mid)
        dtk[g % NS] = a.e(f"buffer_load_dwordx4 v{voff}, {sr(srd_,4)}, s{soff} offen lds")

    def dma_p0(d):
        dma_raw(d // KPS, d % KPS, V_D1, R_W1, S_T3, f"s_add_u32 s{S_T3}, s{S_W1B}, {d*294912}")

    dma_p0(0)
    dma_p0(1)
    for _ in range(int(os.environ.get("PFD", "2")) - 1):
        pf()
    rd_bases32(a)
    a.e(f"s_lshl_b32 s{S_T0}, s{S_SPLIT}, 4")
    a.e(f"s_add_u32 s{S_T0}, s{S_T0}, s{S_RB}")
    a.e(f"s_mul_i32 s{S_T0}, s{S_T0}, 98304")
    a.e(f"s_lshl_b32 s{S_T2}, s{S_R}, 10")
    a.e(f"s_add_u32 s{S_H0}, s{S_T0}, s{S_T2}")
    a.e(f"s_mul_i32 s{S_T0}, s{S_SPLIT}, {PSZ}")
    a.e(f"s_mul_i32 s{S_T3}, s{S_RB}, {9*16384}")
    a.e(f"s_add_u32 s{S_T0}, s{S_T0}, s{S_T3}")
    a.e(f"s_lshl_b32 s{S_T3}, s{S_C}, 13")
    a.e(f"s_add_u32 s{S_T0}, s{S_T0}, s{S_T3}")
    a.e(f"s_add_u32 s{S_T0}, s{S_T0}, {PART}")
    a.e(f"s_lshl_b32 s{S_T2}, s{S_R}, 11")
    a.e(f"s_add_u32 s{S_P0}, s{S_T0}, s{S_T2}")
    a.e(f"s_mov_b32 s{S_NL2E}, 0x{NLOG2E:x}")
    itk = []

    def after_x():
        a.e(f"s_lshl_b32 s{S_T0}, s{S_RB}, 2")
        a.e(f"v_mov_b32 v{V_T+2}, s{S_T0}")
        itk.append(init_issue(a, V_T + 2, V_T + 3))
        pf()
    layernorm(a, xtk, m32=True, after_x=after_x)
    stamp(a, 'f')
    for d in range(2, (NS - 2) * KPS):
        dma_p0(d)
    init_check(a, "m", V_T + 2, V_T + 3, itk[0])
    V_DN = V_T + 4
    VEX = V_T
    S_IT, S_CUR, S_PTR, S_STEP, S_ADJ, S_HST = 71, 72, 73, 74, 75, S_XREG
    R_N = R_A
    a.e(f"s_mov_b32 s{S_IT}, 0")
    a.e(f"s_mov_b32 s{S_CUR}, s{S_W1B}")
    a.e(f"s_mov_b32 s{S_HST}, 0x70000000")
    sy = Sync(a, "m")
    if not USEBAR:
        sy.setup()

    def addr(A):
        k = A // 49152
        return [(V_RD + k, A - 49152 * k), (V_RD + k, A - 49152 * k + 1024)]

    def acc1(st, mat):
        return ACC + st * 32 + mat * 16

    def mk(acc, b, first):
        return lambda r: f"v_mfma_f32_32x32x16_bf16 {vr(acc,16)}, {vr(r,4)}, {vr(b,4)}, {'0' if first else vr(acc,16)}"

    def E(text):
        return lambda: a.e(text)

    def copy_items(mat):
        A_, E_ = acc1(0, mat), acc1(1, mat)
        return [E(f"v_mul_f32 v{E_+i}, s{S_NL2E}, v{A_+i}") if mat == 0 else E(f"v_mov_b32 v{E_+i}, v{A_+i}") for i in range(16)]

    hst = {}

    def epi1(last):
        items = []
        G0, U0 = acc1(1, 0), acc1(1, 1)
        for u in range(2):
            for h in range(2):
                G, U = G0 + 8 * u + 4 * h, U0 + 8 * u + 4 * h
                items += [E(f"v_exp_f32 v{G+i}, v{G+i}") for i in range(4)]
                items += [E(f"v_add_f32 v{G+i}, 1.0, v{G+i}") for i in range(4)]
                items += [E(f"v_rcp_f32 v{G+i}, v{G+i}") for i in range(4)]
                items += [E(f"v_mul_f32 v{U+i}, v{U+i}, v{G+i}") for i in range(4)]
            D, U = G0 + 8 * u, U0 + 8 * u
            items += [E(f"v_cvt_pk_bf16_f32 v{D+k}, v{U+2*k}, v{U+2*k+1}") for k in range(4)]
            if not last:
                def st(u=u, D=D):
                    a.e(f"s_add_u32 s{S_T0}, s{S_HST}, {u*4096}")
                    hst[0] = a.e(f"buffer_store_dwordx4 {vr(D,4)}, v{V_L16}, {sr(R_WS,4)}, s{S_T0} offen {os.environ.get('HSTM','')}")
                items.append(st)
            else:
                def st(u=u, D=D):
                    hst[5] = a.e(f"ds_write_b128 v{VEX+1}, {vr(D,4)} offset:{u*4096}")
                items.append(st)
        return items

    ool = []
    frags = []
    for s16 in range(36):
        ks = s16 // 2
        g = ks // KPS
        for mat in range(2):
            A = g * SB + (ks % KPS) * 8192 + mat * 4096 + (s16 & 1) * 2048
            frags.append(dict(stage=g, first=(len(frags) % FPS == 0), rd=addr(A),
                              pre=copy_items(mat) if (s16 == 0 and not FLAG("NOEPI")) else [],
                              mf=[mk(acc1(0, mat), X32(s16), s16 == 0)]))
    DSP = FPS // KPS - 1
    GL = NS - 1

    def place_dma(fl, fn, setf):
        for g in range(NS):
            n0 = max(g * FPS - PD + 2, 0)
            if g == 2 and setf:
                fl.setdefault(n0 - 1, []).append(setf)
            for i in range(KPS):
                fl.setdefault(n0 + DSP * i, []).append(fn(g, i))

    def pf1():
        a.e(f"s_cmp_eq_u32 s{S_IT}, 4")
        a.e(f"s_cbranch_scc1 L_p1_pf")
        a.raw("L_p1_pfb:")
        pf()
    ool.append("\n".join(["L_p1_pf:",
        f"    s_mul_i32 s{S_PFO}, s{S_SPLIT}, {384*1152}", f"    s_mov_b32 s{S_PFS}, 384",
        f"    s_mov_b32 s{R_PF}, s{R_W2}", f"    s_mov_b32 s{R_PF+1}, s{R_W2+1}", f"    v_mov_b32 v{V_PF}, v{V_PF2}", "    s_nop 1", "    s_branch L_p1_pfb"]))
    hld = {}

    def build_fill(last):
        fl = {}
        spread(fl, epi1(False), 3, int(os.environ.get("EPIEND", "36")))

        def dma1(g, i):
            def f():
                if g < 2:
                    dma_raw(g + NS - 2, i, V_D1, R_W1, S_T3, f"s_add_u32 s{S_T3}, s{S_CUR}, {((g+NS-2)*KPS+i)*294912}")
                else:
                    d = (g - 2) * KPS + i
                    if not last:
                        dma_raw(g - 2, i, V_D1, R_W1, S_T3, f"s_add_u32 s{S_T3}, s{S_CUR}, {128 + d*294912}")
                    else:
                        dma_raw(g - 2, i, V_D2, R_W2, S_T3, f"s_add_u32 s{S_T3}, s{S_W2B}, {(d%6)*73728 + (d//6)*128}")
            return f
        place_dma(fl, dma1, None)
        fl.setdefault(5, []).append(pf if last else pf1)
        if last:
            def hload(kap):
                def f():
                    a.e(f"s_add_u32 s{S_T0}, s{S_H0}, {HS + kap*4096}")
                    if FLAG("NOHLD"):
                        hld[0] = a.vm
                        return
                    hld[0] = a.e(f"buffer_load_dwordx4 {vr(X32(kap),4)}, v{V_L16}, {sr(R_WS,4)}, s{S_T0} offen")
                return f
            NHE = int(os.environ.get("NHE", "13"))
            for kap in range(NHE):
                fl.setdefault((66 * kap) // NHE + 4, []).append(hload(kap))
            hld['late'] = [hload(kap) for kap in range(NHE, 20)]
        return fl
    fill = build_fill(False)

    def add_sync(fl, extra=None):
        if USEBAR:
            return
        for g in range(NS):
            def arr(g=g):
                tk = dtk[g]
                if extra and g in extra:
                    tk = max(tk, extra[g]())
                sy.arrive(tk)
            fl.setdefault((FPS * g - PD - SL) % 72, []).insert(0, arr)
            fl.setdefault((FPS * g - PD - 2) % 72, []).insert(0, sy.read)
    add_sync(fill, {GL: lambda: hst[0]})
    first1 = [True]

    def on_stage1(g):
        g %= 1000
        if first1[0]:
            first1[0] = False
            a.wait_vm(dtk[0])
            a.wait_lg0()
            a.e("s_barrier")
            stamp(a, 'i')
            if FLAG("ITST"):
                a.e("s_memtime s[94:95]")
                a.wait_lg0()
                a.e(f"v_writelane_b32 v255, s94, 0")
            return
        if USEBAR:
            a.wait_vm(max(dtk[g], hst[0]) if g == GL else dtk[g])
            if not FLAG("NOBAR"):
                a.e("s_barrier")
        else:
            sy.check(f"a{g}")

    a.always = True
    tk1 = [run_stream(a, frags, fill, on_stage1, wrap=True, prime=True)]

    def body1():
        tk1[0] = run_stream(a, frags, fill, on_stage1, wrap=True, prime=False, tick=dict(tk1[0]))

    def dec1(label):
        if FLAG("ITST"):
            a.e("s_memtime s[94:95]")
            a.wait_lg0()
            a.e(f"s_add_u32 m0, s{S_IT}, 1")
            a.e("s_nop 1")
            a.e(f"v_writelane_b32 v255, s94, m0")
        a.e(f"s_lshl_b32 s{S_T0}, s{S_C}, 13")
        a.e(f"s_lshl_b32 s{S_HST}, s{S_IT}, 14")
        a.e(f"s_add_u32 s{S_HST}, s{S_HST}, s{S_T0}")
        a.e(f"s_add_u32 s{S_HST}, s{S_HST}, s{S_H0}")
        a.e(f"s_add_u32 s{S_CUR}, s{S_CUR}, 128")
        a.e(f"s_add_u32 s{S_IT}, s{S_IT}, 1")
        a.e(f"s_cmp_lt_u32 s{S_IT}, 5")
        a.e(f"s_cbranch_scc1 {label}")
    loop(a, "L_p1", body1, dec1)
    run_stream(a, frags, build_fill(True), on_stage1, wrap=False, prime=False, tick=dict(tk1[0]))
    if FLAG("ITST"):
        a.e("s_memtime s[94:95]")
        a.wait_lg0()
        a.e(f"v_writelane_b32 v255, s94, 6")
    a.always = False
    for f_ in hld['late']:
        f_()
    ND = (NS - 2) * KPS
    a.e(f"s_add_u32 s{S_PTR}, s{S_W2B}, {(ND%6)*73728 + (ND//6)*128}")
    a.e(f"s_lshl_b32 s{S_T0}, s{S_R}, 10")
    a.e(f"s_add_u32 s{S_T0}, s{S_T0}, {(NS-1)*SB}")
    a.e(f"v_add_u32 v{VEX}, s{S_T0}, v{V_L16}")
    a.e(f"s_lshl_b32 s{S_T0}, s{S_C}, 13")
    a.e(f"v_add_u32 v{VEX+1}, s{S_T0}, v{VEX}")
    for it in copy_items(0) + copy_items(1):
        it()
    its = epi1(True)
    a.wait_lg0()
    for it in its[:20]:
        it()
    a.e("s_barrier")
    for it in its[20:]:
        it()
    a.wait_vm(max(dtk[0], hld[0]))
    a.wait_lg0()
    a.e("s_barrier")
    stamp(a, 'j')
    if FLAG("ITST"):
        a.e("s_memtime s[94:95]")
        a.wait_lg0()
        a.e(f"v_writelane_b32 v255, s94, 7")
    pf()
    for kap in range(20, 24):
        a.e(f"ds_read_b128 {vr(X32(kap),4)}, v{VEX} offset:{(kap-20)*4096}")
    def acc2(j):
        return ACC + j * 16
    S_PST = S_HST
    a.e(f"s_mov_b32 s{S_IT}, 0")
    a.e(f"s_mov_b32 s{S_PST}, 0x70000000")

    def epi2(j, off_sgpr, off_imm):
        items = []
        for u in range(2):
            P = acc2(j) + 8 * u
            items += [E(f"v_cvt_pk_bf16_f32 v{P+k}, v{P+2*k}, v{P+2*k+1}") for k in range(4)]

            def st(u=u, P=P):
                if u == 0:
                    a.e(f"s_add_u32 s{S_P1}, s{S_P0}, {('s%d' % off_sgpr) if off_sgpr is not None else off_imm}")
                pst[j] = a.e(f"buffer_store_dwordx4 {vr(P,4)}, v{V_L16}, {sr(R_WS,4)}, s{S_P1} offen offset:{u*1024} sc1")
            items.append(st)
        return items
    pst = {}
    S_TRG, S_SITE, S_RNG, S_RBLK, S_NG0 = S_CUR, S_STEP, S_ADJ, S_W1B, S_PFS
    RB_, F_, T_, VG = X32(24), ACC + 48, ACC + 56, V_T + 2
    a.e(f"s_lshr_b32 s{S_RNG}, s{S_SPLIT}, 1")
    a.e(f"s_add_u32 s{S_TRG}, s{S_RNG}, {3 if not FLAG('NORED') else 100}")
    a.e(f"s_and_b32 s{S_RBLK}, s{S_SPLIT}, 1")
    a.e(f"s_lshl_b32 s{S_RBLK}, s{S_RBLK}, 3")
    a.e(f"s_add_u32 s{S_RBLK}, s{S_RBLK}, s{S_W}")
    a.e(f"s_mov_b32 s{S_NG0}, 0")
    S_TR2 = S_W2B
    a.e(f"s_mov_b32 s{S_TR2}, 100")
    a.e(f"v_and_b32 v{VG}, 31, v{V_LANE}")
    a.e(f"v_mul_u32_u24 v{VG}, 1152, v{VG}")
    a.e(f"v_lshrrev_b32 v{VG+1}, 5, v{V_LANE}")
    a.e(f"v_lshl_add_u32 v{VG}, v{VG+1}, 3, v{VG}")

    def sub(name, body, nsite):
        b = Asm()
        b.raw(f"L_{name}:")
        body(b)
        for k in range(nsite - 1):
            b.e(f"s_cmp_eq_u32 s{S_SITE}, {k}")
            b.e(f"s_cbranch_scc1 L_{name}_b{k}")
        b.e(f"s_branch L_{name}_b{nsite-1}")
        for k in range(nsite - 1):
            b.raw(f"L_{name}_t{k}:")
            b.e(f"s_mov_b32 s{S_SITE}, {k}")
            b.e(f"s_branch L_{name}")
        ool.append(b.text())

    def flag_addr(b):
        b.e(f"s_lshl_b32 s{S_T0}, s{S_RB}, 11")
        b.e(f"s_lshl_b32 s{S_T1}, s{S_RNG}, 6")
        b.e(f"s_add_u32 s{S_T0}, s{S_T0}, s{S_T1}")
        b.e(f"s_add_u32 s{S_T0}, s{S_T0}, {FLG + 128}")

    def r0(b):
        flag_addr(b)
        b.e(f"v_min_u32 v{T_}, 11, v{V_LANE}")
        b.e(f"v_lshlrev_b32 v{T_}, 2, v{T_}")
        b.e(f"buffer_load_dword v{T_+1}, v{T_}, {sr(R_WS,4)}, s{S_T0} offen sc1")

    def r1(b):
        b.e("s_waitcnt vmcnt(R1WAIT)")
        b.e(f"v_cmp_eq_u32 vcc, 0, v{T_+1}")
        b.e(f"s_add_u32 s{S_T3}, s{S_T0}, 1")
        b.e("s_cbranch_vccz L_r1_px")
        b.e(f"s_cmp_lt_u32 s{S_SITE}, 3")
        b.e("s_cbranch_scc1 L_r1_ret")
        flag_addr(b)
        b.e(f"s_mov_b32 s{S_T2}, 0")
        b.raw("L_r1_poll:")
        b.e(f"buffer_load_dword v{T_+1}, v{T_}, {sr(R_WS,4)}, s{S_T0} offen sc1")
        b.e(f"s_add_u32 s{S_T2}, s{S_T2}, 1")
        b.e(f"s_cmp_gt_u32 s{S_T2}, 0x40000")
        b.e("s_cbranch_scc1 L_r1_px")
        b.e("s_waitcnt vmcnt(0)")
        b.e(f"v_cmp_eq_u32 vcc, 0, v{T_+1}")
        b.e("s_cbranch_vccz L_r1_px")
        b.e("s_sleep 2")
        b.e("s_branch L_r1_poll")
        b.raw("L_r1_px:")
        b.e(f"s_mov_b32 s{S_TRG}, 100")
        b.e(f"s_mov_b32 s{S_TR2}, s{S_T3}")
        b.e(f"s_mul_i32 s{S_T0}, s{S_RB}, 9")
        b.e(f"s_add_u32 s{S_T0}, s{S_T0}, s{S_RNG}")
        b.e(f"s_lshl_b32 s{S_T0}, s{S_T0}, 4")
        b.e(f"s_add_u32 s{S_T0}, s{S_T0}, s{S_RBLK}")
        b.e(f"s_lshl_b32 s{S_T0}, s{S_T0}, 10")
        b.e(f"s_add_u32 s{S_T0}, s{S_T0}, {PART}")
        for p in range(12):
            b.e(f"buffer_load_dwordx4 {vr(RB_+4*p,4)}, v{V_L16}, {sr(R_WS,4)}, s{S_T0} offen sc1")
            if p < 11:
                b.e(f"s_add_u32 s{S_T0}, s{S_T0}, {PSZ}")
        b.raw("L_r1_ret:")

    def r2(b):
        b.e(f"s_mov_b32 s{S_TR2}, 100")
        b.e("s_waitcnt vmcnt(R2WAIT)")
        for p in range(12):
            for k in range(4):
                r = RB_ + 4 * p + k
                d = F_ if p == 0 else T_
                b.e(f"v_lshlrev_b32 v{d+2*k}, 16, v{r}")
                b.e(f"v_and_b32 v{d+2*k+1}, 0xffff0000, v{r}")
            if p:
                for k in range(8):
                    b.e(f"v_add_f32 v{F_+k}, v{F_+k}, v{T_+k}")
        for k in range(4):
            b.e(f"v_cvt_pk_bf16_f32 v{T_+k}, v{F_+2*k}, v{F_+2*k+1}")
        for k in range(4):
            b.e(f"v_lshlrev_b32 v{F_+2*k}, 16, v{T_+k}")
            b.e(f"v_and_b32 v{F_+2*k+1}, 0xffff0000, v{T_+k}")
        for k in range(8):
            b.e(f"v_mul_f32 v{T_+k}, s{S_NL2E}, v{F_+k}")
        for k in range(8):
            b.e(f"v_exp_f32 v{T_+k}, v{T_+k}")
        for k in range(8):
            b.e(f"v_add_f32 v{T_+k}, 1.0, v{T_+k}")
        for k in range(8):
            b.e(f"v_rcp_f32 v{T_+k}, v{T_+k}")
        for k in range(8):
            b.e(f"v_mul_f32 v{F_+k}, v{F_+k}, v{T_+k}")
        for k in range(4):
            b.e(f"v_cvt_pk_bf16_f32 v{T_+k}, v{F_+2*k}, v{F_+2*k+1}")
        b.e(f"s_bfe_u32 s{S_T0}, s{S_RBLK}, 0x20001")
        b.e(f"s_lshl_b32 s{S_T1}, s{S_RB}, 2")
        b.e(f"s_add_u32 s{S_T0}, s{S_T0}, s{S_T1}")
        b.e(f"s_mul_i32 s{S_T0}, s{S_T0}, {32*1152}")
        b.e(f"s_lshl_b32 s{S_T1}, s{S_RNG}, 7")
        b.e(f"s_add_u32 s{S_T0}, s{S_T0}, s{S_T1}")
        b.e(f"s_lshr_b32 s{S_T1}, s{S_RBLK}, 3")
        b.e(f"s_lshl_b32 s{S_T1}, s{S_T1}, 6")
        b.e(f"s_add_u32 s{S_T0}, s{S_T0}, s{S_T1}")
        b.e(f"s_and_b32 s{S_T1}, s{S_RBLK}, 1")
        b.e(f"s_lshl_b32 s{S_T1}, s{S_T1}, 5")
        b.e(f"s_add_u32 s{S_T0}, s{S_T0}, s{S_T1}")
        b.e(f"s_add_u32 s{S_T0}, s{S_T0}, {PART + 12*PSZ}")
        b.e(f"buffer_store_dwordx2 {vr(T_,2)}, v{VG}, {sr(R_WS,4)}, s{S_T0} offen sc1")
        b.e(f"buffer_store_dwordx2 {vr(T_+2,2)}, v{VG}, {sr(R_WS,4)}, s{S_T0} offen offset:16 sc1")
        b.e("s_nop 1")
    vmat = {}

    def site(name, j, d=0):
        def f():
            vmat.setdefault((name, j), []).append(a.vm)
            a.e(f"s_add_u32 s{S_T0}, s{S_NG0}, {j}")
            a.e(f"s_cmp_eq_u32 s{S_T0}, s{S_TR2}" if d else f"s_cmp_ge_u32 s{S_T0}, s{S_TRG}")
            a.e(f"s_cbranch_scc1 L_{name}_t{j}")
            a.raw(f"L_{name}_b{j}:")
        return f

    def signal_code(off_lines, skip0=None, name=""):
        t = [f"L_sg{name}:"]
        if skip0:
            t += [f"    s_cmp_eq_u32 s{S_IT}, 0", f"    s_cbranch_scc1 L_sg{name}_b"]
        t += ["    " + x for x in off_lines]
        t += [f"    s_lshl_b32 s{S_T1}, s{S_RB}, 11", f"    s_add_u32 s{S_T0}, s{S_T0}, s{S_T1}", f"    s_lshl_b32 s{S_T1}, s{S_SPLIT}, 2",
              f"    s_add_u32 s{S_T0}, s{S_T0}, s{S_T1}",
              f"    v_mov_b32 v{VG+1}, 1", f"    v_mov_b32 v0, 0", "    s_mov_b64 exec, 1",
              f"    buffer_store_dword v{VG+1}, v0, {sr(R_WS,4)}, s{S_T0} offen sc1", "    s_mov_b64 exec, -1", f"    s_branch L_sg{name}_b"]
        ool.append("\n".join(t))

    def signal_site(name):
        a.e(f"s_cmp_eq_u32 s{S_W}, 0")
        a.e(f"s_cbranch_scc1 L_sg{name}")
        a.raw(f"L_sg{name}_b:")
    for j in range(3):
        signal_code([f"s_lshl_b32 s{S_T0}, s{S_NG0}, 6", f"s_add_u32 s{S_T0}, s{S_T0}, {FLG + 128 + 64*(j-2)}"], skip0=(j < 2), name=f"p{j}")
    frags2 = []
    for j in range(3):
        for kap in range(24):
            A = j * 49152 + kap * 2048
            frags2.append(dict(stage=A // SB, first=(len(frags2) % FPS == 0), rd=addr(A),
                               mf=[mk(acc2(j), X32(kap), kap == 0)]))
    fill2 = {}
    spread(fill2, epi2(2, S_PST, 0), 2, 8)
    spread(fill2, epi2(0, None, 0), 24 + 2, 24 + 8)
    spread(fill2, epi2(1, None, 16384), 48 + 2, 48 + 8)
    for j in range(3):
        pass

    def dma2(g, i):
        def f():
            t = (g + NS - 2) % NS
            d = t * KPS + i
            dma_raw(t, i, V_D2, R_W2, S_T3, f"s_mov_b32 s{S_T3}, s{S_PTR}")
            a.e(f"s_add_u32 s{S_PTR}, s{S_PTR}, {73728 if d % 6 != 5 else (128 - 5*73728) & 0xffffffff}")
        return f

    def setend():
        a.e(f"s_cmp_eq_u32 s{S_IT}, 2")
        a.e(f"s_cselect_b32 s{S_PTR}, 0x70000000, s{S_PTR}")
    place_dma(fill2, dma2, setend)
    add_sync(fill2)
    first2 = [True]

    def on_stage2(g):
        g %= 1000
        if first2[0]:
            first2[0] = False
            return
        SPG = NS // 3
        if g % SPG == SPG - 1:
            j = g // SPG
            a.wait_vm(max(dtk[g], pst.get((j - 2) % 3, 0) if not FLAG("NOPSTW") else 0))
            a.e("s_barrier")
            signal_site(f"p{j}")
        else:
            a.wait_vm(dtk[g])
            a.e("s_barrier")
    a.always = True
    tk2 = [run_stream(a, frags2, fill2, on_stage2, wrap=True, prime=True)]

    def body2():
        tk2[0] = run_stream(a, frags2, fill2, on_stage2, wrap=True, prime=False, tick=dict(tk2[0]))

    def dec2(label):
        if FLAG("ITST"):
            a.e("s_memtime s[94:95]")
            a.wait_lg0()
            a.e(f"s_add_u32 m0, s{S_IT}, 8")
            a.e("s_nop 1")
            a.e(f"v_writelane_b32 v255, s94, m0")
        a.e(f"s_add_u32 s{S_P0}, s{S_P0}, {3*16384}")
        a.e(f"s_mov_b32 s{S_PST}, {(-16384) & 0xffffffff}")
        a.e(f"s_add_u32 s{S_NG0}, s{S_NG0}, 3")
        a.e(f"s_add_u32 s{S_IT}, s{S_IT}, 1")
        a.e(f"s_cmp_lt_u32 s{S_IT}, 3")
        a.e(f"s_cbranch_scc1 {label}")
    loop(a, "L_p2", body2, dec2)
    a.always = False
    for it in epi2(2, S_PST, 0):
        it()
    if FLAG("ITST"):
        a.e(f"s_lshl_b32 s{S_T0}, s2, 11")
        a.e(f"s_lshl_b32 s{S_T1}, s{S_W}, 8")
        a.e(f"s_add_u32 s{S_T0}, s{S_T0}, s{S_T1}")
        a.e(f"s_add_u32 s{S_T0}, s{S_T0}, 0x3D00000")
        a.e(f"v_lshlrev_b32 v254, 2, v{V_LANE}")
        a.e(f"buffer_store_dword v255, v254, {sr(R_WS,4)}, s{S_T0} offen")
    stamp(a, 'v')
    def assign():
        a.e(f"s_lshr_b32 s{S_T0}, s{S_SPLIT}, 1")
        a.e(f"s_add_u32 s{T_CL}, s{S_T0}, 12")
        a.e(f"s_lshl_b32 s{T_CL}, s{T_CL}, 6")
        a.e(f"s_sub_u32 s{T_CE}, s{T_CL}, 384")
        a.e(f"s_and_b32 s{S_T0}, s{S_SPLIT}, 1")
        a.e(f"s_lshl_b32 s{S_T0}, s{S_T0}, 1")
        a.e(f"s_and_b32 s{S_T1}, s{S_W}, 1")
        a.e(f"s_add_u32 s{T_TR}, s{S_T0}, s{S_T1}")
        a.e(f"s_cmp_lt_u32 s{S_R}, 2")
        a.e(f"s_cselect_b32 s{T_ACT}, 1, 0")

    def between():
        stamp(a, 'g')
        signal_code([f"s_mov_b32 s{S_T0}, {FLG + 128 + 64*7}"], name="p3")
        signal_site("p3")
        signal_code([f"s_mov_b32 s{S_T0}, {FLG + 128 + 64*8}"], name="p4")
        signal_site("p4")
    tail(a, "m", assign, between, late_c1=True)
    stamp(a, 'h')
    stamp_out(a)
    a.e("s_endpgm")
    sy.emit_slow()
    for t in ool:
        a.raw(t)


def k1(a):
    a.raw(".globl recurrent_scan__sliding_block__glu_gated_glu__prompt_kernel\n.p2align 8\n.type recurrent_scan__sliding_block__glu_gated_glu__prompt_kernel,@function\nrecurrent_scan__sliding_block__glu_gated_glu__prompt_kernel:")
    a.e("s_cmp_ge_u32 s2, 256")
    a.e("s_cbranch_scc1 L_k1_end")
    a.e("s_load_dwordx16 s[4:19], s[0:1], 0")
    a.e("s_load_dwordx4 s[20:23], s[0:1], 64")
    a.e(f"v_and_b32 v{V_LANE}, 63, v0")
    a.e(f"v_lshlrev_b32 v{V_L16}, 4, v{V_LANE}")
    a.e(f"v_lshrrev_b32 v{V_T}, 6, v0")
    a.e(f"v_readfirstlane_b32 s{S_W}, v{V_T}")
    a.e(f"s_and_b32 s{S_R}, s{S_W}, 3")
    a.e(f"s_lshr_b32 s{S_C}, s{S_W}, 2")
    a.e(f"s_and_b32 s{S_T0}, s2, 7")
    a.e(f"s_lshr_b32 s{S_T1}, s2, 3")
    if MAPC:
        a.e(f"s_and_b32 s{S_T2}, s{S_T0}, 3")
        a.e(f"s_lshl_b32 s{S_T2}, s{S_T2}, 2")
        a.e(f"s_and_b32 s{S_T3}, s{S_T1}, 3")
        a.e(f"s_add_u32 s{S_RB}, s{S_T2}, s{S_T3}")
        a.e(f"s_lshr_b32 s{S_T0}, s{S_T0}, 2")
        a.e(f"s_lshr_b32 s{S_T1}, s{S_T1}, 2")
    else:
        a.e(f"s_and_b32 s{S_T2}, s{S_T0}, 1")
        a.e(f"s_lshl_b32 s{S_T2}, s{S_T2}, 3")
        a.e(f"s_and_b32 s{S_T3}, s{S_T1}, 7")
        a.e(f"s_add_u32 s{S_RB}, s{S_T2}, s{S_T3}")
        a.e(f"s_lshr_b32 s{S_T0}, s{S_T0}, 1")
        a.e(f"s_lshr_b32 s{S_T1}, s{S_T1}, 3")
    a.e("s_waitcnt lgkmcnt(0)")
    srd(a, R_X, S_X, 2359296)
    srd(a, R_WS, S_WS, WS_SZ)
    srd(a, R_DBG, S_DBG, 256)
    if int(os.environ.get("CODEPF", "0")):
        a.e(f"s_getpc_b64 s[{R_A}:{R_A+1}]")
        a.raw("L_pc0:")
        a.e(f"s_mov_b32 s{R_A+2}, L_k1_end-L_pc0")
        a.e(f"s_mov_b32 s{R_A+3}, 0x20000")
        a.e(f"v_lshlrev_b32 v{V_T}, 6, v0")
        for k in range((int(os.environ.get('CODEPF'))+31)//32):
            a.e(f"s_mov_b32 s{S_T2}, {k*32768}")
            a.e(f"buffer_load_dword v0, v{V_T}, {sr(R_A,4)}, s{S_T2} offen")
    a.e(f"s_cmp_ge_u32 s{S_T1}, {6 if MAPC else 3}")
    a.e("s_cbranch_scc1 L_att")
    a.e(f"s_mul_i32 s{S_SPLIT}, s{S_T0}, {6 if MAPC else 3}")
    a.e(f"s_add_u32 s{S_SPLIT}, s{S_SPLIT}, s{S_T1}")
    if FLAG("MAPA"):
        a.e(f"s_and_b32 s{S_T0}, s2, 7")
        a.e(f"s_mul_i32 s{S_T0}, s{S_T0}, 24")
        a.e(f"s_lshr_b32 s{S_T1}, s2, 3")
        a.e(f"s_add_u32 s{S_T0}, s{S_T0}, s{S_T1}")
        a.e(f"s_lshr_b32 s{S_SPLIT}, s{S_T0}, 4")
        a.e(f"s_and_b32 s{S_RB}, s{S_T0}, 15")
    mlp(a)
    a.label("L_att")
    if MAPC:
        a.e(f"s_lshl_b32 s{S_HG}, s{S_T0}, 1")
        a.e(f"s_add_u32 s{S_HG}, s{S_HG}, s{S_T1}")
        a.e(f"s_sub_u32 s{S_HG}, s{S_HG}, 6")
    else:
        a.e(f"s_mov_b32 s{S_HG}, s{S_T0}")
    try:
        import gen_att
        gen_att.att(a)
    except ImportError:
        pass
    a.label("L_k1_end")
    a.e("s_endpgm")


def desc(name, vgpr, sgpr):
    return f""".p2align 6
.amdhsa_kernel {name}
  .amdhsa_next_free_vgpr {vgpr}
  .amdhsa_next_free_sgpr {sgpr}
  .amdhsa_accum_offset {(vgpr+3)//4*4}
  .amdhsa_group_segment_fixed_size 0
  .amdhsa_kernarg_size 80
  .amdhsa_user_sgpr_count 2
  .amdhsa_user_sgpr_kernarg_segment_ptr 1
  .amdhsa_system_sgpr_workgroup_id_x 1
.end_amdhsa_kernel"""


def main():
    a = Asm()
    a.raw(f"; @launch grid=(256,1,1) block=(512,1,1) lds={LDS_SZ}")
    have_k2 = False
    if have_k2:
        a.raw(gen_k2.LAUNCH)
    a.raw('.amdgcn_target "amdgcn-amd-amdhsa--gfx950"\n.text')
    k1(a)
    if have_k2:
        b = Asm()
        gen_k2.k2(b)
        a.raw(b.text())
    a.raw('.section .rodata,"a"')
    a.raw(desc("recurrent_scan__sliding_block__glu_gated_glu__prompt_kernel", 256, 102))
    if have_k2:
        a.raw(desc("k2_kernel", gen_k2.VGPRS, 48))
    sys.stdout.write(a.text())


if __name__ == "__main__":
    main()
```

```python
import os
from asmlib import vr, sr
import __main__ as G

Q0 = 0x3000000
QX = 0x3200000
QSCALE = 0x3EAE1B5D


def att(a):
    import struct, math
    qs = struct.unpack("<I", struct.pack("<f", (18 ** -0.5) * math.log2(math.e)))[0]
    (S_W, S_R, S_C, S_RB, S_HG, S_T0, S_T1, S_T2, S_T3) = (G.S_W, G.S_R, G.S_C, G.S_RB, G.S_HG, G.S_T0, G.S_T1, G.S_T2, G.S_T3)
    R_X, R_W1, R_W2, R_WS, R_DBG, R_A, R_B = G.R_X, G.R_W1, G.R_W2, G.R_WS, G.R_DBG, G.R_A, G.R_B
    V_LANE, V_L16, V_RD, FR, ACC, X = G.V_LANE, G.V_L16, G.V_RD, G.FR, G.ACC, G.X
    PD = G.PD
    S_WLDS, S_W1B, S_W2B, S_RT0, S_RT1, S_HB, S_KS, S_W2X = 61, 62, 63, 64, 65, 66, 67, 68
    VD = (3, 4, 76)
    VDX = (77, 78, 79)
    V_L8 = 80
    V_ONE = 81
    NS, SB = 8, 18432
    stamp = G.stamp

    G.srd(a, R_W1, G.S_WQKV, 1990656)
    G.srd(a, R_W2, G.S_WO, 663552)
    stamp(a)
    a.e(f"s_lshl_b32 s{S_T0}, s{S_HG}, 3")
    a.e(f"s_add_u32 s{S_T0}, s{S_T0}, s{S_W}")
    a.e(f"s_cmp_eq_u32 s{S_T0}, 0")
    a.e("s_cbranch_scc0 L_noinit")
    for k in range(4):
        a.e(f"v_mov_b32 v{16+k}, 0")
    a.e(f"s_lshl_b32 s{S_T0}, s{S_RB}, 11")
    a.e(f"s_add_u32 s{S_T0}, s{S_T0}, {G.FLG}")
    a.e_untracked(f"buffer_store_dwordx4 v[16:19], v{V_L16}, {sr(R_WS,4)}, s{S_T0} offen sc1")
    a.e("s_waitcnt vmcnt(0)")
    a.e(f"v_mov_b32 v17, 1")
    a.e(f"s_lshl_b32 s{S_T0}, s{S_RB}, 2")
    a.e("s_mov_b64 exec, 1")
    a.e_untracked(f"buffer_store_dword v17, v16, {sr(R_DBG,4)}, s{S_T0} offen offset:64 sc1")
    a.e("s_mov_b64 exec, -1")
    a.raw("L_noinit:")
    xtk = G.x_stage_issue(a)
    t0, t1, t2, t3 = 82, 83, 84, 85
    a.e(f"s_lshl_b32 s{S_T0}, s{S_W}, 6")
    a.e(f"v_add_u32 v{t0}, s{S_T0}, v{V_LANE}")
    a.e(f"v_lshrrev_b32 v{t1}, 3, v{t0}")
    a.e(f"v_and_b32 v{t2}, 7, v{t0}")
    a.e(f"v_min_u32 v{t2}, 5, v{t2}")
    a.e(f"v_lshlrev_b32 v{t2}, 6, v{t2}")
    a.e(f"v_min_u32 v{t2}, 284, v{t2}")
    a.e(f"v_cmp_gt_u32 vcc, 36, v{t1}")
    a.e(f"v_mul_u32_u24 v{t3}, 3456, v{t1}")
    a.e(f"v_add_u32 v{t3}, v{t3}, v{t2}")
    a.e(f"v_cndmask_b32 v{t3}, -1, v{t3}, vcc")
    a.e(f"v_mul_u32_u24 v{t1}, 1152, v{t1}")
    a.e(f"v_add_u32 v{t1}, v{t1}, v{t2}")
    a.e(f"v_cndmask_b32 v{t1}, -1, v{t1}, vcc")
    a.e(f"v_mov_b32 v252, v{t3}")
    a.e(f"v_mov_b32 v253, v{t1}")

    def after_wait():
        a.e(f"s_mul_i32 s{S_T0}, s{S_RB}, {36*3456}")
        a.e(f"s_mul_i32 s{S_T1}, s{S_HG}, 288")
        a.e(f"s_add_u32 s{S_T0}, s{S_T0}, s{S_T1}")
        for sec in (1, 2, 0):
            a.e(f"s_add_u32 s{S_T2}, s{S_T0}, {sec*1152}")
            a.e(f"buffer_load_dword v0, v252, {sr(R_W1,4)}, s{S_T2} offen")
        a.e(f"s_mul_i32 s{S_T0}, s{S_RB}, {36*1152}")
        a.e(f"s_add_u32 s{S_T0}, s{S_T0}, s{S_T1}")
        a.e(f"buffer_load_dword v0, v253, {sr(R_W2,4)}, s{S_T0} offen")


    if G.FLAG("EARLYW"):
        after_wait()
    def dma_voffs(pitch, extras=False):
        for n in range(3):
            a.e(f"v_add_u32 v{t0}, {64*n}, v{V_LANE}")
            a.e(f"v_mul_u32_u24 v{t1}, 3641, v{t0}")
            a.e(f"v_lshrrev_b32 v{t1}, 16, v{t1}")
            a.e(f"v_mul_u32_u24 v{t2}, 18, v{t1}")
            a.e(f"v_sub_u32 v{t2}, v{t0}, v{t2}")
            a.e(f"v_mul_u32_u24 v{t3}, {pitch}, v{t1}")
            a.e(f"v_lshl_add_u32 v{VD[n]}, v{t2}, 4, v{t3}")
            if extras:
                a.e(f"v_lshrrev_b32 v{t3}, 2, v{t1}")
                a.e(f"v_mul_u32_u24 v{t3}, {32*pitch}, v{t3}")
                a.e(f"v_add_u32 v{VDX[n]}, v{VD[n]}, v{t3}")
    dma_voffs(3456)
    a.e(f"s_mul_i32 s{S_WLDS}, s{S_W}, 2304")
    a.e(f"s_mul_i32 s{S_W1B}, s{S_W}, {8*3456}")
    a.e(f"s_mul_i32 s{S_T1}, s{S_HG}, 288")
    a.e(f"s_add_u32 s{S_W1B}, s{S_W1B}, s{S_T1}")
    a.e(f"s_mul_i32 s{S_T0}, s{S_C}, 36")
    a.e(f"s_lshl_b32 s{S_T2}, s{S_R}, 3")
    a.e(f"s_add_u32 s{S_T0}, s{S_T0}, s{S_T2}")
    a.e(f"s_lshr_b32 s{S_T2}, s{S_R}, 1")
    a.e(f"s_lshl_b32 s{S_T3}, s{S_T2}, 2")
    a.e(f"s_add_u32 s{S_T0}, s{S_T0}, s{S_T3}")
    a.e(f"s_mul_i32 s{S_W2B}, s{S_T0}, 1152")
    a.e(f"s_add_u32 s{S_W2B}, s{S_W2B}, s{S_T1}")
    a.e(f"s_lshl_b32 s{S_T0}, s{S_C}, 1")
    a.e(f"s_add_u32 s{S_T0}, s{S_T0}, s{S_T2}")
    a.e(f"s_mul_i32 s{S_T0}, s{S_T0}, 144")
    a.e(f"s_and_b32 s{S_T2}, s{S_R}, 1")
    a.e(f"s_mul_i32 s{S_T2}, s{S_T2}, 72")
    a.e(f"s_add_u32 s{S_T0}, s{S_T0}, s{S_T2}")
    a.e(f"s_add_u32 s{S_T0}, s{S_T0}, 16")
    a.e(f"s_mul_i32 s{S_W2X}, s{S_T0}, 1152")
    a.e(f"s_add_u32 s{S_W2X}, s{S_W2X}, s{S_T1}")
    def rd_bases():
        a.e(f"v_lshrrev_b32 v{t0}, 2, v{V_LANE}")
        a.e(f"v_mul_u32_u24 v{t0}, 288, v{t0}")
        a.e(f"v_and_b32 v{t1}, 3, v{V_LANE}")
        a.e(f"v_lshl_add_u32 v{t2}, v{t1}, 3, v{t0}")
        a.e(f"s_mul_i32 s{S_T0}, s{S_C}, 144")
        a.e(f"v_add_u32 v{V_RD}, s{S_T0}, v{t2}")
        a.e(f"v_mul_u32_u24 v{t1}, 72, v{t1}")
        a.e(f"v_add3_u32 v{V_RD+3}, v{t0}, v{t1}, 32")
        for k in (1, 2):
            a.e(f"v_add_u32 v{V_RD+k}, {49152*k}, v{V_RD}")
            a.e(f"v_add_u32 v{V_RD+3+k}, {49152*k}, v{V_RD+3}")
    rd_bases()
    a.e(f"v_lshlrev_b32 v{V_L8}, 3, v{V_LANE}")
    a.e(f"v_mov_b32 v{V_ONE}, 0x3f803f80")
    a.e(f"s_lshl_b32 s{S_T0}, s{S_RB}, 3")
    a.e(f"s_lshl_b32 s{S_T1}, s{S_R}, 1")
    a.e(f"s_add_u32 s{S_T0}, s{S_T0}, s{S_T1}")
    a.e(f"s_add_u32 s{S_T0}, s{S_T0}, s{S_C}")
    a.e(f"s_mov_b32 s{S_RT0}, s{S_T0}")
    a.e(f"s_xor_b32 s{S_RT1}, s{S_T0}, 1")
    a.e(f"s_lshl_b32 s{S_HB}, s{S_HG}, 3")
    a.e(f"s_lshl_b32 s{S_T1}, s{S_C}, 2")
    a.e(f"s_add_u32 s{S_HB}, s{S_HB}, s{S_T1}")
    a.e(f"s_lshl_b32 s{S_HB}, s{S_HB}, 16")
    a.e(f"s_lshl_b32 s{S_KS}, s{S_RB}, 2")
    a.e(f"s_add_u32 s{S_KS}, s{S_KS}, s{S_R}")
    a.e(f"s_lshl_b32 s{S_KS}, s{S_KS}, 10")
    itk = []

    def after_x():
        a.e(f"v_min_u32 v{t0}, 2, v{V_LANE}")
        a.e(f"v_sub_u32 v{t0}, s{S_RB}, v{t0}")
        a.e(f"v_max_i32 v{t0}, 0, v{t0}")
        a.e(f"v_lshlrev_b32 v{t0}, 2, v{t0}")
        itk.append(G.init_issue(a, t0, t1))
    G.layernorm(a, xtk, after_x=after_x, after_wait=None if G.FLAG('EARLYW') else after_wait)
    stamp(a, 'f')

    dtk = {}
    SEC = {0: 1152, 1: 2304, 2: 0}

    def dma(Gs, n):
        if Gs >= 37 or Gs == 27:
            return
        p, s = (Gs // 9, Gs % 9) if Gs < 27 else (3, Gs - 28)
        a.e(f"s_add_u32 m0, s{S_WLDS}, {(Gs % NS)*SB + n*1024}")
        if p < 3:
            a.e(f"s_add_u32 s{S_T3}, s{S_W1B}, {s*64*3456 + SEC[p]}")
            v, rs = VD[n], R_W1
        elif s < 8:
            a.e(f"s_add_u32 s{S_T3}, s{S_W2B}, {s*72*1152}")
            v, rs = VD[n], R_W2
        else:
            a.e(f"s_mov_b32 s{S_T3}, s{S_W2X}")
            v, rs = VDX[n], R_W2
        if n == 2:
            a.e("s_mov_b64 exec, 0xffff")
        dtk[Gs] = a.e(f"buffer_load_dwordx4 v{v}, {sr(rs,4)}, s{S_T3} offen lds")
        if n == 2:
            a.e("s_mov_b64 exec, -1")

    def acc(t, rho):
        return ACC + (t * 2 + rho) * 4 if t < 4 else ACC + 32

    TOFF = (0, 40, 72, 112)

    def gemm_pass(p, issue_next, extra_wait=None, after_bar=None, hooks=None):
        swap = (p == 1)
        frags = []
        for ks in range(18):
            Gs = p * 9 + ks // 2 + (1 if p == 3 else 0)
            base = (Gs % NS) * SB + (ks & 1) * 9216
            for t in range(5):
                A = base + (TOFF[t] if t < 4 else 0)
                k = A // 49152
                vb = V_RD + k + (3 if t == 4 else 0)
                im = A - 49152 * k

                def mk(ac, b, first):
                    if swap:
                        return lambda r: f"v_mfma_f32_16x16x32_bf16 {vr(ac,4)}, {vr(b,4)}, {vr(r,4)}, {'0' if first else vr(ac,4)}"
                    return lambda r: f"v_mfma_f32_16x16x32_bf16 {vr(ac,4)}, {vr(r,4)}, {vr(b,4)}, {'0' if first else vr(ac,4)}"
                frags.append(dict(stage=Gs, first=(ks % 2 == 0 and t == 0), rd=[(vb, im), (vb, im + 4608)],
                                  mf=[mk(acc(t, rho), X(rho, ks), ks == 0) for rho in range(2 if t < 4 else 1)]))
        fill = {}
        for s in range(9):
            tgt = p * 9 + s + NS - 2
            if tgt >= (p + 1) * 9 and not issue_next:
                continue
            if p == 3:
                tgt += 1
            n0 = max(s * 10 - PD + 2, 0)
            for n in range(3):
                fill.setdefault(n0 + 2 * n, []).append(lambda tgt=tgt, n=n: dma(tgt, n))

        for n_, fn in (hooks or {}).items():
            fill.setdefault(n_, []).extend(fn)

        def on_stage(Gs):
            tk = dtk[Gs]
            if extra_wait and Gs in extra_wait:
                tk = max(tk, extra_wait[Gs])
            a.wait_vm(tk)
            a.e("s_barrier")
            if after_bar and Gs in after_bar:
                after_bar[Gs]()
        G.run_stream(a, frags, fill, on_stage)

    def pack_pairs(name):
        a.e(f"s_cmp_eq_u32 s{S_C}, 0")
        a.e(f"s_cbranch_scc0 L_pp_{name}1")
        for cc in range(2):
            if cc:
                a.e(f"s_branch L_pp_{name}x")
                a.raw(f"L_pp_{name}1:")
                a.e("s_nop 7")
            for t in range(4):
                A, B = acc(t, 0), acc(t, 1)
                if cc == 0:
                    a.e(f"v_cvt_pk_bf16_f32 v{A}, v{A}, v{A+1}")
                    a.e(f"v_cvt_pk_bf16_f32 v{A+1}, v{A+2}, v{A+3}")
                    a.e(f"v_cvt_pk_bf16_f32 v{A+2}, v{B}, v{B+1}")
                    a.e(f"v_cvt_pk_bf16_f32 v{A+3}, v{B+2}, v{B+3}")
                else:
                    a.e(f"v_cvt_pk_bf16_f32 v{A+3}, v{A+2}, v{A+3}")
                    a.e(f"v_cvt_pk_bf16_f32 v{A+2}, v{A}, v{A+1}")
                    a.e(f"v_cvt_pk_bf16_f32 v{A}, v{B}, v{B+1}")
                    a.e(f"v_cvt_pk_bf16_f32 v{A+1}, v{B+2}, v{B+3}")
        a.raw(f"L_pp_{name}x:")

    def store_pairs(base):
        for t in range(4):
            a.e(f"s_add_u32 s{S_T0}, s{S_KS}, s{S_HB}")
            a.e(f"s_add_u32 s{S_T0}, s{S_T0}, {base + t*65536}")
            a.e(f"buffer_store_dwordx4 {vr(acc(t,0),4)}, v{V_L16}, {sr(R_WS,4)}, s{S_T0} offen sc1")

    def epi_kq(base0, basex, scale):
        pack_pairs("k")
        store_pairs(base0)
        A = acc(4, 0)
        a.e(f"v_cvt_pk_bf16_f32 v{A}, v{A}, v{A+1}")
        a.e(f"v_cvt_pk_bf16_f32 v{A+1}, v{A+2}, v{A+3}")
        a.e(f"s_lshl_b32 s{S_T0}, s{S_RT0}, 9")
        a.e(f"s_lshl_b32 s{S_T1}, s{S_HG}, 16")
        a.e(f"s_add_u32 s{S_T0}, s{S_T0}, s{S_T1}")
        a.e(f"s_add_u32 s{S_T0}, s{S_T0}, {basex}")
        return a.e(f"buffer_store_dwordx2 {vr(A,2)}, v{V_L8}, {sr(R_WS,4)}, s{S_T0} offen sc1")

    def epi_v():
        pack_pairs("v")
        store_pairs(G.V0)
        A = acc(4, 0)
        a.e(f"v_cvt_pk_bf16_f32 v{A}, v{A}, v{A+1}")
        a.e(f"v_cvt_pk_bf16_f32 v{A+1}, v{A+2}, v{A+3}")
        a.e(f"v_and_b32 v{t0}, 8, v{V_LANE}")
        a.e(f"v_cmp_eq_u32 vcc, 0, v{t0}")
        a.e(f"v_cndmask_b32 v{A+2}, v{V_ONE}, v{A}, vcc")
        a.e(f"v_cndmask_b32 v{A+3}, v{V_ONE}, v{A+1}, vcc")
        a.e(f"v_cndmask_b32 v{A}, v{A}, v{V_ONE}, vcc")
        a.e(f"v_cndmask_b32 v{A+1}, v{A+1}, v{V_ONE}, vcc")
        a.e(f"s_lshl_b32 s{S_T0}, s{S_C}, 3")
        a.e(f"s_add_u32 s{S_T0}, s{S_T0}, s{S_KS}")
        a.e(f"s_lshl_b32 s{S_T1}, s{S_HG}, 17")
        a.e(f"s_add_u32 s{S_T0}, s{S_T0}, s{S_T1}")
        a.e(f"s_add_u32 s{S_T0}, s{S_T0}, {G.VX}")
        a.e(f"buffer_store_dwordx2 {vr(A+2,2)}, v{V_L16}, {sr(R_WS,4)}, s{S_T0} offen sc1")
        a.e(f"s_add_u32 s{S_T0}, s{S_T0}, 65536")
        tk = a.e(f"buffer_store_dwordx2 {vr(A,2)}, v{V_L16}, {sr(R_WS,4)}, s{S_T0} offen sc1")
        return tk

    def set_flag(val, name):
        a.e(f"s_cmp_eq_u32 s{S_W}, 0")
        a.e(f"s_cbranch_scc0 L_fl_{name}")
        a.e(f"s_lshl_b32 s{S_T0}, s{S_RB}, 11")
        a.e(f"s_lshl_b32 s{S_T1}, s{S_HG}, 2")
        a.e(f"s_add_u32 s{S_T0}, s{S_T0}, s{S_T1}")
        a.e(f"s_add_u32 s{S_T0}, s{S_T0}, {G.FLG}")
        a.e(f"v_mov_b32 v{t0}, {val}")
        a.e(f"v_mov_b32 v{t1}, 0")
        a.e("s_mov_b64 exec, 1")
        a.e_untracked(f"buffer_store_dword v{t0}, v{t1}, {sr(R_WS,4)}, s{S_T0} offen sc1")
        a.e("s_mov_b64 exec, -1")
        a.raw(f"L_fl_{name}:")

    def poll(name, vaddr, vtmp, want, one_wave=True):
        if one_wave:
            a.e(f"s_cmp_eq_u32 s{S_W}, 0")
            a.e(f"s_cbranch_scc0 L_poll_{name}_x")
        a.e(f"s_mov_b32 s{S_T2}, 0")
        a.e(f"s_mov_b32 s{S_T0}, {G.FLG}")
        a.raw(f"L_poll_{name}:")
        a.e_untracked(f"buffer_load_dword v{vtmp}, v{vaddr}, {sr(R_WS,4)}, s{S_T0} offen sc1")
        a.e(f"s_add_u32 s{S_T2}, s{S_T2}, 1")
        a.e(f"s_cmp_gt_u32 s{S_T2}, 0x40000")
        a.e(f"s_cbranch_scc1 L_poll_{name}_x")
        a.e("s_waitcnt vmcnt(0)")
        a.e(f"v_cmp_gt_u32 vcc, {want}, v{vtmp}")
        a.e(f"s_cbranch_vccz L_poll_{name}_x")
        a.e("s_sleep 2")
        a.e(f"s_branch L_poll_{name}")
        a.raw(f"L_poll_{name}_x:")
        if one_wave:
            a.e("s_barrier")

    for Gs in range(NS - 2):
        for n in range(3):
            dma(Gs, n)
    G.init_check(a, "a", t0, t1, itk[0])
    stamp(a, 'n')
    gemm_pass(0, True)
    stamp(a, 'o')
    epi_kq(G.K0, G.KX, False)
    stamp(a, 'p')
    gemm_pass(1, True)
    stamp(a, 'q')
    tkv = epi_v()
    stamp(a, 'r')
    order = [X(r_, s_) for s_ in range(18) for r_ in range(2)]
    want = [x_ for g_ in (8, 4, 0) for i_ in range(4) for x_ in (('k', 2 * (g_ + i_)), ('v', g_ + i_))] + \
           [('k', 2 * i_ + 1) for i_ in range(12)]
    RM = {w_: order[i_] for i_, w_ in enumerate(want)}

    def KR(k):
        return RM[('k', k)]

    def VR(v):
        return RM[('v', v)]
    TQ, MQ, CQ, QA, O0, OX, VXB = 16, 48, 52, 60, 68, 12, 92
    vNEG, vM, vT1, vT2, vOA, vOB = 86, 87, 88, 89, 90, 91
    vQ, vVX = 248, 249
    XS = 250
    vL8 = V_L8
    S_P, S_KT0 = 71, 73
    M = [4, 6, 8, 10]
    MQ0, MQ1, MVER, MODD, MP = 12, 14, 16, 18, 100
    SO = [75, 69, 70]
    LQ0, LQX, LKX, LVX = 0, 32768, 36864, 49152
    XK, XV = 86, 92
    vS1, vS2 = 250, 251

    def mk_srd(rs, off_sgpr, size=65536):
        a.e(f"s_add_u32 s{rs}, s{G.S_WS}, s{off_sgpr}")
        a.e(f"s_addc_u32 s{rs+1}, s{G.S_WS+1}, 0")
        a.e(f"s_mov_b32 s{rs+2}, {size}")
        a.e(f"s_mov_b32 s{rs+3}, 0x20000")
    tks_ = {}

    def att_setup():
        a.e(f"s_lshr_b32 s{S_P}, s{S_W}, 1")
        a.e(f"s_lshl_b32 s{S_KT0}, s{S_RB}, 3")
        a.e(f"s_sub_u32 s{S_KT0}, s{S_KT0}, 16")
        for b in range(3):
            a.e(f"s_add_u32 s{S_T0}, s{S_KT0}, {8*b}")
            a.e(f"s_lshl_b32 s{SO[b]}, s{S_T0}, 9")
            a.e(f"s_cmp_lt_i32 s{S_T0}, 0")
            a.e(f"s_cselect_b32 s{SO[b]}, 0x70000000, s{SO[b]}")
        a.e(f"s_lshl_b32 s{S_T0}, s{S_HG}, 16")
        a.e(f"s_add_u32 s{S_T0}, s{S_T0}, {G.KX}")
        mk_srd(R_X, S_T0)
        a.e(f"s_lshl_b32 s{S_T0}, s{S_HG}, 1")
        a.e(f"s_add_u32 s{S_T0}, s{S_T0}, s{S_C}")
        a.e(f"s_lshl_b32 s{S_T0}, s{S_T0}, 16")
        a.e(f"s_add_u32 s{S_T0}, s{S_T0}, {G.VX}")
        mk_srd(R_W1, S_T0)
        a.e(f"s_lshl_b32 s{S_T1}, s{S_HG}, 3")
        a.e(f"s_add_u32 s{S_T1}, s{S_T1}, s{S_W}")
        a.e(f"s_lshl_b32 s{S_T1}, s{S_T1}, 16")
        for rs, base in ((R_A, G.K0), (R_B, G.V0)):
            a.e(f"s_add_u32 s{S_T0}, s{S_T1}, {base}")
            mk_srd(rs, S_T0)
        a.e(f"s_lshl_b32 s{S_T2}, s{S_W}, 9")
        a.e(f"v_add_u32 v{vS1}, s{S_T2}, v{vL8}")
        a.e(f"s_lshl_b32 s{S_T2}, s{S_R}, 10")
        a.e(f"v_add_u32 v{vS2}, s{S_T2}, v{V_L16}")

    def att_poll():
        a.e(f"v_and_b32 v{t0}, 1, v{V_LANE}")
        a.e(f"v_add_u32 v{t0}, 1, v{t0}")
        a.e(f"v_sub_u32 v{t0}, s{S_RB}, v{t0}")
        a.e(f"v_max_i32 v{t0}, 0, v{t0}")
        a.e(f"v_lshlrev_b32 v{t0}, 11, v{t0}")
        a.e(f"s_lshl_b32 s{S_T0}, s{S_HG}, 2")
        a.e(f"v_add_u32 v{t0}, s{S_T0}, v{t0}")
        poll("kv", t0, t1, 1, one_wave=False)

    def lsh(b):
        def f():
            a.e(f"buffer_load_dwordx2 {vr(XK+2*b,2)}, v{vS1}, {sr(R_X,4)}, s{SO[b]} offen sc1")
            tks_['sh'] = a.e(f"buffer_load_dwordx4 {vr(XV+4*b,4)}, v{vS2}, {sr(R_W1,4)}, s{SO[b]} offen sc1")
        return f

    def lk(k):
        def f():
            tks_['kv'] = a.e(f"buffer_load_dwordx4 {vr(KR(k),4)}, v{V_L16}, {sr(R_A,4)}, s{SO[k//8]} offen offset:{(k%8)*512} sc1")
        return f

    def lv(k):
        def f():
            tks_['kv'] = a.e(f"buffer_load_dwordx4 {vr(VR(k),4)}, v{V_L16}, {sr(R_B,4)}, s{SO[k//4]} offen offset:{(k%4)*1024} sc1")
        return f
    FST = int(os.environ.get("FST", "3"))
    KSP = int(os.environ.get("KSP", "12"))
    lds_ = [(lk if w_[0] == 'k' else lv)(w_[1]) for w_ in want[:24]]
    n_own = FST * 10 - PD + 2
    hooks = {n_own: [att_setup]}
    rest = []
    pos = n_own + 1
    for i_, f_ in enumerate([lsh(2)] + lds_[:8]):
        free_at = ((i_ - 1) // 2 + 1) * 5 + 1
        pos = max(pos + 1, free_at)
        hooks.setdefault(pos, []).append(f_)
    hooks.setdefault(KSP * 5, []).append(att_poll)
    pos = KSP * 5
    for i_, f_ in enumerate([lsh(1), lsh(0)] + lds_[8:]):
        qi = i_ - 2 + 8
        free_at = (qi // 2 + 1) * 5 + 1 if i_ >= 2 else 0
        pos = max(pos + 1, free_at)
        if pos < 89:
            hooks.setdefault(pos, []).append(f_)
        else:
            rest.append(f_)
    gemm_pass(2, False, extra_wait={18 + FST: tkv}, after_bar={18 + FST: lambda: set_flag(1, "kv")}, hooks=hooks)
    for f_ in rest:
        f_()
    tsh = tks_['sh']
    tvv = [tks_['kv']]
    for t in range(5):
        for rho in range(2 if t < 4 else 1):
            A = acc(t, rho)
            for i in range(4):
                a.e(f"v_mul_f32 v{A+i}, 0x{qs:x}, v{A+i}")
            a.e(f"v_cvt_pk_bf16_f32 v{A}, v{A}, v{A+1}")
            a.e(f"v_cvt_pk_bf16_f32 v{A+1}, v{A+2}, v{A+3}")
    a.e(f"s_and_b32 s{S_T0}, s{S_RT0}, 7")
    a.e(f"s_lshl_b32 s{S_T0}, s{S_T0}, 9")
    a.e(f"v_add_u32 v252, s{S_T0}, v{vL8}")
    a.e(f"s_lshl_b32 s{S_T1}, s{S_C}, 14")
    a.e(f"v_add_u32 v253, s{S_T1}, v252")
    a.e(f"v_xor_b32 v254, 512, v253")
    stamp(a, 'i')
    a.wait_lg0()
    a.e("s_barrier")
    for t in range(4):
        for rho in range(2):
            a.e(f"ds_write_b64 v{253 if rho == 0 else 254}, {vr(acc(t,rho),2)} offset:{LQ0 + t*4096}")
    a.e(f"ds_write_b64 v252, {vr(acc(4,0),2)} offset:{LQX}")
    a.e(f"s_mul_i32 s{S_T1}, s{S_C}, 12288")
    a.e(f"v_add_u32 v{vS2}, s{S_T1}, v{vS2}")
    a.wait_vm(tsh)
    for b in range(3):
        a.e(f"ds_write_b64 v{vS1}, {vr(XK+2*b,2)} offset:{LKX + b*4096}")
        a.e(f"ds_write_b128 v{vS2}, {vr(XV+4*b,4)} offset:{LVX + b*4096}")
    a.wait_lg0()
    a.e(f"v_mov_b32 v{vNEG}, 0xf149f2ca")
    a.e(f"v_and_b32 v{vT1}, 15, v{V_LANE}")
    a.e(f"v_lshrrev_b32 v{vT2}, 4, v{V_LANE}")
    a.e(f"v_cmp_eq_u32 {sr(MP,2)}, s{S_P}, v{vT2}")
    a.e(f"v_lshlrev_b32 v{vT2}, 2, v{vT2}")
    for i in range(4):
        a.e(f"v_add_u32 v{vM}, {i}, v{vT2}")
        a.e(f"v_cmp_gt_u32 {sr(M[i],2)}, v{vM}, v{vT1}")
    a.e(f"s_cmp_lt_u32 s{S_P}, 2")
    a.e(f"s_cselect_b64 {sr(MVER,2)}, -1, 0")
    a.e(f"s_bitcmp0_b32 s{S_W}, 0")
    a.e(f"s_cselect_b64 {sr(MQ0,2)}, {sr(MP,2)}, 0")
    a.e(f"s_cselect_b64 {sr(MQ1,2)}, 0, {sr(MP,2)}")
    a.e(f"s_cselect_b64 {sr(MODD,2)}, 0, -1")
    a.e(f"s_lshl_b32 s{S_T0}, s{S_W}, 12")
    a.e(f"v_add_u32 v{vQ}, s{S_T0}, v{vL8}")
    a.e(f"s_mul_i32 s{S_T0}, s{S_C}, 12288")
    a.e(f"s_add_u32 s{S_T0}, s{S_T0}, {LVX}")
    a.e(f"v_add_u32 v{vVX}, s{S_T0}, v{V_L16}")
    S_OA, S_OB = 72, 74
    vO = 252
    a.e(f"s_mul_i32 s{S_T0}, s{S_RB}, {4*36864}")
    a.e(f"s_add_u32 s{S_T0}, s{S_T0}, {G.OF}")
    a.e(f"s_lshl_b32 s{S_T1}, s{S_HG}, 3")
    a.e(f"s_add_u32 s{S_T1}, s{S_T1}, s{S_W}")
    a.e(f"s_lshl_b32 s{S_T1}, s{S_T1}, 10")
    a.e(f"s_add_u32 s{S_OA}, s{S_T1}, s{S_T0}")
    a.e(f"s_add_u32 s{S_T1}, s{S_HG}, 32")
    a.e(f"s_lshl_b32 s{S_T1}, s{S_T1}, 10")
    a.e(f"s_and_b32 s{S_T3}, s{S_W}, 1")
    a.e(f"s_lshl_b32 s{S_T2}, s{S_T3}, 2")
    a.e(f"s_add_u32 s{S_T1}, s{S_T1}, s{S_T2}")
    a.e(f"s_add_u32 s{S_OB}, s{S_T1}, s{S_T0}")
    a.e(f"v_bfe_u32 v{vT2}, v{V_LANE}, 4, 1")
    a.e(f"v_lshlrev_b32 v{vO}, 9, v{vT2}")
    a.e(f"v_lshl_add_u32 v{vO}, v{vT1}, 4, v{vO}")
    a.e(f"v_lshrrev_b32 v{vT2}, 5, v{V_LANE}")
    a.e(f"v_lshl_add_u32 v{vO}, v{vT2}, 3, v{vO}")
    a.wait_lg0()
    a.e("s_barrier")
    a.wait_vm(tvv[-1])
    for k in range(0, 24, 2):
        a.e(f"v_mov_b32 v{KR(k+1)}, v{KR(k)+2}")
        a.e(f"v_mov_b32 v{KR(k+1)+1}, v{KR(k)+3}")
    for k in range(24):
        a.e(f"ds_read_b64 {vr(KR(k)+2,2)}, v{vL8} offset:{LKX + k*512}")

    def ld_q(j):
        q = QA + 4 * (j & 1)
        a.e(f"ds_read_b64 {vr(q,2)}, v{vQ} offset:{LQ0 + j*512}")
        return a.e(f"ds_read_b64 {vr(q+2,2)}, v{vL8} offset:{LQX + j*512}")
    ld_q(0)
    a.wait_vm(tvv[-1])
    a.wait_lg0()
    stamp(a, 'k')
    a.e(f"s_cmp_lt_i32 s{S_KT0}, 0")
    a.e("s_cbranch_scc1 L_head_neg")

    def heads(neg):
        sfx = "_neg" if neg else ""
        a.raw(f"L_head{sfx}:")
        a.barrier_hist()
        tq = None
        for j in range(8):
            o = j & 1
            q = QA + 4 * (j & 1)
            PM = os.environ.get("APRIO", "none")
            if PM == "alt" or (PM == "young" and j == 0):
                a.e(f"s_cmp_eq_u32 s{S_C}, {(j + 1) & 1}")
                a.e(f"s_cbranch_scc1 L_pr{sfx}{j}a")
                a.e("s_setprio 0")
                a.e(f"s_branch L_pr{sfx}{j}b")
                a.raw(f"L_pr{sfx}{j}a:")
                a.e("s_setprio 1")
                a.raw(f"L_pr{sfx}{j}b:")
            if tq is not None:
                a.wait_lg(tq)
            a.e(f"v_cndmask_b32 v{q+2}, 0, v{q+2}, {sr(MQ0,2)}")
            a.e(f"v_cndmask_b32 v{q+3}, 0, v{q+3}, {sr(MQ1,2)}")
            if j < 7:
                tq = ld_q(j + 1)
            if neg:
                for b in range(2):
                    a.e(f"s_cmp_eq_u32 s{SO[b]}, 0x70000000")
                    a.e(f"s_cselect_b32 s{S_T0}, 0xf149f2ca, 0")
                    for i in range(4):
                        a.e(f"v_mov_b32 v{CQ+4*b+i}, s{S_T0}")

            def cin(k, second):
                b = k >> 3
                if neg and b < 2:
                    return vr(CQ + 4 * b, 4)
                return vr(MQ, 4) if second else "0"
            LA = 4

            def tq_(t):
                return TQ + 4 * (t % 8)

            def s1(t):
                a.e(f"v_mfma_f32_16x16x32_bf16 {vr(tq_(t),4)}, {vr(KR(j+t),4)}, {vr(q,4)}, {cin(j+t, False)}")
            for t in range(LA):
                s1(t)
            for t in range(17):
                if t + LA < 17:
                    s1(t + LA)
                r = tq_(t)
                if t == 0:
                    for i in range(4):
                        a.e(f"v_cndmask_b32 v{r+i}, v{vNEG}, v{r+i}, {sr(M[i],2)}")
                    a.e(f"v_max_f32 v{vM}, v{r}, v{r+1}")
                    a.e(f"v_max_f32 v{vT1}, v{r+2}, v{r+3}")
                    continue
                if t == 16:
                    for i in range(4):
                        a.e(f"v_cndmask_b32 v{r+i}, v{r+i}, v{vNEG}, {sr(M[i],2)}")
                a.e(f"v_max3_f32 v{vM}, v{vM}, v{r}, v{r+1}")
                a.e(f"v_max3_f32 v{vT1}, v{vT1}, v{r+2}, v{r+3}")
            tvx = {}

            def ld_vx(u):
                tvx[u] = a.e(f"ds_read_b128 {vr(VXB+4*(u%3),4)}, v{vVX} offset:{((j>>1)+u)*1024}")
            ld_vx(0)
            ld_vx(1)
            a.e(f"v_max_f32 v{vM}, v{vM}, v{vT1}")
            a.e(f"v_mov_b32 v{vT1}, v{vM}")
            a.e(f"v_permlane32_swap_b32 v{vM}, v{vT1}")
            a.e(f"v_max_f32 v{vM}, v{vM}, v{vT1}")
            a.e(f"v_mov_b32 v{vT1}, v{vM}")
            a.e(f"v_permlane16_swap_b32 v{vM}, v{vT1}")
            a.e(f"v_max_f32 v{vM}, v{vM}, v{vT1}")
            for i in range(4):
                a.e(f"v_sub_f32 v{MQ+i}, 0, v{vM}")
            if neg:
                for b in range(2):
                    for i in range(4):
                        a.e(f"v_add_f32 v{CQ+4*b+i}, v{CQ+4*b+i}, v{MQ}")

            def sq(sl):
                return TQ + 4 * (sl % 8)

            def s2m(sl):
                t = sl - o
                if 0 <= t <= 16:
                    return [f"v_mfma_f32_16x16x32_bf16 {vr(sq(sl),4)}, {vr(KR(j+t),4)}, {vr(q,4)}, {cin(j+t, True)}"]
                return []

            def pvm(u):
                vs = (j >> 1) + u
                return [f"v_mfma_f32_16x16x32_bf16 {vr(O0,4)}, {vr(VR(vs),4)}, {vr(sq(2*u),4)}, {vr(O0,4) if u else '0'}",
                        f"v_mfma_f32_16x16x32_bf16 {vr(OX,4)}, {vr(VXB+4*(u%3),4)}, {vr(sq(2*u),4)}, {vr(OX,4) if u else '0'}"]
            for sl in range(4):
                for m_ in s2m(sl):
                    a.e(m_)
            for u in range(9):
                mm = (pvm(u - 1) if u else []) + (s2m(2 * u + 4) + s2m(2 * u + 5) if u + 2 < 9 else [])
                if u:
                    a.wait_lg(tvx[u - 1])
                vv = []
                for h in range(2):
                    sl = 2 * u + h
                    t = sl - o
                    if not 0 <= t <= 16:
                        continue
                    r = sq(sl)
                    if t == 0:
                        vv += [f"v_cndmask_b32 v{r+i}, v{vNEG}, v{r+i}, {sr(M[i],2)}" for i in range(4)]
                    if t == 16:
                        vv += [f"v_cndmask_b32 v{r+i}, v{r+i}, v{vNEG}, {sr(M[i],2)}" for i in range(4)]
                    vv += [f"v_exp_f32 v{r+i}, v{r+i}" for i in range(4)]
                for h in range(2):
                    sl = 2 * u + h
                    t = sl - o
                    for k2 in range(2):
                        d = sq(2 * u) + 2 * h + k2
                        vv.append(f"v_cvt_pk_bf16_f32 v{d}, v{sq(sl)+2*k2}, v{sq(sl)+2*k2+1}" if 0 <= t <= 16 else f"v_mov_b32 v{d}, 0")
                step = max(1, len(vv) // max(1, len(mm)))
                for k_, v_ in enumerate(vv):
                    if mm and k_ % step == 0:
                        a.e(mm.pop(0))
                    a.e(v_)
                for m_ in mm:
                    a.e(m_)
                if u + 2 < 9:
                    ld_vx(u + 2)
            a.wait_lg(tvx[8])
            for m_ in pvm(8):
                a.e(m_)
            a.e(f"v_mov_b32 v{vT1}, v{OX}")
            a.e(f"v_mov_b32 v{vT2}, v{OX}")
            a.e(f"v_permlane32_swap_b32 v{vT1}, v{vT2}")
            a.e(f"v_cndmask_b32 v{vT1}, v{vT1}, v{vT2}, {sr(MVER,2)}")
            a.e(f"v_rcp_f32 v{vT1}, v{vT1}")
            a.e(f"v_cndmask_b32 v{OX}, v{OX}, v{OX+2}, {sr(MODD,2)}")
            a.e(f"v_cndmask_b32 v{OX+1}, v{OX+1}, v{OX+3}, {sr(MODD,2)}")
            for i in range(4):
                a.e(f"v_mul_f32 v{O0+i}, v{O0+i}, v{vT1}")
            a.e(f"v_mul_f32 v{OX}, v{OX}, v{vT1}")
            a.e(f"v_mul_f32 v{OX+1}, v{OX+1}, v{vT1}")
            a.e(f"v_cvt_pk_bf16_f32 v{vOA}, v{O0}, v{O0+1}")
            a.e(f"v_cvt_pk_bf16_f32 v{vOB}, v{O0+2}, v{O0+3}")
            a.e(f"v_cvt_pk_bf16_f32 v{vT2}, v{OX}, v{OX+1}")
            a.e(f"s_add_u32 s{S_T1}, s{S_OA}, {(j>>1)*36864 + (j&1)*256}")
            a.e(f"buffer_store_dwordx2 {vr(vOA,2)}, v{vO}, {sr(R_WS,4)}, s{S_T1} offen sc1")
            a.e(f"s_add_u32 s{S_T1}, s{S_OB}, {(j>>1)*36864 + (j&1)*256}")
            a.e(f"s_mov_b64 exec, {sr(MP,2)}")
            a.e(f"buffer_store_dword v{vT2}, v{vO}, {sr(R_WS,4)}, s{S_T1} offen sc1")
            a.e("s_mov_b64 exec, -1")
        if not neg:
            a.e("s_branch L_att_done")
    heads(False)
    heads(True)
    ool = []
    a.raw("L_att_done:")
    a.barrier_hist()
    a.e("s_setprio 0")
    stamp(a, 'j')
    def assign():
        a.e(f"s_lshl_b32 s{G.T_CE}, s{S_HG}, 6")
        a.e(f"s_lshr_b32 s{S_T0}, s{S_HG}, 1")
        a.e(f"s_add_u32 s{S_T0}, s{S_T0}, 4")
        a.e(f"s_lshl_b32 s{G.T_CL}, s{S_T0}, 6")
        a.e(f"s_and_b32 s{S_T0}, s{S_HG}, 1")
        a.e(f"s_lshl_b32 s{S_T0}, s{S_T0}, 1")
        a.e(f"s_and_b32 s{S_T1}, s{S_W}, 1")
        a.e(f"s_add_u32 s{S_T0}, s{S_T0}, s{S_T1}")
        a.e(f"s_cmp_eq_u32 s{S_C}, 0")
        a.e(f"s_cselect_b32 s{G.T_TR}, s{S_R}, s{S_T0}")
        a.e(f"s_cmp_lt_u32 s{S_W}, 6")
        a.e(f"s_cselect_b32 s{G.T_ACT}, 1, 0")

    def between():
        stamp(a, 'l')
        set_flag(2, "o")
    G.tail(a, "a", assign, between, late_c1=False)
    stamp(a, 'h')
    G.stamp_out(a)
    a.e("s_endpgm")
    for t_ in ool:
        a.raw(t_)
```

```python
import sys
from asmlib import Asm, vr, sr

HS = 0x0000000
PART = 0x1200000
PSZ = 2359296
QF = 0x3000000
K0 = 0x3400000
V0 = 0x3600000
KX = 0x3800000
VX = 0x3840000
OF = 0x3900000
FLG = 0x3E00000
WS_SZ = 0x4000000
XBASE = 16384
LDS_SZ = 163840
LOG2E = 0x3FB8AA3B
NLOG2E = 0xBFB8AA3B

S_X, S_WQKV, S_WO, S_BX, S_WG, S_WU, S_WD, S_OUT, S_DBG, S_WS = 4, 6, 8, 10, 12, 14, 16, 18, 20, 22
R_X, R_W1, R_W2, R_WS, R_DBG, R_A, R_B = 24, 28, 32, 36, 40, 44, 48
S_W, S_R, S_C, S_RB, S_SPLIT, S_T0, S_T1, S_T2, S_T3 = 52, 53, 54, 55, 56, 57, 58, 59, 60
S_WLDS, S_W1B, S_W2B, S_H0, S_H1, S_P0, S_P1, S_NL2E, S_XREG, S_XPAR = 61, 62, 63, 64, 65, 66, 67, 68, 69, 70
S_HG = S_SPLIT

V_LANE, V_L16, V_D1, V_D2 = 1, 2, 3, 4
V_RD = 5
V_T = 11
FR = 16
NFR = int(__import__("os").environ.get("NFR", "6"))
PD = NFR - 2
ACC = 40
XN = 104


def X(rho, s):
    return XN + (rho * 18 + s) * 4


def X32(s):
    return XN + s * 4


import os
STAMP = int(os.environ.get("STAMP", "0"))
_DEF = {"EARLYW": "1"}
def FLAG(n):
    return int(os.environ.get(n, _DEF.get(n, "0")))
MAPC = int(os.environ.get("MAPC", "0"))
_nst = [0]
STSEL = os.environ.get("STSEL", "a,b,f,g,h").split(",")
def stamp(a, name="a"):
    if not STAMP or name not in STSEL:
        return
    k = _nst[0]; _nst[0] += 1
    a.e(f"s_memtime s[{76+4*k}:{77+4*k}]")
    a.e(f"s_memrealtime s[{78+4*k}:{79+4*k}]")
    a.wait_lg0()

def stamp_out(a):
    if not STAMP:
        return
    n = _nst[0]; _nst[0] = 0
    a.e(f"s_lshl_b32 s{S_T0}, s2, 6")
    a.e(f"s_add_u32 s{S_T0}, s{S_T0}, 0x3F00000")
    a.e(f"v_mov_b32 v20, 0")
    a.e(f"s_cmp_eq_u32 s{S_W}, {os.environ.get('STW', '0')}")
    a.e(f"s_cbranch_scc0 L_nostamp{id(a)}_{a.nins}")
    lab = a.out[-1].split()[-1]
    for k in range(n):
        a.e(f"v_mov_b32 v16, s{76+4*k}")
        a.e(f"v_mov_b32 v17, s{78+4*k}")
        a.e(f"buffer_store_dwordx2 v[16:17], v20, {sr(R_WS,4)}, s{S_T0} offen offset:{8*k}")
        a.e("s_nop 2")
    if FLAG("STDBG"):
        a.e(f"s_and_b32 s{S_T0}, s2, 63")
        a.e(f"s_cmp_eq_u32 s{S_T0}, 9")
        a.e(f"s_cbranch_scc0 {lab}")
        a.e(f"s_lshr_b32 s{S_T0}, s2, 6")
        a.e(f"s_cmp_eq_u32 s{S_T0}, 0")
        a.e(f"s_cselect_b32 s{S_T1}, 0, 32")
        a.e(f"s_add_u32 s{S_T0}, s{S_T0}, 1")
        a.e(f"s_and_b32 s{S_T0}, s{S_T0}, 2")
        a.e(f"s_cbranch_scc1 {lab}")
        for k in range(1, n):
            a.e(f"s_sub_u32 s{S_T0}, s{78+4*k}, s78")
            a.e(f"v_mov_b32 v16, s{S_T0}")
            a.e(f"buffer_store_dword v16, v20, {sr(R_DBG,4)}, s{S_T1} offen offset:{4*(k-1)}")
            a.e("s_nop 2")
    a.label(lab)


def srd(a, d, base, nbytes):
    a.e(f"s_mov_b32 s{d}, s{base}")
    a.e(f"s_mov_b32 s{d+1}, s{base+1}")
    a.e(f"s_mov_b32 s{d+2}, {nbytes}")
    a.e(f"s_mov_b32 s{d+3}, 0x20000")


def bf16_round(a, v, tmp=None):
    a.e(f"v_cvt_pk_bf16_f32 v{v}, v{v}, v{v}")
    a.e(f"v_lshlrev_b32 v{v}, 16, v{v}")


def x_stage_issue(a):
    t0, t1, t2 = V_T, V_T + 1, V_T + 2
    a.e(f"v_lshrrev_b32 v{t0}, 3, v{V_LANE}")
    a.e(f"v_and_b32 v{t1}, 7, v{V_LANE}")
    a.e(f"v_lshrrev_b32 v{t2}, 1, v{t0}")
    a.e(f"v_xor_b32 v{t1}, v{t1}, v{t2}")
    a.e(f"v_mul_u32_u24 v{t0}, 1152, v{t0}")
    a.e(f"v_lshl_add_u32 v{t2}, v{t1}, 4, v{t0}")
    a.e(f"v_xor_b32 v{t1}, 4, v{t1}")
    a.e(f"v_lshl_add_u32 v{t1}, v{t1}, 4, v{t0}")
    a.e(f"v_add_u32 v{t1}, {8*1152-1024}, v{t1}")
    a.e(f"s_lshl_b32 s{S_T0}, s{S_RB}, 7")
    a.e(f"s_lshl_b32 s{S_T1}, s{S_R}, 5")
    a.e(f"s_add_u32 s{S_T0}, s{S_T0}, s{S_T1}")
    a.e(f"s_lshl_b32 s{S_T1}, s{S_C}, 4")
    a.e(f"s_add_u32 s{S_T0}, s{S_T0}, s{S_T1}")
    a.e(f"s_mul_i32 s{S_T0}, s{S_T0}, 1152")
    a.e(f"s_lshl_b32 s{S_T1}, s{S_R}, 1")
    a.e(f"s_add_u32 s{S_T2}, s{S_T1}, s{S_C}")
    a.e(f"s_mul_i32 s{S_XREG}, s{S_T2}, 18432")
    a.e(f"s_add_u32 s{S_XREG}, s{S_XREG}, {XBASE}")
    a.e(f"s_xor_b32 s{S_T2}, s{S_T2}, 1")
    a.e(f"s_mul_i32 s{S_XPAR}, s{S_T2}, 18432")
    a.e(f"s_add_u32 s{S_XPAR}, s{S_XPAR}, {XBASE}")
    tk = None
    a.e(f"s_lshr_b32 s{S_T2}, s2, {5 if MAPC else 6}")
    a.e(f"s_lshl_b32 s{S_T2}, s{S_T2}, {7 if MAPC else 8}")
    for cb in range(9):
        a.e(f"s_lshl_b32 s{S_T3}, s{S_T2}, 4")
        a.e(f"s_add_u32 m0, s{S_XREG}, s{S_T3}")
        a.e(f"s_add_u32 s{S_T1}, s{S_T0}, s{S_T2}")
        a.e(f"buffer_load_dwordx4 v{t2}, {sr(R_X,4)}, s{S_T1} offen lds")
        tk = a.e(f"buffer_load_dwordx4 v{t1}, {sr(R_X,4)}, s{S_T1} offen offset:1024 lds")
        if cb < 8:
            a.e(f"s_add_u32 s{S_T2}, s{S_T2}, 128")
            a.e(f"s_cmp_eq_u32 s{S_T2}, 1152")
            a.e(f"s_cselect_b32 s{S_T2}, 0, s{S_T2}")
    return tk


def init_issue(a, vaddr, vtmp):
    return a.e(f"buffer_load_dword v{vtmp}, v{vaddr}, {sr(R_DBG,4)}, 0 offen offset:64 sc1")


def init_check(a, name, vaddr, vtmp, tk):
    a.wait_vm(tk)
    a.e(f"v_cmp_eq_u32 vcc, 0, v{vtmp}")
    a.e(f"s_cbranch_vccz L_ic_{name}_x")
    a.e(f"s_mov_b32 s{S_T2}, 0")
    a.raw(f"L_ic_{name}:")
    a.e_untracked(f"buffer_load_dword v{vtmp}, v{vaddr}, {sr(R_DBG,4)}, 0 offen offset:64 sc1")
    a.e(f"s_add_u32 s{S_T2}, s{S_T2}, 1")
    a.e(f"s_cmp_gt_u32 s{S_T2}, 0x40000")
    a.e(f"s_cbranch_scc1 L_ic_{name}_x")
    a.e("s_waitcnt vmcnt(0)")
    a.e(f"v_cmp_eq_u32 vcc, 0, v{vtmp}")
    a.e(f"s_cbranch_vccnz L_ic_{name}")
    a.raw(f"L_ic_{name}_x:")


def layernorm(a, xtk, after_x=None, m32=False, after_wait=None):
    T = ACC
    m, q = T, T + 1
    a.e(f"v_and_b32 v{m}, 15, v{V_LANE}")
    a.e(f"v_lshrrev_b32 v{q}, 4, v{V_LANE}")
    b = T + 2
    a.e(f"v_and_b32 v{b}, 1, v{q}")
    a.e(f"v_lshlrev_b32 v{b}, 3, v{b}")
    a.e(f"v_lshl_add_u32 v{b}, v{m}, 7, v{b}")
    a.e(f"v_add_u32 v{b}, s{S_XREG}, v{b}")
    sw = T + 3
    a.e(f"v_lshrrev_b32 v{sw}, 1, v{m}")
    if m32:
        a.e(f"v_and_b32 v{T+4}, 2, v{q}")
    else:
        a.e(f"v_lshrrev_b32 v{T+4}, 1, v{q}")
    a.e(f"v_xor_b32 v{sw}, v{sw}, v{T+4}")
    ad = T + 8
    for k in range(4):
        a.e(f"v_xor_b32 v{T+4}, {(4*(k>>1) + (k&1)) if m32 else 2*k}, v{sw}")
        a.e(f"v_lshl_add_u32 v{ad+k}, v{T+4}, 4, v{b}")
    ones = T + 12
    for k in range(4):
        a.e(f"v_mov_b32 v{ones+k}, 0x3f803f80")
    a.wait_vm(xtk)
    stamp(a, 'b')
    if after_wait:
        after_wait()
    s1, s2 = T + 16, T + 20
    tks = []
    for s in range(18):
        for j in range(2):
            tk = a.e(f"ds_read_b64 {vr(X(0,s)+2*j,2)}, v{ad+2*(s&1)+j} offset:{(s>>1)*2048}")
        tks.append(tk)
        if s >= 4:
            ss = s - 4
            a.wait_lg(tks[ss])
            a.e(f"v_mfma_f32_16x16x32_bf16 {vr(s1,4)}, {vr(ones,4)}, {vr(X(0,ss),4)}, {vr(s1,4) if ss else '0'}")
            a.e(f"v_mfma_f32_16x16x32_bf16 {vr(s2,4)}, {vr(X(0,ss),4)}, {vr(X(0,ss),4)}, {vr(s2,4) if ss else '0'}")
    for ss in range(14, 18):
        a.wait_lg(tks[ss])
        a.e(f"v_mfma_f32_16x16x32_bf16 {vr(s1,4)}, {vr(ones,4)}, {vr(X(0,ss),4)}, {vr(s1,4)}")
        a.e(f"v_mfma_f32_16x16x32_bf16 {vr(s2,4)}, {vr(X(0,ss),4)}, {vr(X(0,ss),4)}, {vr(s2,4)}")
    t = T + 4
    a.e(f"v_and_b32 v{t}, 3, v{m}")
    a.e(f"v_cmp_eq_u32 vcc, 1, v{t}")
    a.e(f"v_cndmask_b32 v{s2}, v{s2}, v{s2+1}, vcc")
    a.e(f"v_cmp_eq_u32 vcc, 2, v{t}")
    a.e(f"v_cndmask_b32 v{s2}, v{s2}, v{s2+2}, vcc")
    a.e(f"v_cmp_eq_u32 vcc, 3, v{t}")
    a.e(f"v_cndmask_b32 v{s2}, v{s2}, v{s2+3}, vcc")
    a.e(f"v_lshrrev_b32 v{t}, 2, v{m}")
    a.e(f"v_lshl_add_u32 v{t}, v{t}, 4, v{m}")
    a.e(f"v_lshlrev_b32 v{t}, 2, v{t}")
    tk = a.e(f"ds_bpermute_b32 v{s2}, v{t}, v{s2}")
    inv = 0x3AE38E39
    a.e(f"v_mul_f32 v{s1}, 0x{inv:x}, v{s1}")
    a.wait_lg(tk)
    a.e(f"v_mul_f32 v{s2}, 0x{inv:x}, v{s2}")
    a.e(f"v_fma_f32 v{s2}, -v{s1}, v{s1}, v{s2}")
    a.e(f"v_max_f32 v{s2}, 0, v{s2}")
    bf16_round(a, s2)
    a.e(f"v_add_f32 v{s2}, 0x3727c5ac, v{s2}")
    bf16_round(a, s2)
    a.e(f"v_sqrt_f32 v{s2}, v{s2}")
    bf16_round(a, s2)
    a.e(f"v_rcp_f32 v{s2}, v{s2}")
    bf16_round(a, s1)
    a.e(f"v_mul_f32 v{s1}, v{s1}, v{s2}")
    a.e(f"v_sub_f32 v{s1}, 0, v{s1}")
    stamp(a, 'c')
    wa = T + 5
    a.e(f"v_add_u32 v{wa}, s{S_XREG}, v{V_L16}")
    tmp = T + 24
    for s in range(18):
        for k in range(4):
            xr = X(0, s) + k
            lo = tmp + 2 * k
            a.e(f"v_lshlrev_b32 v{lo}, 16, v{xr}")
            a.e(f"v_and_b32 v{lo+1}, 0xffff0000, v{xr}")
        for k in range(4):
            lo = tmp + 2 * k
            a.e(f"v_fma_f32 v{lo}, v{lo}, v{s2}, v{s1}")
            a.e(f"v_fma_f32 v{lo+1}, v{lo+1}, v{s2}, v{s1}")
        for k in range(4):
            lo = tmp + 2 * k
            a.e(f"v_cvt_pk_bf16_f32 v{X(0,s)+k}, v{lo}, v{lo+1}")
        a.e(f"ds_write_b128 v{wa}, {vr(X(0,s),4)} offset:{s*1024}")
    if m32:
        a.e(f"s_min_u32 s{S_T0}, s{S_XREG}, s{S_XPAR}")
        a.e(f"v_bfe_u32 v{T+4}, v{V_LANE}, 4, 1")
        a.e(f"v_mul_u32_u24 v{wa}, 18432, v{T+4}")
        a.e(f"v_lshrrev_b32 v{T+4}, 5, v{V_LANE}")
        a.e(f"v_lshl_add_u32 v{wa}, v{T+4}, 8, v{wa}")
        a.e(f"v_lshl_add_u32 v{wa}, v{m}, 4, v{wa}")
        a.e(f"v_add_u32 v{wa}, s{S_T0}, v{wa}")
    else:
        a.e(f"v_add_u32 v{wa}, s{S_XPAR}, v{V_L16}")
    a.wait_lg0()
    stamp(a, 'd')
    a.e("s_barrier")
    stamp(a, 'e')
    if after_x:
        after_x()
    if m32:
        for s in range(36):
            a.e(f"ds_read_b128 {vr(X32(s),4)}, v{wa} offset:{s*512}")
    else:
        for s in range(18):
            a.e(f"ds_read_b128 {vr(X(1,s),4)}, v{wa} offset:{s*1024}")
    a.wait_lg0()
    a.e("s_barrier")


def run_stream(a, frags, fill, on_stage, wrap=False, prime=True, tick=None, base=0):
    N = len(frags)
    assert (not wrap) or N % NFR == 0
    if tick is None:
        tick = {}

    def rd(m, j):
        f = frags[m % N]
        if j == 0 and f.get("first"):
            on_stage(f["stage"] + (1000 if m >= N else 0))
        r = FR + 4 * (m % NFR)
        vb, imm = f["rd"][j]
        if FLAG("NORD") and not prime:
            tick[m] = a.lg
            return
        tick[m] = a.e(f"ds_read_b64_tr_b16 {vr(r+2*j,2)}, v{vb} offset:{imm}")

    if prime:
        for m in range(min(PD, N)):
            rd(m, 0)
            rd(m, 1)
        if wrap:
            return tick
    for n in range(N):
        f = frags[n]
        r = FR + 4 * (n % NFR)
        fl = list(fill.get(n, []))
        nm = len(f["mf"])
        for c in f.get("pre", []):
            c()
        a.wait_lg(tick[n])
        for k, mf in enumerate(f["mf"]):
            a.e(mf(r))
            if n + PD < N or wrap:
                if nm == 1:
                    rd(n + PD, 0)
                    rd(n + PD, 1)
                elif k < 2:
                    rd(n + PD, k)
            cnt = (len(fl) + (nm - k) - 1) // (nm - k)
            for c in fl[:cnt]:
                c()
            fl = fl[cnt:]
    if wrap:
        return {m: tick[N + m] for m in range(PD)}
    return tick


def loop(a, label, body, niter_sgpr_dec):
    a.raw(label + ":")
    n0 = len(a.out)
    body()
    niter_sgpr_dec(label)
    t1 = a.out[n0:]
    n1 = len(a.out)
    body()
    niter_sgpr_dec(label)
    t2 = a.out[n1:]
    if t1 != t2:
        for x, y in zip(t1, t2):
            if x != y:
                sys.stderr.write(f"LOOP MISMATCH {label}: {x!r} vs {y!r}\n")
        assert len(t1) == len(t2), "loop body length mismatch"
        import re
        for k, (x, y) in enumerate(zip(t1, t2)):
            if x != y:
                mx, my = re.match(r"\s*s_waitcnt (vm|lgkm)cnt\((\d+)\)", x), re.match(r"\s*s_waitcnt (vm|lgkm)cnt\((\d+)\)", y)
                assert mx and my and mx.group(1) == my.group(1), (x, y)
                t1[k] = x if int(mx.group(2)) <= int(my.group(2)) else y
        a.out[n0:n1] = t1
    del a.out[n1:]


V_FW, V_FR, V_FV, V_FT = 248, 249, 252, 253
FLAGS = 147456


class Sync:
    def __init__(self, a, tag):
        self.a, self.tag, self.slow, self.tk, self.n = a, tag, {}, None, 0

    def setup(self):
        a = self.a
        a.e(f"s_lshl_b32 s{S_T0}, s{S_W}, 8")
        a.e(f"s_add_u32 s{S_T0}, s{S_T0}, {FLAGS+64}")
        a.e(f"v_lshlrev_b32 v{V_FW}, 2, v{V_LANE}")
        a.e(f"v_add_u32 v{V_FW}, s{S_T0}, v{V_FW}")
        a.e(f"s_lshl_b32 s{S_T0}, s{S_W}, 2")
        a.e(f"s_add_u32 s{S_T0}, s{S_T0}, {FLAGS}")
        a.e(f"v_mov_b32 v{V_FT}, s{S_T0}")
        a.e(f"v_cmp_eq_u32 vcc, 0, v{V_LANE}")
        a.e(f"v_cndmask_b32 v{V_FW}, v{V_FW}, v{V_FT}, vcc")
        a.e(f"v_and_b32 v{V_FR}, 7, v{V_LANE}")
        a.e(f"v_lshlrev_b32 v{V_FR}, 2, v{V_FR}")
        a.e(f"v_add_u32 v{V_FR}, {FLAGS}, v{V_FR}")
        a.e(f"v_mov_b32 v{V_FV}, 0")
        a.e(f"ds_write_b32 v{V_FW}, v{V_FV}")

    def arrive(self, tk):
        a = self.a
        a.e(f"v_add_u32 v{V_FV}, 1, v{V_FV}")
        a.wait_vm(tk)
        a.e(f"ds_write_b32 v{V_FW}, v{V_FV}")

    def read(self):
        self.tk = self.a.e(f"ds_read_b32 v{V_FT}, v{V_FR}")

    def check(self, name):
        a = self.a
        if FLAG("NOBAR"):
            return
        a.wait_lg(self.tk)
        a.e(f"v_cmp_lt_u32 vcc, v{V_FT}, v{V_FV}")
        a.e(f"s_cbranch_vccnz L_slow_{self.tag}_{name}")
        a.raw(f"L_back_{self.tag}_{name}:")
        self.slow[name] = 1

    def emit_slow(self):
        a = self.a
        for name in self.slow:
            a.raw(f"L_slow_{self.tag}_{name}:")
            a.raw(f"    ds_read_b32 v{V_FT}, v{V_FR}")
            a.raw(f"    s_waitcnt lgkmcnt(0)")
            a.raw(f"    v_cmp_lt_u32 vcc, v{V_FT}, v{V_FV}")
            a.raw(f"    s_cbranch_vccnz L_slow_{self.tag}_{name}")
            a.raw(f"    s_branch L_back_{self.tag}_{name}")


def spread(fill, items, n0, n1):
    L = len(items)
    span = n1 - n0
    for i, it in enumerate(items):
        n = n0 + (i * span) // L
        fill.setdefault(n, []).append(it)


def rd_bases(a):
    t0, t1, t2 = V_T, V_T + 1, V_T + 2
    a.e(f"v_lshrrev_b32 v{t0}, 4, v{V_LANE}")
    a.e(f"v_lshrrev_b32 v{t1}, 1, v{t0}")
    a.e(f"v_lshlrev_b32 v{t1}, 10, v{t1}")
    a.e(f"v_and_b32 v{t0}, 1, v{t0}")
    a.e(f"v_lshl_add_u32 v{t1}, v{t0}, 8, v{t1}")
    a.e(f"v_lshl_add_u32 v{t1}, v{t0}, 5, v{t1}")
    a.e(f"v_bfe_u32 v{t2}, v{V_LANE}, 2, 2")
    a.e(f"v_lshl_add_u32 v{t1}, v{t2}, 6, v{t1}")
    a.e(f"v_and_b32 v{t2}, 3, v{V_LANE}")
    a.e(f"v_lshl_add_u32 v{t1}, v{t2}, 3, v{t1}")
    a.e(f"s_lshl_b32 s{S_T0}, s{S_C}, 9")
    a.e(f"v_add_u32 v{V_RD}, s{S_T0}, v{t1}")
    a.e(f"v_xor_b32 v{V_RD+3}, 32, v{V_RD}")
    for k in (1, 2):
        a.e(f"v_add_u32 v{V_RD+k}, {49152*k}, v{V_RD}")
        a.e(f"v_add_u32 v{V_RD+3+k}, {49152*k}, v{V_RD+3}")


def rd_bases32(a):
    t1, t2 = V_T + 1, V_T + 2
    a.e(f"v_lshrrev_b32 v{t1}, 5, v{V_LANE}")
    a.e(f"v_lshlrev_b32 v{t1}, 8, v{t1}")
    a.e(f"v_bfe_u32 v{t2}, v{V_LANE}, 2, 2")
    a.e(f"v_lshl_add_u32 v{t1}, v{t2}, 6, v{t1}")
    a.e(f"v_bfe_u32 v{t2}, v{V_LANE}, 4, 1")
    a.e(f"v_lshl_add_u32 v{t1}, v{t2}, 5, v{t1}")
    a.e(f"v_and_b32 v{t2}, 3, v{V_LANE}")
    a.e(f"v_lshl_add_u32 v{t1}, v{t2}, 3, v{t1}")
    a.e(f"s_lshl_b32 s{S_T0}, s{S_C}, 9")
    a.e(f"v_add_u32 v{V_RD}, s{S_T0}, v{t1}")
    for k in (1, 2):
        a.e(f"v_add_u32 v{V_RD+k}, {49152*k}, v{V_RD}")


T_CE, T_CL, T_TR, T_TC, T_ACT, T_FE, T_FS, T_AE, T_AL, T_BK0, T_BK1, T_NG, T_RB_, T_XB = 66, 70, 72, 71, 73, 63, 62, 64, 65, 74, 75, 69, 67, 98


def tail(a, tag, assign, between, late_c1):
    a.e("s_load_dwordx2 s[4:5], s[0:1], 56")
    a.e("s_load_dwordx2 s[6:7], s[0:1], 16")
    a.e("s_load_dwordx2 s[8:9], s[0:1], 0")
    a.wait_lg0()
    VF1, VF2, VFL, VFO, VG = 248, 249, 250, 251, V_T + 2
    a.e(f"v_min_u32 v{VF1}, 11, v{V_LANE}")
    a.e(f"v_lshlrev_b32 v{VF1}, 2, v{VF1}")
    a.e(f"v_and_b32 v{VF2}, 3, v{V_LANE}")
    a.e(f"v_lshlrev_b32 v{VF2}, 2, v{VF2}")
    assign()
    a.e(f"s_cmp_eq_u32 s{S_C}, 0")
    a.e(f"s_cselect_b32 s{T_TC}, s{T_CE}, s{T_CL}")
    a.e(f"s_lshr_b32 s{T_NG}, s{T_TC}, 7")
    a.e(f"s_bfe_u32 s{S_T0}, s{T_TC}, 0x10006")
    a.e(f"s_lshl_b32 s{T_BK0}, s{S_T0}, 3")
    a.e(f"s_lshl_b32 s{S_T0}, s{T_TR}, 1")
    a.e(f"s_add_u32 s{T_BK0}, s{T_BK0}, s{S_T0}")
    a.e(f"s_add_u32 s{T_BK1}, s{T_BK0}, 1")
    a.e(f"s_lshl_b32 s{T_FS}, s{S_RB}, 11")
    a.e(f"s_add_u32 s{T_FS}, s{T_FS}, {FLG}")
    a.e(f"s_lshl_b32 s{S_T1}, s{T_NG}, 6")
    a.e(f"s_add_u32 s{T_FE}, s{T_FS}, s{S_T1}")
    a.e(f"s_add_u32 s{T_FE}, s{T_FE}, 128")
    a.e(f"s_lshl_b32 s{S_T0}, s{S_RB}, 2")
    a.e(f"s_add_u32 s{S_T0}, s{S_T0}, s{T_TR}")
    a.e(f"s_mul_i32 s{S_T0}, s{S_T0}, {32*1152}")
    a.e(f"s_add_u32 s{T_AE}, s{S_T0}, s{T_TC}")
    a.e(f"s_add_u32 s{T_AL}, s{T_AE}, 32")
    srd(a, R_A, 4, 2359296)
    srd(a, R_B, 6, 663552)
    srd(a, R_X, 8, 2359296)
    a.e(f"s_mov_b32 s{S_NL2E}, 0x{NLOG2E:x}")
    a.e(f"s_lshl_b32 s{S_WLDS}, s{S_W}, 10")
    rd_bases32(a)
    a.e(f"v_and_b32 v{VG}, 31, v{V_LANE}")
    a.e(f"v_mul_u32_u24 v{VG}, 1152, v{VG}")
    a.e(f"v_lshrrev_b32 v{VFL}, 5, v{V_LANE}")
    a.e(f"v_lshl_add_u32 v{VG}, v{VFL}, 3, v{VG}")
    a.e(f"s_sub_u32 s{S_T0}, s{T_CL}, s{T_CE}")
    a.e(f"v_mul_lo_u32 v{V_D2}, v{VFL}, s{S_T0}")
    a.e(f"v_bfe_u32 v{VFL}, v{V_LANE}, 2, 3")
    a.e(f"v_mul_u32_u24 v{VFL}, 1152, v{VFL}")
    a.e(f"v_add_u32 v{V_D2}, v{V_D2}, v{VFL}")
    a.e(f"v_and_b32 v{VFL}, 3, v{V_LANE}")
    a.e(f"v_lshl_add_u32 v{V_D2}, v{VFL}, 4, v{V_D2}")
    a.e(f"v_bfe_u32 v{VFL}, v{V_LANE}, 4, 1")
    a.e(f"v_mul_u32_u24 v{VFL}, {32*1152}, v{VFL}")
    a.e(f"v_add_u32 v{V_D1}, v{V_D2}, v{VFL}")
    a.e(f"s_lshr_b32 s{S_T0}, s{S_W}, 1")
    a.e(f"s_mul_i32 s{S_T1}, s{S_T0}, 18")
    a.e(f"s_and_b32 s{S_T2}, s{S_T0}, 1")
    a.e(f"s_lshl_b32 s{S_T2}, s{S_T2}, 1")
    a.e(f"s_add_u32 s{S_T1}, s{S_T1}, s{S_T2}")
    a.e(f"s_and_b32 s{S_T2}, s{S_W}, 1")
    a.e(f"s_lshl_b32 s{S_T3}, s{S_T2}, 3")
    a.e(f"s_add_u32 s{S_T1}, s{S_T1}, s{S_T3}")
    a.e(f"s_mul_i32 s{S_T1}, s{S_T1}, 1152")
    a.e(f"s_add_u32 s{T_RB_}, s{S_T1}, s{T_CE}")
    a.e(f"s_mul_i32 s{S_T0}, s{S_T0}, 144")
    a.e(f"s_mul_i32 s{S_T2}, s{S_T2}, 72")
    a.e(f"s_add_u32 s{S_T0}, s{S_T0}, s{S_T2}")
    a.e(f"s_add_u32 s{S_T0}, s{S_T0}, 16")
    a.e(f"s_mul_i32 s{S_T0}, s{S_T0}, 1152")
    a.e(f"s_add_u32 s{T_XB}, s{S_T0}, s{T_CE}")
    a.e(f"buffer_load_dword v{VFO}, v{VF2}, {sr(R_WS,4)}, s{T_FS} offen sc1")
    tst = a.e(f"buffer_load_dword v{VFL}, v{VF1}, {sr(R_WS,4)}, s{T_FE} offen sc1")
    a.e("s_barrier")
    for k in range(8):
        a.e(f"s_add_u32 m0, s{S_WLDS}, {k*8192}")
        a.e(f"s_add_u32 s{S_T3}, s{T_RB_}, {k*72*1152}")
        a.e(f"buffer_load_dwordx4 v{V_D2}, {sr(R_B,4)}, s{S_T3} offen lds")
    a.e(f"s_add_u32 m0, s{S_WLDS}, {8*8192}")
    a.e("s_nop 0")
    a.e(f"buffer_load_dwordx4 v{V_D1}, {sr(R_B,4)}, s{T_XB} offen lds")
    a.wait_vm(tst)
    a.e("s_barrier")
    between()
    a.e(f"s_cmp_lg_u32 s{T_ACT}, 0")
    a.e(f"s_cbranch_scc1 L_{tag}_work")
    a.e("s_waitcnt vmcnt(0)")
    a.e("s_barrier")
    a.e(f"s_branch L_{tag}_fin")
    a.raw(f"L_{tag}_work:")

    def addr(A):
        k = A // 49152
        return [(V_RD + k, A - 49152 * k), (V_RD + k, A - 49152 * k + 1024)]

    def mk(acc, b, first):
        return lambda r: f"v_mfma_f32_32x32x16_bf16 {vr(acc,16)}, {vr(r,4)}, {vr(b,4)}, {'0' if first else vr(acc,16)}"

    def spin(name, vaddr, soff, want, preloaded=False, VFL=VFL):
        name = tag + name
        a.e(f"s_mov_b32 s{S_T2}, 0")
        if preloaded:
            a.e(f"s_branch L_sp_{name}_c")
        a.raw(f"L_sp_{name}:")
        a.e_untracked(f"buffer_load_dword v{VFL}, v{vaddr}, {sr(R_WS,4)}, s{soff} offen sc1")
        a.e(f"s_add_u32 s{S_T2}, s{S_T2}, 1")
        a.e(f"s_cmp_gt_u32 s{S_T2}, 0x40000")
        a.e(f"s_cbranch_scc1 L_sp_{name}_x")
        a.e("s_waitcnt vmcnt(0)")
        a.raw(f"L_sp_{name}_c:")
        a.e(f"v_cmp_gt_u32 vcc, {want}, v{VFL}")
        a.e(f"s_cbranch_vccz L_sp_{name}_x")
        a.e("s_sleep 4")
        a.e(f"s_branch L_sp_{name}")
        a.raw(f"L_sp_{name}_x:")

    def ld_part(dst, bk, xr, aoff):
        a.e(f"s_mul_i32 s{S_T0}, s{S_RB}, 9")
        a.e(f"s_add_u32 s{S_T0}, s{S_T0}, s{T_NG}")
        a.e(f"s_lshl_b32 s{S_T0}, s{S_T0}, 4")
        a.e(f"s_add_u32 s{S_T0}, s{S_T0}, s{bk}")
        a.e(f"s_lshl_b32 s{S_T0}, s{S_T0}, 10")
        a.e(f"s_add_u32 s{S_T0}, s{S_T0}, {PART}")
        for p in range(12):
            a.e(f"buffer_load_dwordx4 {vr(dst+4*p,4)}, v{V_L16}, {sr(R_WS,4)}, s{S_T0} offen sc1")
            if p < 11:
                a.e(f"s_add_u32 s{S_T0}, s{S_T0}, {PSZ}")
        a.e(f"buffer_load_dwordx2 {vr(xr,2)}, v{VG}, {sr(R_X,4)}, s{aoff} offen")
        a.e(f"buffer_load_dwordx2 {vr(xr+2,2)}, v{VG}, {sr(R_X,4)}, s{aoff} offen offset:16")

    def unp(dst, src):
        for k in range(4):
            a.e(f"v_lshlrev_b32 v{dst+2*k}, 16, v{src+k}")
            a.e(f"v_and_b32 v{dst+2*k+1}, 0xffff0000, v{src+k}")

    def rnd(F, Pk):
        for k in range(4):
            a.e(f"v_cvt_pk_bf16_f32 v{Pk+k}, v{F+2*k}, v{F+2*k+1}")
        unp(F, Pk)

    def silu_sum(src, F, T, Pk):
        for p in range(12):
            unp(F if p == 0 else T, src + 4 * p)
            if p:
                for k in range(8):
                    a.e(f"v_add_f32 v{F+k}, v{F+k}, v{T+k}")
        rnd(F, Pk)
        for k in range(8):
            a.e(f"v_mul_f32 v{T+k}, s{S_NL2E}, v{F+k}")
        for k in range(8):
            a.e(f"v_exp_f32 v{T+k}, v{T+k}")
        for k in range(8):
            a.e(f"v_add_f32 v{T+k}, 1.0, v{T+k}")
        for k in range(8):
            a.e(f"v_rcp_f32 v{T+k}, v{T+k}")
        for k in range(8):
            a.e(f"v_mul_f32 v{F+k}, v{F+k}, v{T+k}")
        rnd(F, Pk)

    def finish(F, T, Pk, sreg, xr, aoff):
        rnd(sreg, Pk)
        for k in range(8):
            a.e(f"v_mul_f32 v{F+k}, v{F+k}, v{sreg+k}")
        rnd(F, Pk)
        unp(T, xr)
        for k in range(8):
            a.e(f"v_add_f32 v{F+k}, v{F+k}, v{T+k}")
        for k in range(4):
            a.e(f"v_cvt_pk_bf16_f32 v{Pk+k}, v{F+2*k}, v{F+2*k+1}")
        om = os.environ.get("OSTM", "")
        a.e(f"buffer_store_dwordx2 {vr(Pk,2)}, v{VG}, {sr(R_A,4)}, s{aoff} offen {om}")
        a.e(f"buffer_store_dwordx2 {vr(Pk+2,2)}, v{VG}, {sr(R_A,4)}, s{aoff} offen offset:16 {om}")
    PE, PL = X32(0), X32(12)
    XE, XL_ = ACC, ACC + 4
    FE, FL_, TT, PK, PK2, SACC = ACC + 8, ACC + 16, ACC + 24, ACC + 32, ACC + 36, ACC + 48

    to = {}

    def ld_o(ks):
        a.e(f"s_lshl_b32 s{S_T0}, s{S_RB}, 2")
        a.e(f"s_add_u32 s{S_T0}, s{S_T0}, s{T_TR}")
        a.e(f"s_mul_i32 s{S_T0}, s{S_T0}, 36864")
        a.e(f"s_add_u32 s{S_T0}, s{S_T0}, {OF + ks[0]*1024}")
        for n, k in enumerate(ks):
            if n % 4 == 0 and n:
                a.e(f"s_add_u32 s{S_T0}, s{S_T0}, 4096")
            to[k] = a.e(f"buffer_load_dwordx4 {vr(X32(k),4)}, v{V_L16}, {sr(R_WS,4)}, s{S_T0} offen offset:{(n%4)*1024} sc1")

    def gemm(order):
        fr3 = [dict(stage=0, first=False, rd=addr(k * 2048), pre=[lambda k=k: a.wait_vm(to[k])], mf=[mk(SACC, X32(k), n == 0)]) for n, k in enumerate(order)]
        run_stream(a, fr3, {}, None)
    if late_c1:
        a.e(f"s_cmp_eq_u32 s{S_C}, 0")
        a.e(f"s_cbranch_scc0 L_{tag}_late")
    spin("ea", VF1, T_FE, 1, preloaded=True)
    ld_part(PE, T_BK0, XE, T_AE)
    ld_part(PL, T_BK1, XL_, T_AL)
    a.e(f"buffer_load_dword v{VFO}, v{VF2}, {sr(R_WS,4)}, s{T_FS} offen sc1")
    a.wait_vm0()
    a.e("s_barrier")
    spin("oa", VF2, T_FS, 2, preloaded=True, VFL=VFO)
    ld_o(list(range(24, 36)))
    silu_sum(PE, FE, TT, PK)
    ld_o(list(range(0, 12)))
    silu_sum(PL, FL_, TT, PK)
    ld_o(list(range(12, 24)))
    stamp(a, 't')
    gemm(list(range(24, 36)) + list(range(0, 24)))
    if late_c1:
        a.e(f"s_branch L_{tag}_join")
        a.raw(f"L_{tag}_late:")
        a.barrier_hist()
        a.wait_vm0()
        a.e("s_barrier")
        spin("ob", VF2, T_FS, 2, preloaded=True, VFL=VFO)
        ld_o(list(range(36)))
        tf = a.e(f"buffer_load_dword v{VFL}, v{VF1}, {sr(R_WS,4)}, s{T_FE} offen sc1")
        gemm(list(range(36)))
        stamp(a, 'u')
        a.wait_vm(tf)
        spin("eb", VF1, T_FE, 1, preloaded=True)
        ld_part(PE, T_BK0, XE, T_AE)
        tp = a.vm
        ld_part(PL, T_BK1, XL_, T_AL)
        a.wait_vm(tp)
        silu_sum(PE, FE, TT, PK)
        a.wait_vm0()
        silu_sum(PL, FL_, TT, PK)
        a.raw(f"L_{tag}_join:")
        a.e("s_nop 7")
        a.e("s_nop 7")
    finish(FE, TT, PK, SACC, XE, T_AE)
    finish(FL_, TT, PK2, SACC + 8, XL_, T_AL)
    a.raw(f"L_{tag}_fin:")


def mlp(a):
    KPS = int(os.environ.get("KPS", "3"))
    NS = 18 // KPS
    SB = KPS * 8192
    FPS = KPS * 4
    USEBAR = os.environ.get("SYNC", "bar") == "bar"
    SL = int(os.environ.get("SLACK", str(FPS - 4)))
    t0, t1, t2 = V_T + 3, V_T + 4, ACC
    a.e(f"s_cmp_lt_u32 s{S_W}, 4")
    a.e(f"s_cselect_b32 s{R_W1}, s{S_WG}, s{S_WU}")
    a.e(f"s_cselect_b32 s{R_W1+1}, s{S_WG+1}, s{S_WU+1}")
    a.e(f"s_mov_b32 s{R_W1+2}, 5308416")
    a.e(f"s_mov_b32 s{R_W1+3}, 0x20000")
    srd(a, R_W2, S_WD, 5308416)
    stamp(a)
    xtk = x_stage_issue(a)
    a.e(f"v_bfe_u32 v{t0}, v{V_LANE}, 2, 3")
    a.e(f"v_and_b32 v{t1}, 3, v{V_LANE}")
    a.e(f"v_lshrrev_b32 v{t2}, 5, v{V_LANE}")
    a.e(f"v_lshlrev_b32 v{t2}, 6, v{t2}")
    a.e(f"v_lshl_add_u32 v{t1}, v{t1}, 4, v{t2}")
    a.e(f"v_mul_u32_u24 v{V_D1}, 9216, v{t0}")
    a.e(f"v_add_u32 v{V_D1}, v{V_D1}, v{t1}")
    a.e(f"v_mul_u32_u24 v{V_D2}, 1152, v{t0}")
    a.e(f"v_add_u32 v{V_D2}, v{V_D2}, v{t1}")
    a.e(f"s_lshl_b32 s{S_WLDS}, s{S_W}, 10")
    a.e(f"s_mul_i32 s{S_T0}, s{S_SPLIT}, 384")
    a.e(f"s_mul_i32 s{S_W1B}, s{S_R}, {8*9216}")
    a.e(f"s_lshl_b32 s{S_T1}, s{S_T0}, 1")
    a.e(f"s_add_u32 s{S_W1B}, s{S_W1B}, s{S_T1}")
    a.e(f"s_lshl_b32 s{S_T1}, s{S_W}, 3")
    a.e(f"s_add_u32 s{S_T1}, s{S_T1}, s{S_T0}")
    a.e(f"s_mul_i32 s{S_W2B}, s{S_T1}, 1152")
    V_PF, V_PF2 = 8, 9
    S_PFO, S_PFS = S_H1, 98
    R_PF = R_B
    p0, p1 = FR, FR + 1
    NL = 36 if MAPC else 18
    a.e(f"s_and_b32 s{S_T0}, s{S_RB}, {3 if MAPC else 7}")
    a.e(f"s_lshl_b32 s{S_T1}, s{S_T0}, 2")
    a.e(f"s_add_u32 s{S_T1}, s{S_T1}, s{S_R}")
    a.e(f"s_mul_i32 s{S_T1}, s{S_T1}, {NL}")
    a.e(f"v_add_u32 v{p0}, s{S_T1}, v{V_LANE}")
    a.e(f"v_mul_u32_u24 v{p0}, 9216, v{p0}")
    a.e(f"v_cmp_gt_u32 vcc, {NL}, v{V_LANE}")
    a.e(f"v_cndmask_b32 v{V_PF}, -1, v{p0}, vcc")
    a.e(f"v_mul_u32_u24 v{p0}, 86, v{V_LANE}")
    a.e(f"v_lshrrev_b32 v{p0}, 8, v{p0}")
    a.e(f"v_mul_u32_u24 v{p1}, 3, v{p0}")
    a.e(f"v_sub_u32 v{p1}, v{V_LANE}, v{p1}")
    a.e(f"s_lshl_b32 s{S_T1}, s{S_T0}, 3")
    a.e(f"s_add_u32 s{S_T1}, s{S_T1}, s{S_W}")
    a.e(f"s_mul_i32 s{S_T1}, s{S_T1}, {NL // 3}")
    a.e(f"v_add_u32 v{p0}, s{S_T1}, v{p0}")
    a.e(f"v_mul_u32_u24 v{p0}, 1152, v{p0}")
    a.e(f"v_lshl_add_u32 v{p0}, v{p1}, 7, v{p0}")
    a.e(f"v_cndmask_b32 v{V_PF2}, -1, v{p0}, vcc")
    for k in range(4):
        a.e(f"s_mov_b32 s{R_PF+k}, s{R_W1+k}")
    a.e(f"s_mul_i32 s{S_PFO}, s{S_SPLIT}, 768")
    a.e(f"s_mov_b32 s{S_PFS}, 128")

    def pf():
        if not FLAG("NOPF"):
            a.e(f"buffer_load_dword v0, v{V_PF}, {sr(R_PF,4)}, s{S_PFO} offen")
        if FLAG("PF64"):
            a.e(f"buffer_load_dword v0, v{V_PF}, {sr(R_PF,4)}, s{S_PFO} offen offset:64")
        a.e(f"s_add_u32 s{S_PFO}, s{S_PFO}, s{S_PFS}")

    dtk = {}

    def dma_raw(g, i, voff, srd_, soff, mid=None):
        if FLAG("NODMA") and a.always:
            dtk[g % NS] = a.vm
            return
        a.e(f"s_add_u32 m0, s{S_WLDS}, {(g % NS) * SB + i*8192}")
        if mid:
            a.e(mid)
        dtk[g % NS] = a.e(f"buffer_load_dwordx4 v{voff}, {sr(srd_,4)}, s{soff} offen lds")

    def dma_p0(d):
        dma_raw(d // KPS, d % KPS, V_D1, R_W1, S_T3, f"s_add_u32 s{S_T3}, s{S_W1B}, {d*294912}")

    def after_wait():
        dma_p0(0)
        dma_p0(1)
        pf()
    if FLAG("EARLYW"):
        after_wait()
    rd_bases32(a)
    a.e(f"s_lshl_b32 s{S_T0}, s{S_SPLIT}, 4")
    a.e(f"s_add_u32 s{S_T0}, s{S_T0}, s{S_RB}")
    a.e(f"s_mul_i32 s{S_T0}, s{S_T0}, 98304")
    a.e(f"s_lshl_b32 s{S_T2}, s{S_R}, 10")
    a.e(f"s_add_u32 s{S_H0}, s{S_T0}, s{S_T2}")
    a.e(f"s_mul_i32 s{S_T0}, s{S_SPLIT}, {PSZ}")
    a.e(f"s_mul_i32 s{S_T3}, s{S_RB}, {9*16384}")
    a.e(f"s_add_u32 s{S_T0}, s{S_T0}, s{S_T3}")
    a.e(f"s_lshl_b32 s{S_T3}, s{S_C}, 13")
    a.e(f"s_add_u32 s{S_T0}, s{S_T0}, s{S_T3}")
    a.e(f"s_add_u32 s{S_T0}, s{S_T0}, {PART}")
    a.e(f"s_lshl_b32 s{S_T2}, s{S_R}, 11")
    a.e(f"s_add_u32 s{S_P0}, s{S_T0}, s{S_T2}")
    a.e(f"s_mov_b32 s{S_NL2E}, 0x{NLOG2E:x}")
    itk = []

    def after_x():
        a.e(f"s_lshl_b32 s{S_T0}, s{S_RB}, 2")
        a.e(f"v_mov_b32 v{V_T+2}, s{S_T0}")
        itk.append(init_issue(a, V_T + 2, V_T + 3))
        pf()
    layernorm(a, xtk, m32=True, after_x=after_x, after_wait=None if FLAG('EARLYW') else after_wait)
    stamp(a, 'f')
    for d in range(2, (NS - 2) * KPS):
        dma_p0(d)
    init_check(a, "m", V_T + 2, V_T + 3, itk[0])
    V_DN = V_T + 4
    VEX = V_T
    S_IT, S_CUR, S_PTR, S_STEP, S_ADJ, S_HST = 71, 72, 73, 74, 75, S_XREG
    R_N = R_A
    a.e(f"s_mov_b32 s{S_IT}, 0")
    a.e(f"s_mov_b32 s{S_CUR}, s{S_W1B}")
    a.e(f"s_mov_b32 s{S_HST}, 0x70000000")
    sy = Sync(a, "m")
    if not USEBAR:
        sy.setup()

    def addr(A):
        k = A // 49152
        return [(V_RD + k, A - 49152 * k), (V_RD + k, A - 49152 * k + 1024)]

    def acc1(st, mat):
        return ACC + st * 32 + mat * 16

    def mk(acc, b, first):
        return lambda r: f"v_mfma_f32_32x32x16_bf16 {vr(acc,16)}, {vr(r,4)}, {vr(b,4)}, {'0' if first else vr(acc,16)}"

    def E(text):
        return lambda: a.e(text)

    def copy_items(mat):
        A_, E_ = acc1(0, mat), acc1(1, mat)
        return [E(f"v_mul_f32 v{E_+i}, s{S_NL2E}, v{A_+i}") if mat == 0 else E(f"v_mov_b32 v{E_+i}, v{A_+i}") for i in range(16)]

    hst = {}

    def epi1(last):
        items = []
        G0, U0 = acc1(1, 0), acc1(1, 1)
        for u in range(2):
            for h in range(2):
                G, U = G0 + 8 * u + 4 * h, U0 + 8 * u + 4 * h
                items += [E(f"v_exp_f32 v{G+i}, v{G+i}") for i in range(4)]
                items += [E(f"v_add_f32 v{G+i}, 1.0, v{G+i}") for i in range(4)]
                items += [E(f"v_rcp_f32 v{G+i}, v{G+i}") for i in range(4)]
                items += [E(f"v_mul_f32 v{U+i}, v{U+i}, v{G+i}") for i in range(4)]
            D, U = G0 + 8 * u, U0 + 8 * u
            items += [E(f"v_cvt_pk_bf16_f32 v{D+k}, v{U+2*k}, v{U+2*k+1}") for k in range(4)]
            if not last:
                def st(u=u, D=D):
                    a.e(f"s_add_u32 s{S_T0}, s{S_HST}, {u*4096}")
                    hst[0] = a.e(f"buffer_store_dwordx4 {vr(D,4)}, v{V_L16}, {sr(R_WS,4)}, s{S_T0} offen {os.environ.get('HSTM','')}")
                items.append(st)
            else:
                def st(u=u, D=D):
                    hst[5] = a.e(f"ds_write_b128 v{VEX+1}, {vr(D,4)} offset:{u*4096}")
                items.append(st)
        return items

    ool = []
    frags = []
    for s16 in range(36):
        ks = s16 // 2
        g = ks // KPS
        for mat in range(2):
            A = g * SB + (ks % KPS) * 8192 + mat * 4096 + (s16 & 1) * 2048
            frags.append(dict(stage=g, first=(len(frags) % FPS == 0), rd=addr(A),
                              pre=copy_items(mat) if (s16 == 0 and not FLAG("NOEPI")) else [],
                              mf=[mk(acc1(0, mat), X32(s16), s16 == 0)]))
    DSP = FPS // KPS - 1
    GL = NS - 1

    def place_dma(fl, fn, setf):
        for g in range(NS):
            n0 = max(g * FPS - PD + 2, 0)
            if g == 2 and setf:
                fl.setdefault(n0 - 1, []).append(setf)
            for i in range(KPS):
                fl.setdefault(n0 + DSP * i, []).append(fn(g, i))

    def pf1():
        a.e(f"s_cmp_eq_u32 s{S_IT}, 4")
        a.e(f"s_cbranch_scc1 L_p1_pf")
        a.raw("L_p1_pfb:")
        pf()
    ool.append("\n".join(["L_p1_pf:",
        f"    s_mul_i32 s{S_PFO}, s{S_SPLIT}, {384*1152}", f"    s_mov_b32 s{S_PFS}, 384",
        f"    s_mov_b32 s{R_PF}, s{R_W2}", f"    s_mov_b32 s{R_PF+1}, s{R_W2+1}", f"    v_mov_b32 v{V_PF}, v{V_PF2}", "    s_nop 1", "    s_branch L_p1_pfb"]))
    hld = {}

    def build_fill(last):
        fl = {}
        spread(fl, epi1(False), 3, int(os.environ.get("EPIEND", "36")))

        def dma1(g, i):
            def f():
                if g < 2:
                    dma_raw(g + NS - 2, i, V_D1, R_W1, S_T3, f"s_add_u32 s{S_T3}, s{S_CUR}, {((g+NS-2)*KPS+i)*294912}")
                else:
                    d = (g - 2) * KPS + i
                    if not last:
                        dma_raw(g - 2, i, V_D1, R_W1, S_T3, f"s_add_u32 s{S_T3}, s{S_CUR}, {128 + d*294912}")
                    else:
                        dma_raw(g - 2, i, V_D2, R_W2, S_T3, f"s_add_u32 s{S_T3}, s{S_W2B}, {(d%6)*73728 + (d//6)*128}")
            return f
        place_dma(fl, dma1, None)
        fl.setdefault(5, []).append(pf if last else pf1)
        if last:
            def hload(kap):
                def f():
                    a.e(f"s_add_u32 s{S_T0}, s{S_H0}, {HS + kap*4096}")
                    if FLAG("NOHLD"):
                        hld[0] = a.vm
                        return
                    hld[0] = a.e(f"buffer_load_dwordx4 {vr(X32(kap),4)}, v{V_L16}, {sr(R_WS,4)}, s{S_T0} offen")
                return f
            NHE = int(os.environ.get("NHE", "13"))
            for kap in range(NHE):
                fl.setdefault((66 * kap) // NHE + 4, []).append(hload(kap))
            hld['late'] = [hload(kap) for kap in range(NHE, 20)]
        return fl
    fill = build_fill(False)

    def add_sync(fl, extra=None):
        if USEBAR:
            return
        for g in range(NS):
            def arr(g=g):
                tk = dtk[g]
                if extra and g in extra:
                    tk = max(tk, extra[g]())
                sy.arrive(tk)
            fl.setdefault((FPS * g - PD - SL) % 72, []).insert(0, arr)
            fl.setdefault((FPS * g - PD - 2) % 72, []).insert(0, sy.read)
    add_sync(fill, {GL: lambda: hst[0]})
    first1 = [True]

    def on_stage1(g):
        g %= 1000
        if first1[0]:
            first1[0] = False
            a.wait_vm(dtk[0])
            a.wait_lg0()
            a.e("s_barrier")
            stamp(a, 'i')
            if FLAG("ITST"):
                a.e("s_memtime s[94:95]")
                a.wait_lg0()
                a.e(f"v_writelane_b32 v255, s94, 0")
            return
        if USEBAR:
            a.wait_vm(max(dtk[g], hst[0]) if g == GL else dtk[g])
            if not FLAG("NOBAR"):
                a.e("s_barrier")
        else:
            sy.check(f"a{g}")

    a.always = True
    tk1 = [run_stream(a, frags, fill, on_stage1, wrap=True, prime=True)]

    def body1():
        tk1[0] = run_stream(a, frags, fill, on_stage1, wrap=True, prime=False, tick=dict(tk1[0]))

    def dec1(label):
        if FLAG("ITST"):
            a.e("s_memtime s[94:95]")
            a.wait_lg0()
            a.e(f"s_add_u32 m0, s{S_IT}, 1")
            a.e("s_nop 1")
            a.e(f"v_writelane_b32 v255, s94, m0")
        a.e(f"s_lshl_b32 s{S_T0}, s{S_C}, 13")
        a.e(f"s_lshl_b32 s{S_HST}, s{S_IT}, 14")
        a.e(f"s_add_u32 s{S_HST}, s{S_HST}, s{S_T0}")
        a.e(f"s_add_u32 s{S_HST}, s{S_HST}, s{S_H0}")
        a.e(f"s_add_u32 s{S_CUR}, s{S_CUR}, 128")
        a.e(f"s_add_u32 s{S_IT}, s{S_IT}, 1")
        a.e(f"s_cmp_lt_u32 s{S_IT}, 5")
        a.e(f"s_cbranch_scc1 {label}")
    loop(a, "L_p1", body1, dec1)
    run_stream(a, frags, build_fill(True), on_stage1, wrap=False, prime=False, tick=dict(tk1[0]))
    if FLAG("ITST"):
        a.e("s_memtime s[94:95]")
        a.wait_lg0()
        a.e(f"v_writelane_b32 v255, s94, 6")
    a.always = False
    for f_ in hld['late']:
        f_()
    ND = (NS - 2) * KPS
    a.e(f"s_add_u32 s{S_PTR}, s{S_W2B}, {(ND%6)*73728 + (ND//6)*128}")
    a.e(f"s_lshl_b32 s{S_T0}, s{S_R}, 10")
    a.e(f"s_add_u32 s{S_T0}, s{S_T0}, {(NS-1)*SB}")
    a.e(f"v_add_u32 v{VEX}, s{S_T0}, v{V_L16}")
    a.e(f"s_lshl_b32 s{S_T0}, s{S_C}, 13")
    a.e(f"v_add_u32 v{VEX+1}, s{S_T0}, v{VEX}")
    for it in copy_items(0) + copy_items(1):
        it()
    its = epi1(True)
    a.wait_lg0()
    for it in its[:20]:
        it()
    a.e("s_barrier")
    for it in its[20:]:
        it()
    a.wait_vm(max(dtk[0], hld[0]))
    a.wait_lg0()
    a.e("s_barrier")
    stamp(a, 'j')
    if FLAG("ITST"):
        a.e("s_memtime s[94:95]")
        a.wait_lg0()
        a.e(f"v_writelane_b32 v255, s94, 7")
    pf()
    for kap in range(20, 24):
        a.e(f"ds_read_b128 {vr(X32(kap),4)}, v{VEX} offset:{(kap-20)*4096}")
    def acc2(j):
        return ACC + j * 16
    S_PST = S_HST
    a.e(f"s_mov_b32 s{S_IT}, 0")
    a.e(f"s_mov_b32 s{S_PST}, 0x70000000")

    def epi2(j, off_sgpr, off_imm):
        items = []
        for u in range(2):
            P = acc2(j) + 8 * u
            items += [E(f"v_cvt_pk_bf16_f32 v{P+k}, v{P+2*k}, v{P+2*k+1}") for k in range(4)]

            def st(u=u, P=P):
                if u == 0:
                    a.e(f"s_add_u32 s{S_P1}, s{S_P0}, {('s%d' % off_sgpr) if off_sgpr is not None else off_imm}")
                pst[j] = a.e(f"buffer_store_dwordx4 {vr(P,4)}, v{V_L16}, {sr(R_WS,4)}, s{S_P1} offen offset:{u*1024} sc1")
            items.append(st)
        return items
    pst = {}
    S_TRG, S_SITE, S_RNG, S_RBLK, S_NG0 = S_CUR, S_STEP, S_ADJ, S_W1B, S_PFS
    RB_, F_, T_, VG = X32(24), ACC + 48, ACC + 56, V_T + 2
    a.e(f"s_lshr_b32 s{S_RNG}, s{S_SPLIT}, 1")
    a.e(f"s_add_u32 s{S_TRG}, s{S_RNG}, {3 if not FLAG('NORED') else 100}")
    a.e(f"s_and_b32 s{S_RBLK}, s{S_SPLIT}, 1")
    a.e(f"s_lshl_b32 s{S_RBLK}, s{S_RBLK}, 3")
    a.e(f"s_add_u32 s{S_RBLK}, s{S_RBLK}, s{S_W}")
    a.e(f"s_mov_b32 s{S_NG0}, 0")
    S_TR2 = S_W2B
    a.e(f"s_mov_b32 s{S_TR2}, 100")
    a.e(f"v_and_b32 v{VG}, 31, v{V_LANE}")
    a.e(f"v_mul_u32_u24 v{VG}, 1152, v{VG}")
    a.e(f"v_lshrrev_b32 v{VG+1}, 5, v{V_LANE}")
    a.e(f"v_lshl_add_u32 v{VG}, v{VG+1}, 3, v{VG}")

    def sub(name, body, nsite):
        b = Asm()
        b.raw(f"L_{name}:")
        body(b)
        for k in range(nsite - 1):
            b.e(f"s_cmp_eq_u32 s{S_SITE}, {k}")
            b.e(f"s_cbranch_scc1 L_{name}_b{k}")
        b.e(f"s_branch L_{name}_b{nsite-1}")
        for k in range(nsite - 1):
            b.raw(f"L_{name}_t{k}:")
            b.e(f"s_mov_b32 s{S_SITE}, {k}")
            b.e(f"s_branch L_{name}")
        ool.append(b.text())

    def flag_addr(b):
        b.e(f"s_lshl_b32 s{S_T0}, s{S_RB}, 11")
        b.e(f"s_lshl_b32 s{S_T1}, s{S_RNG}, 6")
        b.e(f"s_add_u32 s{S_T0}, s{S_T0}, s{S_T1}")
        b.e(f"s_add_u32 s{S_T0}, s{S_T0}, {FLG + 128}")

    def r0(b):
        flag_addr(b)
        b.e(f"v_min_u32 v{T_}, 11, v{V_LANE}")
        b.e(f"v_lshlrev_b32 v{T_}, 2, v{T_}")
        b.e(f"buffer_load_dword v{T_+1}, v{T_}, {sr(R_WS,4)}, s{S_T0} offen sc1")

    def r1(b):
        b.e("s_waitcnt vmcnt(R1WAIT)")
        b.e(f"v_cmp_eq_u32 vcc, 0, v{T_+1}")
        b.e(f"s_add_u32 s{S_T3}, s{S_T0}, 1")
        b.e("s_cbranch_vccz L_r1_px")
        b.e(f"s_cmp_lt_u32 s{S_SITE}, 3")
        b.e("s_cbranch_scc1 L_r1_ret")
        flag_addr(b)
        b.e(f"s_mov_b32 s{S_T2}, 0")
        b.raw("L_r1_poll:")
        b.e(f"buffer_load_dword v{T_+1}, v{T_}, {sr(R_WS,4)}, s{S_T0} offen sc1")
        b.e(f"s_add_u32 s{S_T2}, s{S_T2}, 1")
        b.e(f"s_cmp_gt_u32 s{S_T2}, 0x40000")
        b.e("s_cbranch_scc1 L_r1_px")
        b.e("s_waitcnt vmcnt(0)")
        b.e(f"v_cmp_eq_u32 vcc, 0, v{T_+1}")
        b.e("s_cbranch_vccz L_r1_px")
        b.e("s_sleep 2")
        b.e("s_branch L_r1_poll")
        b.raw("L_r1_px:")
        b.e(f"s_mov_b32 s{S_TRG}, 100")
        b.e(f"s_mov_b32 s{S_TR2}, s{S_T3}")
        b.e(f"s_mul_i32 s{S_T0}, s{S_RB}, 9")
        b.e(f"s_add_u32 s{S_T0}, s{S_T0}, s{S_RNG}")
        b.e(f"s_lshl_b32 s{S_T0}, s{S_T0}, 4")
        b.e(f"s_add_u32 s{S_T0}, s{S_T0}, s{S_RBLK}")
        b.e(f"s_lshl_b32 s{S_T0}, s{S_T0}, 10")
        b.e(f"s_add_u32 s{S_T0}, s{S_T0}, {PART}")
        for p in range(12):
            b.e(f"buffer_load_dwordx4 {vr(RB_+4*p,4)}, v{V_L16}, {sr(R_WS,4)}, s{S_T0} offen sc1")
            if p < 11:
                b.e(f"s_add_u32 s{S_T0}, s{S_T0}, {PSZ}")
        b.raw("L_r1_ret:")

    def r2(b):
        b.e(f"s_mov_b32 s{S_TR2}, 100")
        b.e("s_waitcnt vmcnt(R2WAIT)")
        for p in range(12):
            for k in range(4):
                r = RB_ + 4 * p + k
                d = F_ if p == 0 else T_
                b.e(f"v_lshlrev_b32 v{d+2*k}, 16, v{r}")
                b.e(f"v_and_b32 v{d+2*k+1}, 0xffff0000, v{r}")
            if p:
                for k in range(8):
                    b.e(f"v_add_f32 v{F_+k}, v{F_+k}, v{T_+k}")
        for k in range(4):
            b.e(f"v_cvt_pk_bf16_f32 v{T_+k}, v{F_+2*k}, v{F_+2*k+1}")
        for k in range(4):
            b.e(f"v_lshlrev_b32 v{F_+2*k}, 16, v{T_+k}")
            b.e(f"v_and_b32 v{F_+2*k+1}, 0xffff0000, v{T_+k}")
        for k in range(8):
            b.e(f"v_mul_f32 v{T_+k}, s{S_NL2E}, v{F_+k}")
        for k in range(8):
            b.e(f"v_exp_f32 v{T_+k}, v{T_+k}")
        for k in range(8):
            b.e(f"v_add_f32 v{T_+k}, 1.0, v{T_+k}")
        for k in range(8):
            b.e(f"v_rcp_f32 v{T_+k}, v{T_+k}")
        for k in range(8):
            b.e(f"v_mul_f32 v{F_+k}, v{F_+k}, v{T_+k}")
        for k in range(4):
            b.e(f"v_cvt_pk_bf16_f32 v{T_+k}, v{F_+2*k}, v{F_+2*k+1}")
        b.e(f"s_bfe_u32 s{S_T0}, s{S_RBLK}, 0x20001")
        b.e(f"s_lshl_b32 s{S_T1}, s{S_RB}, 2")
        b.e(f"s_add_u32 s{S_T0}, s{S_T0}, s{S_T1}")
        b.e(f"s_mul_i32 s{S_T0}, s{S_T0}, {32*1152}")
        b.e(f"s_lshl_b32 s{S_T1}, s{S_RNG}, 7")
        b.e(f"s_add_u32 s{S_T0}, s{S_T0}, s{S_T1}")
        b.e(f"s_lshr_b32 s{S_T1}, s{S_RBLK}, 3")
        b.e(f"s_lshl_b32 s{S_T1}, s{S_T1}, 6")
        b.e(f"s_add_u32 s{S_T0}, s{S_T0}, s{S_T1}")
        b.e(f"s_and_b32 s{S_T1}, s{S_RBLK}, 1")
        b.e(f"s_lshl_b32 s{S_T1}, s{S_T1}, 5")
        b.e(f"s_add_u32 s{S_T0}, s{S_T0}, s{S_T1}")
        b.e(f"s_add_u32 s{S_T0}, s{S_T0}, {PART + 12*PSZ}")
        b.e(f"buffer_store_dwordx2 {vr(T_,2)}, v{VG}, {sr(R_WS,4)}, s{S_T0} offen sc1")
        b.e(f"buffer_store_dwordx2 {vr(T_+2,2)}, v{VG}, {sr(R_WS,4)}, s{S_T0} offen offset:16 sc1")
        b.e("s_nop 1")
    vmat = {}

    def site(name, j, d=0):
        def f():
            vmat.setdefault((name, j), []).append(a.vm)
            a.e(f"s_add_u32 s{S_T0}, s{S_NG0}, {j}")
            a.e(f"s_cmp_eq_u32 s{S_T0}, s{S_TR2}" if d else f"s_cmp_ge_u32 s{S_T0}, s{S_TRG}")
            a.e(f"s_cbranch_scc1 L_{name}_t{j}")
            a.raw(f"L_{name}_b{j}:")
        return f

    def signal_code(off_lines, skip0=None, name=""):
        t = [f"L_sg{name}:"]
        if skip0:
            t += [f"    s_cmp_eq_u32 s{S_IT}, 0", f"    s_cbranch_scc1 L_sg{name}_b"]
        t += ["    " + x for x in off_lines]
        t += [f"    s_lshl_b32 s{S_T1}, s{S_RB}, 11", f"    s_add_u32 s{S_T0}, s{S_T0}, s{S_T1}", f"    s_lshl_b32 s{S_T1}, s{S_SPLIT}, 2",
              f"    s_add_u32 s{S_T0}, s{S_T0}, s{S_T1}",
              f"    v_mov_b32 v{VG+1}, 1", f"    v_mov_b32 v0, 0", "    s_mov_b64 exec, 1",
              f"    buffer_store_dword v{VG+1}, v0, {sr(R_WS,4)}, s{S_T0} offen sc1", "    s_mov_b64 exec, -1", f"    s_branch L_sg{name}_b"]
        ool.append("\n".join(t))

    def signal_site(name):
        a.e(f"s_cmp_eq_u32 s{S_W}, 0")
        a.e(f"s_cbranch_scc1 L_sg{name}")
        a.raw(f"L_sg{name}_b:")
    for j in range(3):
        signal_code([f"s_lshl_b32 s{S_T0}, s{S_NG0}, 6", f"s_add_u32 s{S_T0}, s{S_T0}, {FLG + 128 + 64*(j-2)}"], skip0=(j < 2), name=f"p{j}")
    frags2 = []
    for j in range(3):
        for kap in range(24):
            A = j * 49152 + kap * 2048
            frags2.append(dict(stage=A // SB, first=(len(frags2) % FPS == 0), rd=addr(A),
                               mf=[mk(acc2(j), X32(kap), kap == 0)]))
    fill2 = {}
    spread(fill2, epi2(2, S_PST, 0), 2, 8)
    spread(fill2, epi2(0, None, 0), 24 + 2, 24 + 8)
    spread(fill2, epi2(1, None, 16384), 48 + 2, 48 + 8)
    for j in range(3):
        pass

    def dma2(g, i):
        def f():
            t = (g + NS - 2) % NS
            d = t * KPS + i
            dma_raw(t, i, V_D2, R_W2, S_T3, f"s_mov_b32 s{S_T3}, s{S_PTR}")
            a.e(f"s_add_u32 s{S_PTR}, s{S_PTR}, {73728 if d % 6 != 5 else (128 - 5*73728) & 0xffffffff}")
        return f

    def setend():
        a.e(f"s_cmp_eq_u32 s{S_IT}, 2")
        a.e(f"s_cselect_b32 s{S_PTR}, 0x70000000, s{S_PTR}")
    place_dma(fill2, dma2, setend)
    add_sync(fill2)
    first2 = [True]

    def on_stage2(g):
        g %= 1000
        if first2[0]:
            first2[0] = False
            return
        SPG = NS // 3
        if g % SPG == SPG - 1:
            j = g // SPG
            a.wait_vm(max(dtk[g], pst.get((j - 2) % 3, 0) if not FLAG("NOPSTW") else 0))
            a.e("s_barrier")
            signal_site(f"p{j}")
        else:
            a.wait_vm(dtk[g])
            a.e("s_barrier")
    a.always = True
    tk2 = [run_stream(a, frags2, fill2, on_stage2, wrap=True, prime=True)]

    def body2():
        tk2[0] = run_stream(a, frags2, fill2, on_stage2, wrap=True, prime=False, tick=dict(tk2[0]))

    def dec2(label):
        if FLAG("ITST"):
            a.e("s_memtime s[94:95]")
            a.wait_lg0()
            a.e(f"s_add_u32 m0, s{S_IT}, 8")
            a.e("s_nop 1")
            a.e(f"v_writelane_b32 v255, s94, m0")
        a.e(f"s_add_u32 s{S_P0}, s{S_P0}, {3*16384}")
        a.e(f"s_mov_b32 s{S_PST}, {(-16384) & 0xffffffff}")
        a.e(f"s_add_u32 s{S_NG0}, s{S_NG0}, 3")
        a.e(f"s_add_u32 s{S_IT}, s{S_IT}, 1")
        a.e(f"s_cmp_lt_u32 s{S_IT}, 3")
        a.e(f"s_cbranch_scc1 {label}")
    loop(a, "L_p2", body2, dec2)
    a.always = False
    for it in epi2(2, S_PST, 0):
        it()
    if FLAG("ITST"):
        a.e(f"s_lshl_b32 s{S_T0}, s2, 11")
        a.e(f"s_lshl_b32 s{S_T1}, s{S_W}, 8")
        a.e(f"s_add_u32 s{S_T0}, s{S_T0}, s{S_T1}")
        a.e(f"s_add_u32 s{S_T0}, s{S_T0}, 0x3D00000")
        a.e(f"v_lshlrev_b32 v254, 2, v{V_LANE}")
        a.e(f"buffer_store_dword v255, v254, {sr(R_WS,4)}, s{S_T0} offen")
    stamp(a, 'v')
    def assign():
        a.e(f"s_lshr_b32 s{S_T0}, s{S_SPLIT}, 1")
        a.e(f"s_add_u32 s{T_CL}, s{S_T0}, 12")
        a.e(f"s_lshl_b32 s{T_CL}, s{T_CL}, 6")
        a.e(f"s_sub_u32 s{T_CE}, s{T_CL}, 384")
        a.e(f"s_and_b32 s{S_T0}, s{S_SPLIT}, 1")
        a.e(f"s_lshl_b32 s{S_T0}, s{S_T0}, 1")
        a.e(f"s_and_b32 s{S_T1}, s{S_W}, 1")
        a.e(f"s_add_u32 s{T_TR}, s{S_T0}, s{S_T1}")
        a.e(f"s_cmp_lt_u32 s{S_R}, 2")
        a.e(f"s_cselect_b32 s{T_ACT}, 1, 0")

    def between():
        stamp(a, 'g')
        signal_code([f"s_mov_b32 s{S_T0}, {FLG + 128 + 64*7}"], name="p3")
        signal_site("p3")
        signal_code([f"s_mov_b32 s{S_T0}, {FLG + 128 + 64*8}"], name="p4")
        signal_site("p4")
    tail(a, "m", assign, between, late_c1=True)
    stamp(a, 'h')
    stamp_out(a)
    a.e("s_endpgm")
    sy.emit_slow()
    for t in ool:
        a.raw(t)


def k1(a):
    a.raw(".globl recurrent_scan__sliding_block__glu_gated_glu__prompt_kernel\n.p2align 8\n.type recurrent_scan__sliding_block__glu_gated_glu__prompt_kernel,@function\nrecurrent_scan__sliding_block__glu_gated_glu__prompt_kernel:")
    a.e("s_cmp_ge_u32 s2, 256")
    a.e("s_cbranch_scc1 L_k1_end")
    a.e("s_load_dwordx16 s[4:19], s[0:1], 0")
    a.e("s_load_dwordx4 s[20:23], s[0:1], 64")
    a.e(f"v_and_b32 v{V_LANE}, 63, v0")
    a.e(f"v_lshlrev_b32 v{V_L16}, 4, v{V_LANE}")
    a.e(f"v_lshrrev_b32 v{V_T}, 6, v0")
    a.e(f"v_readfirstlane_b32 s{S_W}, v{V_T}")
    a.e(f"s_and_b32 s{S_R}, s{S_W}, 3")
    a.e(f"s_lshr_b32 s{S_C}, s{S_W}, 2")
    a.e(f"s_and_b32 s{S_T0}, s2, 7")
    a.e(f"s_lshr_b32 s{S_T1}, s2, 3")
    if MAPC:
        a.e(f"s_and_b32 s{S_T2}, s{S_T0}, 3")
        a.e(f"s_lshl_b32 s{S_T2}, s{S_T2}, 2")
        a.e(f"s_and_b32 s{S_T3}, s{S_T1}, 3")
        a.e(f"s_add_u32 s{S_RB}, s{S_T2}, s{S_T3}")
        a.e(f"s_lshr_b32 s{S_T0}, s{S_T0}, 2")
        a.e(f"s_lshr_b32 s{S_T1}, s{S_T1}, 2")
    else:
        a.e(f"s_and_b32 s{S_T2}, s{S_T0}, 1")
        a.e(f"s_lshl_b32 s{S_T2}, s{S_T2}, 3")
        a.e(f"s_and_b32 s{S_T3}, s{S_T1}, 7")
        a.e(f"s_add_u32 s{S_RB}, s{S_T2}, s{S_T3}")
        a.e(f"s_lshr_b32 s{S_T0}, s{S_T0}, 1")
        a.e(f"s_lshr_b32 s{S_T1}, s{S_T1}, 3")
    a.e("s_waitcnt lgkmcnt(0)")
    srd(a, R_X, S_X, 2359296)
    srd(a, R_WS, S_WS, WS_SZ)
    srd(a, R_DBG, S_DBG, 256)
    if int(os.environ.get("CODEPF", "0")):
        a.e(f"s_getpc_b64 s[{R_A}:{R_A+1}]")
        a.raw("L_pc0:")
        a.e(f"s_mov_b32 s{R_A+2}, L_k1_end-L_pc0")
        a.e(f"s_mov_b32 s{R_A+3}, 0x20000")
        a.e(f"v_lshlrev_b32 v{V_T}, 6, v0")
        for k in range((int(os.environ.get('CODEPF'))+31)//32):
            a.e(f"s_mov_b32 s{S_T2}, {k*32768}")
            a.e(f"buffer_load_dword v0, v{V_T}, {sr(R_A,4)}, s{S_T2} offen")
    a.e(f"s_cmp_ge_u32 s{S_T1}, {6 if MAPC else 3}")
    a.e("s_cbranch_scc1 L_att")
    a.e(f"s_mul_i32 s{S_SPLIT}, s{S_T0}, {6 if MAPC else 3}")
    a.e(f"s_add_u32 s{S_SPLIT}, s{S_SPLIT}, s{S_T1}")
    if FLAG("MAPA"):
        a.e(f"s_and_b32 s{S_T0}, s2, 7")
        a.e(f"s_mul_i32 s{S_T0}, s{S_T0}, 24")
        a.e(f"s_lshr_b32 s{S_T1}, s2, 3")
        a.e(f"s_add_u32 s{S_T0}, s{S_T0}, s{S_T1}")
        a.e(f"s_lshr_b32 s{S_SPLIT}, s{S_T0}, 4")
        a.e(f"s_and_b32 s{S_RB}, s{S_T0}, 15")
    mlp(a)
    a.label("L_att")
    if MAPC:
        a.e(f"s_lshl_b32 s{S_HG}, s{S_T0}, 1")
        a.e(f"s_add_u32 s{S_HG}, s{S_HG}, s{S_T1}")
        a.e(f"s_sub_u32 s{S_HG}, s{S_HG}, 6")
    else:
        a.e(f"s_mov_b32 s{S_HG}, s{S_T0}")
    try:
        import gen_att
        gen_att.att(a)
    except ImportError:
        pass
    a.label("L_k1_end")
    a.e("s_endpgm")


def desc(name, vgpr, sgpr):
    return f""".p2align 6
.amdhsa_kernel {name}
  .amdhsa_next_free_vgpr {vgpr}
  .amdhsa_next_free_sgpr {sgpr}
  .amdhsa_accum_offset {(vgpr+3)//4*4}
  .amdhsa_group_segment_fixed_size 0
  .amdhsa_kernarg_size 80
  .amdhsa_user_sgpr_count 2
  .amdhsa_user_sgpr_kernarg_segment_ptr 1
  .amdhsa_system_sgpr_workgroup_id_x 1
.end_amdhsa_kernel"""


def main():
    a = Asm()
    a.raw(f"; @launch grid=(256,1,1) block=(512,1,1) lds={LDS_SZ}")
    have_k2 = False
    if have_k2:
        a.raw(gen_k2.LAUNCH)
    a.raw('.amdgcn_target "amdgcn-amd-amdhsa--gfx950"\n.text')
    k1(a)
    if have_k2:
        b = Asm()
        gen_k2.k2(b)
        a.raw(b.text())
    a.raw('.section .rodata,"a"')
    a.raw(desc("recurrent_scan__sliding_block__glu_gated_glu__prompt_kernel", 256, 102))
    if have_k2:
        a.raw(desc("k2_kernel", gen_k2.VGPRS, 48))
    sys.stdout.write(a.text())


if __name__ == "__main__":
    main()
```

```python
import os
from asmlib import vr, sr
import __main__ as G

Q0 = 0x3000000
QX = 0x3200000
QSCALE = 0x3EAE1B5D


def att(a):
    import struct, math
    qs = struct.unpack("<I", struct.pack("<f", (18 ** -0.5) * math.log2(math.e)))[0]
    (S_W, S_R, S_C, S_RB, S_HG, S_T0, S_T1, S_T2, S_T3) = (G.S_W, G.S_R, G.S_C, G.S_RB, G.S_HG, G.S_T0, G.S_T1, G.S_T2, G.S_T3)
    R_X, R_W1, R_W2, R_WS, R_DBG, R_A, R_B = G.R_X, G.R_W1, G.R_W2, G.R_WS, G.R_DBG, G.R_A, G.R_B
    V_LANE, V_L16, V_RD, FR, ACC, X = G.V_LANE, G.V_L16, G.V_RD, G.FR, G.ACC, G.X
    PD = G.PD
    S_WLDS, S_W1B, S_W2B, S_RT0, S_RT1, S_HB, S_KS, S_W2X = 61, 62, 63, 64, 65, 66, 67, 68
    VD = (3, 4, 76)
    VDX = (77, 78, 79)
    V_L8 = 80
    V_ONE = 81
    NS, SB = 8, 18432
    stamp = G.stamp

    G.srd(a, R_W1, G.S_WQKV, 1990656)
    G.srd(a, R_W2, G.S_WO, 663552)
    stamp(a)
    a.e(f"s_lshl_b32 s{S_T0}, s{S_HG}, 3")
    a.e(f"s_add_u32 s{S_T0}, s{S_T0}, s{S_W}")
    a.e(f"s_cmp_eq_u32 s{S_T0}, 0")
    a.e("s_cbranch_scc0 L_noinit")
    for k in range(4):
        a.e(f"v_mov_b32 v{16+k}, 0")
    a.e(f"s_lshl_b32 s{S_T0}, s{S_RB}, 11")
    a.e(f"s_add_u32 s{S_T0}, s{S_T0}, {G.FLG}")
    a.e_untracked(f"buffer_store_dwordx4 v[16:19], v{V_L16}, {sr(R_WS,4)}, s{S_T0} offen sc1")
    a.e("s_waitcnt vmcnt(0)")
    a.e(f"v_mov_b32 v17, 1")
    a.e(f"s_lshl_b32 s{S_T0}, s{S_RB}, 2")
    a.e("s_mov_b64 exec, 1")
    a.e_untracked(f"buffer_store_dword v17, v16, {sr(R_DBG,4)}, s{S_T0} offen offset:64 sc1")
    a.e("s_mov_b64 exec, -1")
    a.raw("L_noinit:")
    xtk = G.x_stage_issue(a)
    t0, t1, t2, t3 = 82, 83, 84, 85
    a.e(f"s_lshl_b32 s{S_T0}, s{S_W}, 6")
    a.e(f"v_add_u32 v{t0}, s{S_T0}, v{V_LANE}")
    a.e(f"v_lshrrev_b32 v{t1}, 3, v{t0}")
    a.e(f"v_and_b32 v{t2}, 7, v{t0}")
    a.e(f"v_min_u32 v{t2}, 5, v{t2}")
    a.e(f"v_lshlrev_b32 v{t2}, 6, v{t2}")
    a.e(f"v_min_u32 v{t2}, 284, v{t2}")
    a.e(f"v_cmp_gt_u32 vcc, 36, v{t1}")
    a.e(f"v_mul_u32_u24 v{t3}, 3456, v{t1}")
    a.e(f"v_add_u32 v{t3}, v{t3}, v{t2}")
    a.e(f"v_cndmask_b32 v{t3}, -1, v{t3}, vcc")
    a.e(f"v_mul_u32_u24 v{t1}, 1152, v{t1}")
    a.e(f"v_add_u32 v{t1}, v{t1}, v{t2}")
    a.e(f"v_cndmask_b32 v{t1}, -1, v{t1}, vcc")
    a.e(f"v_mov_b32 v252, v{t3}")
    a.e(f"v_mov_b32 v253, v{t1}")

    def after_wait():
        a.e(f"s_mul_i32 s{S_T0}, s{S_RB}, {36*3456}")
        a.e(f"s_mul_i32 s{S_T1}, s{S_HG}, 288")
        a.e(f"s_add_u32 s{S_T0}, s{S_T0}, s{S_T1}")
        for sec in (1, 2, 0):
            a.e(f"s_add_u32 s{S_T2}, s{S_T0}, {sec*1152}")
            a.e(f"buffer_load_dword v0, v252, {sr(R_W1,4)}, s{S_T2} offen")
        a.e(f"s_mul_i32 s{S_T0}, s{S_RB}, {36*1152}")
        a.e(f"s_add_u32 s{S_T0}, s{S_T0}, s{S_T1}")
        a.e(f"buffer_load_dword v0, v253, {sr(R_W2,4)}, s{S_T0} offen")


    if G.FLAG("EARLYW"):
        after_wait()
    def dma_voffs(pitch, extras=False):
        for n in range(3):
            a.e(f"v_add_u32 v{t0}, {64*n}, v{V_LANE}")
            a.e(f"v_mul_u32_u24 v{t1}, 3641, v{t0}")
            a.e(f"v_lshrrev_b32 v{t1}, 16, v{t1}")
            a.e(f"v_mul_u32_u24 v{t2}, 18, v{t1}")
            a.e(f"v_sub_u32 v{t2}, v{t0}, v{t2}")
            a.e(f"v_mul_u32_u24 v{t3}, {pitch}, v{t1}")
            a.e(f"v_lshl_add_u32 v{VD[n]}, v{t2}, 4, v{t3}")
            if extras:
                a.e(f"v_lshrrev_b32 v{t3}, 2, v{t1}")
                a.e(f"v_mul_u32_u24 v{t3}, {32*pitch}, v{t3}")
                a.e(f"v_add_u32 v{VDX[n]}, v{VD[n]}, v{t3}")
    dma_voffs(3456)
    a.e(f"s_mul_i32 s{S_WLDS}, s{S_W}, 2304")
    a.e(f"s_mul_i32 s{S_W1B}, s{S_W}, {8*3456}")
    a.e(f"s_mul_i32 s{S_T1}, s{S_HG}, 288")
    a.e(f"s_add_u32 s{S_W1B}, s{S_W1B}, s{S_T1}")
    a.e(f"s_mul_i32 s{S_T0}, s{S_C}, 36")
    a.e(f"s_lshl_b32 s{S_T2}, s{S_R}, 3")
    a.e(f"s_add_u32 s{S_T0}, s{S_T0}, s{S_T2}")
    a.e(f"s_lshr_b32 s{S_T2}, s{S_R}, 1")
    a.e(f"s_lshl_b32 s{S_T3}, s{S_T2}, 2")
    a.e(f"s_add_u32 s{S_T0}, s{S_T0}, s{S_T3}")
    a.e(f"s_mul_i32 s{S_W2B}, s{S_T0}, 1152")
    a.e(f"s_add_u32 s{S_W2B}, s{S_W2B}, s{S_T1}")
    a.e(f"s_lshl_b32 s{S_T0}, s{S_C}, 1")
    a.e(f"s_add_u32 s{S_T0}, s{S_T0}, s{S_T2}")
    a.e(f"s_mul_i32 s{S_T0}, s{S_T0}, 144")
    a.e(f"s_and_b32 s{S_T2}, s{S_R}, 1")
    a.e(f"s_mul_i32 s{S_T2}, s{S_T2}, 72")
    a.e(f"s_add_u32 s{S_T0}, s{S_T0}, s{S_T2}")
    a.e(f"s_add_u32 s{S_T0}, s{S_T0}, 16")
    a.e(f"s_mul_i32 s{S_W2X}, s{S_T0}, 1152")
    a.e(f"s_add_u32 s{S_W2X}, s{S_W2X}, s{S_T1}")
    def rd_bases():
        a.e(f"v_lshrrev_b32 v{t0}, 2, v{V_LANE}")
        a.e(f"v_mul_u32_u24 v{t0}, 288, v{t0}")
        a.e(f"v_and_b32 v{t1}, 3, v{V_LANE}")
        a.e(f"v_lshl_add_u32 v{t2}, v{t1}, 3, v{t0}")
        a.e(f"s_mul_i32 s{S_T0}, s{S_C}, 144")
        a.e(f"v_add_u32 v{V_RD}, s{S_T0}, v{t2}")
        a.e(f"v_mul_u32_u24 v{t1}, 72, v{t1}")
        a.e(f"v_add3_u32 v{V_RD+3}, v{t0}, v{t1}, 32")
        for k in (1, 2):
            a.e(f"v_add_u32 v{V_RD+k}, {49152*k}, v{V_RD}")
            a.e(f"v_add_u32 v{V_RD+3+k}, {49152*k}, v{V_RD+3}")
    rd_bases()
    a.e(f"v_lshlrev_b32 v{V_L8}, 3, v{V_LANE}")
    a.e(f"v_mov_b32 v{V_ONE}, 0x3f803f80")
    a.e(f"s_lshl_b32 s{S_T0}, s{S_RB}, 3")
    a.e(f"s_lshl_b32 s{S_T1}, s{S_R}, 1")
    a.e(f"s_add_u32 s{S_T0}, s{S_T0}, s{S_T1}")
    a.e(f"s_add_u32 s{S_T0}, s{S_T0}, s{S_C}")
    a.e(f"s_mov_b32 s{S_RT0}, s{S_T0}")
    a.e(f"s_xor_b32 s{S_RT1}, s{S_T0}, 1")
    a.e(f"s_lshl_b32 s{S_HB}, s{S_HG}, 3")
    a.e(f"s_lshl_b32 s{S_T1}, s{S_C}, 2")
    a.e(f"s_add_u32 s{S_HB}, s{S_HB}, s{S_T1}")
    a.e(f"s_lshl_b32 s{S_HB}, s{S_HB}, 16")
    a.e(f"s_lshl_b32 s{S_KS}, s{S_RB}, 2")
    a.e(f"s_add_u32 s{S_KS}, s{S_KS}, s{S_R}")
    a.e(f"s_lshl_b32 s{S_KS}, s{S_KS}, 10")
    itk = []

    def after_x():
        a.e(f"v_min_u32 v{t0}, 2, v{V_LANE}")
        a.e(f"v_sub_u32 v{t0}, s{S_RB}, v{t0}")
        a.e(f"v_max_i32 v{t0}, 0, v{t0}")
        a.e(f"v_lshlrev_b32 v{t0}, 2, v{t0}")
        itk.append(G.init_issue(a, t0, t1))
    G.layernorm(a, xtk, after_x=after_x, after_wait=None if G.FLAG('EARLYW') else after_wait)
    stamp(a, 'f')

    dtk = {}
    SEC = {0: 1152, 1: 2304, 2: 0}

    def dma(Gs, n):
        if Gs >= 37 or Gs == 27:
            return
        p, s = (Gs // 9, Gs % 9) if Gs < 27 else (3, Gs - 28)
        a.e(f"s_add_u32 m0, s{S_WLDS}, {(Gs % NS)*SB + n*1024}")
        if p < 3:
            a.e(f"s_add_u32 s{S_T3}, s{S_W1B}, {s*64*3456 + SEC[p]}")
            v, rs = VD[n], R_W1
        elif s < 8:
            a.e(f"s_add_u32 s{S_T3}, s{S_W2B}, {s*72*1152}")
            v, rs = VD[n], R_W2
        else:
            a.e(f"s_mov_b32 s{S_T3}, s{S_W2X}")
            v, rs = VDX[n], R_W2
        if n == 2:
            a.e("s_mov_b64 exec, 0xffff")
        dtk[Gs] = a.e(f"buffer_load_dwordx4 v{v}, {sr(rs,4)}, s{S_T3} offen lds")
        if n == 2:
            a.e("s_mov_b64 exec, -1")

    def acc(t, rho):
        return ACC + (t * 2 + rho) * 4 if t < 4 else ACC + 32

    TOFF = (0, 40, 72, 112)

    def gemm_pass(p, issue_next, extra_wait=None, after_bar=None, hooks=None):
        swap = (p == 1)
        frags = []
        for ks in range(18):
            Gs = p * 9 + ks // 2 + (1 if p == 3 else 0)
            base = (Gs % NS) * SB + (ks & 1) * 9216
            for t in range(5):
                A = base + (TOFF[t] if t < 4 else 0)
                k = A // 49152
                vb = V_RD + k + (3 if t == 4 else 0)
                im = A - 49152 * k

                def mk(ac, b, first):
                    if swap:
                        return lambda r: f"v_mfma_f32_16x16x32_bf16 {vr(ac,4)}, {vr(b,4)}, {vr(r,4)}, {'0' if first else vr(ac,4)}"
                    return lambda r: f"v_mfma_f32_16x16x32_bf16 {vr(ac,4)}, {vr(r,4)}, {vr(b,4)}, {'0' if first else vr(ac,4)}"
                frags.append(dict(stage=Gs, first=(ks % 2 == 0 and t == 0), rd=[(vb, im), (vb, im + 4608)],
                                  mf=[mk(acc(t, rho), X(rho, ks), ks == 0) for rho in range(2 if t < 4 else 1)]))
        fill = {}
        for s in range(9):
            tgt = p * 9 + s + NS - 2
            if tgt >= (p + 1) * 9 and not issue_next:
                continue
            if p == 3:
                tgt += 1
            n0 = max(s * 10 - PD + 2, 0)
            for n in range(3):
                fill.setdefault(n0 + 2 * n, []).append(lambda tgt=tgt, n=n: dma(tgt, n))

        for n_, fn in (hooks or {}).items():
            fill.setdefault(n_, []).extend(fn)

        def on_stage(Gs):
            tk = dtk[Gs]
            if extra_wait and Gs in extra_wait:
                tk = max(tk, extra_wait[Gs])
            a.wait_vm(tk)
            a.e("s_barrier")
            if after_bar and Gs in after_bar:
                after_bar[Gs]()
        G.run_stream(a, frags, fill, on_stage)

    def pack_pairs(name):
        a.e(f"s_cmp_eq_u32 s{S_C}, 0")
        a.e(f"s_cbranch_scc0 L_pp_{name}1")
        for cc in range(2):
            if cc:
                a.e(f"s_branch L_pp_{name}x")
                a.raw(f"L_pp_{name}1:")
                a.e("s_nop 7")
            for t in range(4):
                A, B = acc(t, 0), acc(t, 1)
                if cc == 0:
                    a.e(f"v_cvt_pk_bf16_f32 v{A}, v{A}, v{A+1}")
                    a.e(f"v_cvt_pk_bf16_f32 v{A+1}, v{A+2}, v{A+3}")
                    a.e(f"v_cvt_pk_bf16_f32 v{A+2}, v{B}, v{B+1}")
                    a.e(f"v_cvt_pk_bf16_f32 v{A+3}, v{B+2}, v{B+3}")
                else:
                    a.e(f"v_cvt_pk_bf16_f32 v{A+3}, v{A+2}, v{A+3}")
                    a.e(f"v_cvt_pk_bf16_f32 v{A+2}, v{A}, v{A+1}")
                    a.e(f"v_cvt_pk_bf16_f32 v{A}, v{B}, v{B+1}")
                    a.e(f"v_cvt_pk_bf16_f32 v{A+1}, v{B+2}, v{B+3}")
        a.raw(f"L_pp_{name}x:")

    def store_pairs(base):
        for t in range(4):
            a.e(f"s_add_u32 s{S_T0}, s{S_KS}, s{S_HB}")
            a.e(f"s_add_u32 s{S_T0}, s{S_T0}, {base + t*65536}")
            a.e(f"buffer_store_dwordx4 {vr(acc(t,0),4)}, v{V_L16}, {sr(R_WS,4)}, s{S_T0} offen sc1")

    def epi_kq(base0, basex, scale):
        pack_pairs("k")
        store_pairs(base0)
        A = acc(4, 0)
        a.e(f"v_cvt_pk_bf16_f32 v{A}, v{A}, v{A+1}")
        a.e(f"v_cvt_pk_bf16_f32 v{A+1}, v{A+2}, v{A+3}")
        a.e(f"s_lshl_b32 s{S_T0}, s{S_RT0}, 9")
        a.e(f"s_lshl_b32 s{S_T1}, s{S_HG}, 16")
        a.e(f"s_add_u32 s{S_T0}, s{S_T0}, s{S_T1}")
        a.e(f"s_add_u32 s{S_T0}, s{S_T0}, {basex}")
        return a.e(f"buffer_store_dwordx2 {vr(A,2)}, v{V_L8}, {sr(R_WS,4)}, s{S_T0} offen sc1")

    def epi_v():
        pack_pairs("v")
        store_pairs(G.V0)
        A = acc(4, 0)
        a.e(f"v_cvt_pk_bf16_f32 v{A}, v{A}, v{A+1}")
        a.e(f"v_cvt_pk_bf16_f32 v{A+1}, v{A+2}, v{A+3}")
        a.e(f"v_and_b32 v{t0}, 8, v{V_LANE}")
        a.e(f"v_cmp_eq_u32 vcc, 0, v{t0}")
        a.e(f"v_cndmask_b32 v{A+2}, v{V_ONE}, v{A}, vcc")
        a.e(f"v_cndmask_b32 v{A+3}, v{V_ONE}, v{A+1}, vcc")
        a.e(f"v_cndmask_b32 v{A}, v{A}, v{V_ONE}, vcc")
        a.e(f"v_cndmask_b32 v{A+1}, v{A+1}, v{V_ONE}, vcc")
        a.e(f"s_lshl_b32 s{S_T0}, s{S_C}, 3")
        a.e(f"s_add_u32 s{S_T0}, s{S_T0}, s{S_KS}")
        a.e(f"s_lshl_b32 s{S_T1}, s{S_HG}, 17")
        a.e(f"s_add_u32 s{S_T0}, s{S_T0}, s{S_T1}")
        a.e(f"s_add_u32 s{S_T0}, s{S_T0}, {G.VX}")
        a.e(f"buffer_store_dwordx2 {vr(A+2,2)}, v{V_L16}, {sr(R_WS,4)}, s{S_T0} offen sc1")
        a.e(f"s_add_u32 s{S_T0}, s{S_T0}, 65536")
        tk = a.e(f"buffer_store_dwordx2 {vr(A,2)}, v{V_L16}, {sr(R_WS,4)}, s{S_T0} offen sc1")
        return tk

    def set_flag(val, name):
        a.e(f"s_cmp_eq_u32 s{S_W}, 0")
        a.e(f"s_cbranch_scc0 L_fl_{name}")
        a.e(f"s_lshl_b32 s{S_T0}, s{S_RB}, 11")
        a.e(f"s_lshl_b32 s{S_T1}, s{S_HG}, 2")
        a.e(f"s_add_u32 s{S_T0}, s{S_T0}, s{S_T1}")
        a.e(f"s_add_u32 s{S_T0}, s{S_T0}, {G.FLG}")
        a.e(f"v_mov_b32 v{t0}, {val}")
        a.e(f"v_mov_b32 v{t1}, 0")
        a.e("s_mov_b64 exec, 1")
        a.e_untracked(f"buffer_store_dword v{t0}, v{t1}, {sr(R_WS,4)}, s{S_T0} offen sc1")
        a.e("s_mov_b64 exec, -1")
        a.raw(f"L_fl_{name}:")

    def poll(name, vaddr, vtmp, want, one_wave=True):
        if one_wave:
            a.e(f"s_cmp_eq_u32 s{S_W}, 0")
            a.e(f"s_cbranch_scc0 L_poll_{name}_x")
        a.e(f"s_mov_b32 s{S_T2}, 0")
        a.e(f"s_mov_b32 s{S_T0}, {G.FLG}")
        a.raw(f"L_poll_{name}:")
        a.e_untracked(f"buffer_load_dword v{vtmp}, v{vaddr}, {sr(R_WS,4)}, s{S_T0} offen sc1")
        a.e(f"s_add_u32 s{S_T2}, s{S_T2}, 1")
        a.e(f"s_cmp_gt_u32 s{S_T2}, 0x40000")
        a.e(f"s_cbranch_scc1 L_poll_{name}_x")
        a.e("s_waitcnt vmcnt(0)")
        a.e(f"v_cmp_gt_u32 vcc, {want}, v{vtmp}")
        a.e(f"s_cbranch_vccz L_poll_{name}_x")
        a.e("s_sleep 2")
        a.e(f"s_branch L_poll_{name}")
        a.raw(f"L_poll_{name}_x:")
        if one_wave:
            a.e("s_barrier")

    for Gs in range(NS - 2):
        for n in range(3):
            dma(Gs, n)
    G.init_check(a, "a", t0, t1, itk[0])
    stamp(a, 'n')
    gemm_pass(0, True)
    stamp(a, 'o')
    epi_kq(G.K0, G.KX, False)
    stamp(a, 'p')
    gemm_pass(1, True)
    stamp(a, 'q')
    tkv = epi_v()
    stamp(a, 'r')
    order = [X(r_, s_) for s_ in range(18) for r_ in range(2)]
    want = [x_ for g_ in (8, 4, 0) for i_ in range(4) for x_ in (('k', 2 * (g_ + i_)), ('v', g_ + i_))] + \
           [('k', 2 * i_ + 1) for i_ in range(12)]
    RM = {w_: order[i_] for i_, w_ in enumerate(want)}

    def KR(k):
        return RM[('k', k)]

    def VR(v):
        return RM[('v', v)]
    TQ, MQ, CQ, QA, O0, OX, VXB = 16, 48, 52, 60, 68, 12, 92
    vNEG, vM, vT1, vT2, vOA, vOB = 86, 87, 88, 89, 90, 91
    vQ, vVX = 248, 249
    XS = 250
    vL8 = V_L8
    S_P, S_KT0 = 71, 73
    M = [4, 6, 8, 10]
    MQ0, MQ1, MVER, MODD, MP = 12, 14, 16, 18, 100
    SO = [75, 69, 70]
    LQ0, LQX, LKX, LVX = 0, 32768, 36864, 49152
    XK, XV = 86, 92
    vS1, vS2 = 250, 251

    def mk_srd(rs, off_sgpr, size=65536):
        a.e(f"s_add_u32 s{rs}, s{G.S_WS}, s{off_sgpr}")
        a.e(f"s_addc_u32 s{rs+1}, s{G.S_WS+1}, 0")
        a.e(f"s_mov_b32 s{rs+2}, {size}")
        a.e(f"s_mov_b32 s{rs+3}, 0x20000")
    tks_ = {}

    def att_setup():
        a.e(f"s_lshr_b32 s{S_P}, s{S_W}, 1")
        a.e(f"s_lshl_b32 s{S_KT0}, s{S_RB}, 3")
        a.e(f"s_sub_u32 s{S_KT0}, s{S_KT0}, 16")
        for b in range(3):
            a.e(f"s_add_u32 s{S_T0}, s{S_KT0}, {8*b}")
            a.e(f"s_lshl_b32 s{SO[b]}, s{S_T0}, 9")
            a.e(f"s_cmp_lt_i32 s{S_T0}, 0")
            a.e(f"s_cselect_b32 s{SO[b]}, 0x70000000, s{SO[b]}")
        a.e(f"s_lshl_b32 s{S_T0}, s{S_HG}, 16")
        a.e(f"s_add_u32 s{S_T0}, s{S_T0}, {G.KX}")
        mk_srd(R_X, S_T0)
        a.e(f"s_lshl_b32 s{S_T0}, s{S_HG}, 1")
        a.e(f"s_add_u32 s{S_T0}, s{S_T0}, s{S_C}")
        a.e(f"s_lshl_b32 s{S_T0}, s{S_T0}, 16")
        a.e(f"s_add_u32 s{S_T0}, s{S_T0}, {G.VX}")
        mk_srd(R_W1, S_T0)
        a.e(f"s_lshl_b32 s{S_T1}, s{S_HG}, 3")
        a.e(f"s_add_u32 s{S_T1}, s{S_T1}, s{S_W}")
        a.e(f"s_lshl_b32 s{S_T1}, s{S_T1}, 16")
        for rs, base in ((R_A, G.K0), (R_B, G.V0)):
            a.e(f"s_add_u32 s{S_T0}, s{S_T1}, {base}")
            mk_srd(rs, S_T0)
        a.e(f"s_lshl_b32 s{S_T2}, s{S_W}, 9")
        a.e(f"v_add_u32 v{vS1}, s{S_T2}, v{vL8}")
        a.e(f"s_lshl_b32 s{S_T2}, s{S_R}, 10")
        a.e(f"v_add_u32 v{vS2}, s{S_T2}, v{V_L16}")

    def att_poll():
        a.e(f"v_and_b32 v{t0}, 1, v{V_LANE}")
        a.e(f"v_add_u32 v{t0}, 1, v{t0}")
        a.e(f"v_sub_u32 v{t0}, s{S_RB}, v{t0}")
        a.e(f"v_max_i32 v{t0}, 0, v{t0}")
        a.e(f"v_lshlrev_b32 v{t0}, 11, v{t0}")
        a.e(f"s_lshl_b32 s{S_T0}, s{S_HG}, 2")
        a.e(f"v_add_u32 v{t0}, s{S_T0}, v{t0}")
        poll("kv", t0, t1, 1, one_wave=False)

    def lsh(b):
        def f():
            a.e(f"buffer_load_dwordx2 {vr(XK+2*b,2)}, v{vS1}, {sr(R_X,4)}, s{SO[b]} offen sc1")
            tks_['sh'] = a.e(f"buffer_load_dwordx4 {vr(XV+4*b,4)}, v{vS2}, {sr(R_W1,4)}, s{SO[b]} offen sc1")
        return f

    def lk(k):
        def f():
            tks_['kv'] = a.e(f"buffer_load_dwordx4 {vr(KR(k),4)}, v{V_L16}, {sr(R_A,4)}, s{SO[k//8]} offen offset:{(k%8)*512} sc1")
        return f

    def lv(k):
        def f():
            tks_['kv'] = a.e(f"buffer_load_dwordx4 {vr(VR(k),4)}, v{V_L16}, {sr(R_B,4)}, s{SO[k//4]} offen offset:{(k%4)*1024} sc1")
        return f
    FST = int(os.environ.get("FST", "3"))
    KSP = int(os.environ.get("KSP", "12"))
    lds_ = [(lk if w_[0] == 'k' else lv)(w_[1]) for w_ in want[:24]]
    n_own = FST * 10 - PD + 2
    hooks = {n_own: [att_setup]}
    rest = []
    pos = n_own + 1
    for i_, f_ in enumerate([lsh(2)] + lds_[:8]):
        free_at = ((i_ - 1) // 2 + 1) * 5 + 1
        pos = max(pos + 1, free_at)
        hooks.setdefault(pos, []).append(f_)
    hooks.setdefault(KSP * 5, []).append(att_poll)
    pos = KSP * 5
    for i_, f_ in enumerate([lsh(1), lsh(0)] + lds_[8:]):
        qi = i_ - 2 + 8
        free_at = (qi // 2 + 1) * 5 + 1 if i_ >= 2 else 0
        pos = max(pos + 1, free_at)
        if pos < 89:
            hooks.setdefault(pos, []).append(f_)
        else:
            rest.append(f_)
    gemm_pass(2, False, extra_wait={18 + FST: tkv}, after_bar={18 + FST: lambda: set_flag(1, "kv")}, hooks=hooks)
    for f_ in rest:
        f_()
    tsh = tks_['sh']
    tvv = [tks_['kv']]
    for t in range(5):
        for rho in range(2 if t < 4 else 1):
            A = acc(t, rho)
            for i in range(4):
                a.e(f"v_mul_f32 v{A+i}, 0x{qs:x}, v{A+i}")
            a.e(f"v_cvt_pk_bf16_f32 v{A}, v{A}, v{A+1}")
            a.e(f"v_cvt_pk_bf16_f32 v{A+1}, v{A+2}, v{A+3}")
    a.e(f"s_and_b32 s{S_T0}, s{S_RT0}, 7")
    a.e(f"s_lshl_b32 s{S_T0}, s{S_T0}, 9")
    a.e(f"v_add_u32 v252, s{S_T0}, v{vL8}")
    a.e(f"s_lshl_b32 s{S_T1}, s{S_C}, 14")
    a.e(f"v_add_u32 v253, s{S_T1}, v252")
    a.e(f"v_xor_b32 v254, 512, v253")
    stamp(a, 'i')
    a.wait_lg0()
    a.e("s_barrier")
    for t in range(4):
        for rho in range(2):
            a.e(f"ds_write_b64 v{253 if rho == 0 else 254}, {vr(acc(t,rho),2)} offset:{LQ0 + t*4096}")
    a.e(f"ds_write_b64 v252, {vr(acc(4,0),2)} offset:{LQX}")
    a.e(f"s_mul_i32 s{S_T1}, s{S_C}, 12288")
    a.e(f"v_add_u32 v{vS2}, s{S_T1}, v{vS2}")
    a.wait_vm(tsh)
    for b in range(3):
        a.e(f"ds_write_b64 v{vS1}, {vr(XK+2*b,2)} offset:{LKX + b*4096}")
        a.e(f"ds_write_b128 v{vS2}, {vr(XV+4*b,4)} offset:{LVX + b*4096}")
    a.wait_lg0()
    a.e(f"v_mov_b32 v{vNEG}, 0xf149f2ca")
    vTH = 253
    a.e(f"v_mov_b32 v{vTH}, {os.environ.get('LZT', '0x41800000')}")
    a.e(f"v_and_b32 v{vT1}, 15, v{V_LANE}")
    a.e(f"v_lshrrev_b32 v{vT2}, 4, v{V_LANE}")
    a.e(f"v_cmp_eq_u32 {sr(MP,2)}, s{S_P}, v{vT2}")
    a.e(f"v_lshlrev_b32 v{vT2}, 2, v{vT2}")
    for i in range(4):
        a.e(f"v_add_u32 v{vM}, {i}, v{vT2}")
        a.e(f"v_cmp_gt_u32 {sr(M[i],2)}, v{vM}, v{vT1}")
    a.e(f"s_cmp_lt_u32 s{S_P}, 2")
    a.e(f"s_cselect_b64 {sr(MVER,2)}, -1, 0")
    a.e(f"s_bitcmp0_b32 s{S_W}, 0")
    a.e(f"s_cselect_b64 {sr(MQ0,2)}, {sr(MP,2)}, 0")
    a.e(f"s_cselect_b64 {sr(MQ1,2)}, 0, {sr(MP,2)}")
    a.e(f"s_cselect_b64 {sr(MODD,2)}, 0, -1")
    a.e(f"s_lshl_b32 s{S_T0}, s{S_W}, 12")
    a.e(f"v_add_u32 v{vQ}, s{S_T0}, v{vL8}")
    a.e(f"s_mul_i32 s{S_T0}, s{S_C}, 12288")
    a.e(f"s_add_u32 s{S_T0}, s{S_T0}, {LVX}")
    a.e(f"v_add_u32 v{vVX}, s{S_T0}, v{V_L16}")
    S_OA, S_OB = 72, 74
    vO = 252
    a.e(f"s_mul_i32 s{S_T0}, s{S_RB}, {4*36864}")
    a.e(f"s_add_u32 s{S_T0}, s{S_T0}, {G.OF}")
    a.e(f"s_lshl_b32 s{S_T1}, s{S_HG}, 3")
    a.e(f"s_add_u32 s{S_T1}, s{S_T1}, s{S_W}")
    a.e(f"s_lshl_b32 s{S_T1}, s{S_T1}, 10")
    a.e(f"s_add_u32 s{S_OA}, s{S_T1}, s{S_T0}")
    a.e(f"s_add_u32 s{S_T1}, s{S_HG}, 32")
    a.e(f"s_lshl_b32 s{S_T1}, s{S_T1}, 10")
    a.e(f"s_and_b32 s{S_T3}, s{S_W}, 1")
    a.e(f"s_lshl_b32 s{S_T2}, s{S_T3}, 2")
    a.e(f"s_add_u32 s{S_T1}, s{S_T1}, s{S_T2}")
    a.e(f"s_add_u32 s{S_OB}, s{S_T1}, s{S_T0}")
    a.e(f"v_bfe_u32 v{vT2}, v{V_LANE}, 4, 1")
    a.e(f"v_lshlrev_b32 v{vO}, 9, v{vT2}")
    a.e(f"v_lshl_add_u32 v{vO}, v{vT1}, 4, v{vO}")
    a.e(f"v_lshrrev_b32 v{vT2}, 5, v{V_LANE}")
    a.e(f"v_lshl_add_u32 v{vO}, v{vT2}, 3, v{vO}")
    a.wait_lg0()
    a.e("s_barrier")
    a.wait_vm(tvv[-1])
    for k in range(0, 24, 2):
        a.e(f"v_mov_b32 v{KR(k+1)}, v{KR(k)+2}")
        a.e(f"v_mov_b32 v{KR(k+1)+1}, v{KR(k)+3}")
    for k in range(24):
        a.e(f"ds_read_b64 {vr(KR(k)+2,2)}, v{vL8} offset:{LKX + k*512}")

    def ld_q(j):
        q = QA + 4 * (j & 1)
        a.e(f"ds_read_b64 {vr(q,2)}, v{vQ} offset:{LQ0 + j*512}")
        return a.e(f"ds_read_b64 {vr(q+2,2)}, v{vL8} offset:{LQX + j*512}")
    ld_q(0)
    a.wait_vm(tvv[-1])
    a.wait_lg0()
    stamp(a, 'k')
    a.e(f"s_cmp_lt_i32 s{S_KT0}, 0")
    a.e("s_cbranch_scc1 L_head_neg")

    LAZY = int(os.environ.get("LAZY", "1"))
    THR = os.environ.get("LZT", "0x41800000")
    vX1, vX2 = 250, 251
    S_RET = 67

    def core(j, neg, fast):
        o = j & 1
        q = QA + 4 * (j & 1)
        if neg:
            for b in range(2):
                a.e(f"s_cmp_eq_u32 s{SO[b]}, 0x70000000")
                a.e(f"s_cselect_b32 s{S_T0}, 0xf149f2ca, 0")
                for i in range(4):
                    a.e(f"v_mov_b32 v{CQ+4*b+i}, s{S_T0}")

        def cin(k, second):
            b = k >> 3
            if neg and b < 2:
                return vr(CQ + 4 * b, 4)
            return vr(MQ, 4) if second else "0"
        LA = 4

        def tq_(t):
            return TQ + 4 * (t % 8)

        def s1(t):
            a.e(f"v_mfma_f32_16x16x32_bf16 {vr(tq_(t),4)}, {vr(KR(j+t),4)}, {vr(q,4)}, {cin(j+t, False)}")
        tvx = {}

        def ld_vx(u):
            tvx[u] = a.e(f"ds_read_b128 {vr(VXB+4*(u%3),4)}, v{vVX} offset:{((j>>1)+u)*1024}")
        if fast:
            s1(16)
            ld_vx(0)
            ld_vx(1)
            r = tq_(16)
            for i in range(4):
                a.e(f"v_cndmask_b32 v{r+i}, v{r+i}, v{vNEG}, {sr(M[i],2)}")
            a.e(f"v_max_f32 v{vM}, v{r}, v{r+1}")
            a.e(f"v_max_f32 v{vT1}, v{r+2}, v{r+3}")
        else:
            for t in range(LA):
                s1(t)
            for t in range(17):
                if t + LA < 17:
                    s1(t + LA)
                r = tq_(t)
                if t == 0:
                    for i in range(4):
                        a.e(f"v_cndmask_b32 v{r+i}, v{vNEG}, v{r+i}, {sr(M[i],2)}")
                    a.e(f"v_max_f32 v{vM}, v{r}, v{r+1}")
                    a.e(f"v_max_f32 v{vT1}, v{r+2}, v{r+3}")
                    continue
                if t == 16:
                    for i in range(4):
                        a.e(f"v_cndmask_b32 v{r+i}, v{r+i}, v{vNEG}, {sr(M[i],2)}")
                a.e(f"v_max3_f32 v{vM}, v{vM}, v{r}, v{r+1}")
                a.e(f"v_max3_f32 v{vT1}, v{vT1}, v{r+2}, v{r+3}")
            ld_vx(0)
            ld_vx(1)
        a.e(f"v_max_f32 v{vM}, v{vM}, v{vT1}")
        a.e(f"v_mov_b32 v{vT1}, v{vM}")
        a.e(f"v_permlane32_swap_b32 v{vM}, v{vT1}")
        a.e(f"v_max_f32 v{vM}, v{vM}, v{vT1}")
        a.e(f"v_mov_b32 v{vT1}, v{vM}")
        a.e(f"v_permlane16_swap_b32 v{vM}, v{vT1}")
        a.e(f"v_max_f32 v{vM}, v{vM}, v{vT1}")
        for i in range(4):
            a.e(f"v_sub_f32 v{MQ+i}, 0, v{vM}")
        if neg:
            for b in range(2):
                for i in range(4):
                    a.e(f"v_add_f32 v{CQ+4*b+i}, v{CQ+4*b+i}, v{MQ}")

        def sq(sl):
            return TQ + 4 * (sl % 8)

        def s2m(sl):
            t = sl - o
            if 0 <= t <= 16:
                return [f"v_mfma_f32_16x16x32_bf16 {vr(sq(sl),4)}, {vr(KR(j+t),4)}, {vr(q,4)}, {cin(j+t, True)}"]
            return []

        def pvm(u):
            vs = (j >> 1) + u
            return [f"v_mfma_f32_16x16x32_bf16 {vr(O0,4)}, {vr(VR(vs),4)}, {vr(sq(2*u),4)}, {vr(O0,4) if u else '0'}",
                    f"v_mfma_f32_16x16x32_bf16 {vr(OX,4)}, {vr(VXB+4*(u%3),4)}, {vr(sq(2*u),4)}, {vr(OX,4) if u else '0'}"]
        for sl in range(4):
            for m_ in s2m(sl):
                a.e(m_)
        for u in range(9):
            mm = (pvm(u - 1) if u else []) + (s2m(2 * u + 4) + s2m(2 * u + 5) if u + 2 < 9 else [])
            if u:
                a.wait_lg(tvx[u - 1])
            vv = []
            for h in range(2):
                sl = 2 * u + h
                t = sl - o
                if not 0 <= t <= 16:
                    continue
                r = sq(sl)
                if t == 0:
                    vv += [f"v_cndmask_b32 v{r+i}, v{vNEG}, v{r+i}, {sr(M[i],2)}" for i in range(4)]
                if t == 16:
                    vv += [f"v_cndmask_b32 v{r+i}, v{r+i}, v{vNEG}, {sr(M[i],2)}" for i in range(4)]
                elif fast:
                    if t == 0:
                        vv += [f"v_max_f32 v{vX1}, v{r}, v{r+1}", f"v_max_f32 v{vX2}, v{r+2}, v{r+3}"]
                    else:
                        vv += [f"v_max3_f32 v{vX1}, v{vX1}, v{r}, v{r+1}", f"v_max3_f32 v{vX2}, v{vX2}, v{r+2}, v{r+3}"]
                vv += [f"v_exp_f32 v{r+i}, v{r+i}" for i in range(4)]
            for h in range(2):
                sl = 2 * u + h
                t = sl - o
                for k2 in range(2):
                    d = sq(2 * u) + 2 * h + k2
                    vv.append(f"v_cvt_pk_bf16_f32 v{d}, v{sq(sl)+2*k2}, v{sq(sl)+2*k2+1}" if 0 <= t <= 16 else f"v_mov_b32 v{d}, 0")
            step = max(1, len(vv) // max(1, len(mm)))
            for k_, v_ in enumerate(vv):
                if mm and k_ % step == 0:
                    a.e(mm.pop(0))
                a.e(v_)
            for m_ in mm:
                a.e(m_)
            if u + 2 < 9:
                ld_vx(u + 2)
        a.wait_lg(tvx[8])
        for m_ in pvm(8):
            a.e(m_)

    def heads(neg):
        sfx = "_neg" if neg else ""
        a.raw(f"L_head{sfx}:")
        a.barrier_hist()
        a.e(f"s_mov_b32 s{S_RET}, {int(neg)}")
        tq = None
        for j in range(8):
            q = QA + 4 * (j & 1)
            if tq is not None:
                a.wait_lg(tq)
            a.e(f"v_cndmask_b32 v{q+2}, 0, v{q+2}, {sr(MQ0,2)}")
            a.e(f"v_cndmask_b32 v{q+3}, 0, v{q+3}, {sr(MQ1,2)}")
            if j < 7:
                tq = ld_q(j + 1)
            core(j, neg, LAZY)
            if LAZY:
                a.e(f"v_max_f32 v{vX1}, v{vX1}, v{vX2}")
                a.e(f"v_cmp_nle_f32 vcc, v{vX1}, v{vTH}")
                a.e(f"s_cbranch_vccnz L_slowq{j}")
                a.raw(f"L_cont{sfx}{j}:")
            a.e(f"v_mov_b32 v{vT1}, v{OX}")
            a.e(f"v_mov_b32 v{vT2}, v{OX}")
            a.e(f"v_permlane32_swap_b32 v{vT1}, v{vT2}")
            a.e(f"v_cndmask_b32 v{vT1}, v{vT1}, v{vT2}, {sr(MVER,2)}")
            a.e(f"v_rcp_f32 v{vT1}, v{vT1}")
            a.e(f"v_cndmask_b32 v{OX}, v{OX}, v{OX+2}, {sr(MODD,2)}")
            a.e(f"v_cndmask_b32 v{OX+1}, v{OX+1}, v{OX+3}, {sr(MODD,2)}")
            for i in range(4):
                a.e(f"v_mul_f32 v{O0+i}, v{O0+i}, v{vT1}")
            a.e(f"v_mul_f32 v{OX}, v{OX}, v{vT1}")
            a.e(f"v_mul_f32 v{OX+1}, v{OX+1}, v{vT1}")
            a.e(f"v_cvt_pk_bf16_f32 v{vOA}, v{O0}, v{O0+1}")
            a.e(f"v_cvt_pk_bf16_f32 v{vOB}, v{O0+2}, v{O0+3}")
            a.e(f"v_cvt_pk_bf16_f32 v{vT2}, v{OX}, v{OX+1}")
            a.e(f"s_add_u32 s{S_T1}, s{S_OA}, {(j>>1)*36864 + (j&1)*256}")
            a.e(f"buffer_store_dwordx2 {vr(vOA,2)}, v{vO}, {sr(R_WS,4)}, s{S_T1} offen sc1")
            a.e(f"s_add_u32 s{S_T1}, s{S_OB}, {(j>>1)*36864 + (j&1)*256}")
            a.e(f"s_mov_b64 exec, {sr(MP,2)}")
            a.e(f"buffer_store_dword v{vT2}, v{vO}, {sr(R_WS,4)}, s{S_T1} offen sc1")
            a.e("s_mov_b64 exec, -1")
        a.e("s_branch L_att_done")
    heads(False)
    heads(True)
    if LAZY:
        lg_save = (a.lg, a.lg_done)
        for j in range(8):
            a.raw(f"L_slowq{j}:")
            a.barrier_hist()
            a.e("s_nop 7")
            a.e("s_nop 7")
            a.wait_lg0()
            core(j, True, False)
            a.e("s_nop 7")
            a.e("s_nop 3")
            a.e(f"s_cmp_eq_u32 s{S_RET}, 0")
            a.e(f"s_cbranch_scc1 L_cont{j}")
            a.e(f"s_branch L_cont_neg{j}")
    ool = []
    a.raw("L_att_done:")
    a.barrier_hist()
    a.e("s_setprio 0")
    stamp(a, 'j')
    def assign():
        a.e(f"s_lshl_b32 s{G.T_CE}, s{S_HG}, 6")
        a.e(f"s_lshr_b32 s{S_T0}, s{S_HG}, 1")
        a.e(f"s_add_u32 s{S_T0}, s{S_T0}, 4")
        a.e(f"s_lshl_b32 s{G.T_CL}, s{S_T0}, 6")
        a.e(f"s_and_b32 s{S_T0}, s{S_HG}, 1")
        a.e(f"s_lshl_b32 s{S_T0}, s{S_T0}, 1")
        a.e(f"s_and_b32 s{S_T1}, s{S_W}, 1")
        a.e(f"s_add_u32 s{S_T0}, s{S_T0}, s{S_T1}")
        a.e(f"s_cmp_eq_u32 s{S_C}, 0")
        a.e(f"s_cselect_b32 s{G.T_TR}, s{S_R}, s{S_T0}")
        a.e(f"s_cmp_lt_u32 s{S_W}, 6")
        a.e(f"s_cselect_b32 s{G.T_ACT}, 1, 0")

    def between():
        stamp(a, 'l')
        set_flag(2, "o")
    G.tail(a, "a", assign, between, late_c1=False)
    stamp(a, 'h')
    G.stamp_out(a)
    a.e("s_endpgm")
    for t_ in ool:
        a.raw(t_)
```

```python
import os
from asmlib import vr, sr
import __main__ as G

Q0 = 0x3000000
QX = 0x3200000
QSCALE = 0x3EAE1B5D


def att(a):
    import struct, math
    qs = struct.unpack("<I", struct.pack("<f", (18 ** -0.5) * math.log2(math.e)))[0]
    (S_W, S_R, S_C, S_RB, S_HG, S_T0, S_T1, S_T2, S_T3) = (G.S_W, G.S_R, G.S_C, G.S_RB, G.S_HG, G.S_T0, G.S_T1, G.S_T2, G.S_T3)
    R_X, R_W1, R_W2, R_WS, R_DBG, R_A, R_B = G.R_X, G.R_W1, G.R_W2, G.R_WS, G.R_DBG, G.R_A, G.R_B
    V_LANE, V_L16, V_RD, FR, ACC, X = G.V_LANE, G.V_L16, G.V_RD, G.FR, G.ACC, G.X
    PD = G.PD
    S_WLDS, S_W1B, S_W2B, S_RT0, S_RT1, S_HB, S_KS, S_W2X = 61, 62, 63, 64, 65, 66, 67, 68
    VD = (3, 4, 76)
    VDX = (77, 78, 79)
    V_L8 = 80
    V_ONE = 81
    NS, SB = 8, 18432
    stamp = G.stamp

    G.srd(a, R_W1, G.S_WQKV, 1990656)
    G.srd(a, R_W2, G.S_WO, 663552)
    stamp(a)
    a.e(f"s_lshl_b32 s{S_T0}, s{S_HG}, 3")
    a.e(f"s_add_u32 s{S_T0}, s{S_T0}, s{S_W}")
    a.e(f"s_cmp_eq_u32 s{S_T0}, 0")
    a.e("s_cbranch_scc0 L_noinit")
    for k in range(4):
        a.e(f"v_mov_b32 v{16+k}, 0")
    a.e(f"s_lshl_b32 s{S_T0}, s{S_RB}, 11")
    a.e(f"s_add_u32 s{S_T0}, s{S_T0}, {G.FLG}")
    a.e_untracked(f"buffer_store_dwordx4 v[16:19], v{V_L16}, {sr(R_WS,4)}, s{S_T0} offen sc1")
    a.e("s_waitcnt vmcnt(0)")
    a.e(f"v_mov_b32 v17, 1")
    a.e(f"s_lshl_b32 s{S_T0}, s{S_RB}, 2")
    a.e("s_mov_b64 exec, 1")
    a.e_untracked(f"buffer_store_dword v17, v16, {sr(R_DBG,4)}, s{S_T0} offen offset:64 sc1")
    a.e("s_mov_b64 exec, -1")
    a.raw("L_noinit:")
    xtk = G.x_stage_issue(a)
    t0, t1, t2, t3 = 82, 83, 84, 85
    a.e(f"s_lshl_b32 s{S_T0}, s{S_W}, 6")
    a.e(f"v_add_u32 v{t0}, s{S_T0}, v{V_LANE}")
    a.e(f"v_lshrrev_b32 v{t1}, 3, v{t0}")
    a.e(f"v_and_b32 v{t2}, 7, v{t0}")
    a.e(f"v_min_u32 v{t2}, 5, v{t2}")
    a.e(f"v_lshlrev_b32 v{t2}, 6, v{t2}")
    a.e(f"v_min_u32 v{t2}, 284, v{t2}")
    a.e(f"v_cmp_gt_u32 vcc, 36, v{t1}")
    a.e(f"v_mul_u32_u24 v{t3}, 3456, v{t1}")
    a.e(f"v_add_u32 v{t3}, v{t3}, v{t2}")
    a.e(f"v_cndmask_b32 v{t3}, -1, v{t3}, vcc")
    a.e(f"v_mul_u32_u24 v{t1}, 1152, v{t1}")
    a.e(f"v_add_u32 v{t1}, v{t1}, v{t2}")
    a.e(f"v_cndmask_b32 v{t1}, -1, v{t1}, vcc")
    a.e(f"v_mov_b32 v252, v{t3}")
    a.e(f"v_mov_b32 v253, v{t1}")

    def after_wait():
        a.e(f"s_mul_i32 s{S_T0}, s{S_RB}, {36*3456}")
        a.e(f"s_mul_i32 s{S_T1}, s{S_HG}, 288")
        a.e(f"s_add_u32 s{S_T0}, s{S_T0}, s{S_T1}")
        for sec in (1, 2, 0):
            a.e(f"s_add_u32 s{S_T2}, s{S_T0}, {sec*1152}")
            a.e(f"buffer_load_dword v0, v252, {sr(R_W1,4)}, s{S_T2} offen")
        a.e(f"s_mul_i32 s{S_T0}, s{S_RB}, {36*1152}")
        a.e(f"s_add_u32 s{S_T0}, s{S_T0}, s{S_T1}")
        a.e(f"buffer_load_dword v0, v253, {sr(R_W2,4)}, s{S_T0} offen")


    if G.FLAG("EARLYW"):
        after_wait()
    def dma_voffs(pitch, extras=False):
        for n in range(3):
            a.e(f"v_add_u32 v{t0}, {64*n}, v{V_LANE}")
            a.e(f"v_mul_u32_u24 v{t1}, 3641, v{t0}")
            a.e(f"v_lshrrev_b32 v{t1}, 16, v{t1}")
            a.e(f"v_mul_u32_u24 v{t2}, 18, v{t1}")
            a.e(f"v_sub_u32 v{t2}, v{t0}, v{t2}")
            a.e(f"v_mul_u32_u24 v{t3}, {pitch}, v{t1}")
            a.e(f"v_lshl_add_u32 v{VD[n]}, v{t2}, 4, v{t3}")
            if extras:
                a.e(f"v_lshrrev_b32 v{t3}, 2, v{t1}")
                a.e(f"v_mul_u32_u24 v{t3}, {32*pitch}, v{t3}")
                a.e(f"v_add_u32 v{VDX[n]}, v{VD[n]}, v{t3}")
    dma_voffs(3456)
    a.e(f"s_mul_i32 s{S_WLDS}, s{S_W}, 2304")
    a.e(f"s_mul_i32 s{S_W1B}, s{S_W}, {8*3456}")
    a.e(f"s_mul_i32 s{S_T1}, s{S_HG}, 288")
    a.e(f"s_add_u32 s{S_W1B}, s{S_W1B}, s{S_T1}")
    a.e(f"s_mul_i32 s{S_T0}, s{S_C}, 36")
    a.e(f"s_lshl_b32 s{S_T2}, s{S_R}, 3")
    a.e(f"s_add_u32 s{S_T0}, s{S_T0}, s{S_T2}")
    a.e(f"s_lshr_b32 s{S_T2}, s{S_R}, 1")
    a.e(f"s_lshl_b32 s{S_T3}, s{S_T2}, 2")
    a.e(f"s_add_u32 s{S_T0}, s{S_T0}, s{S_T3}")
    a.e(f"s_mul_i32 s{S_W2B}, s{S_T0}, 1152")
    a.e(f"s_add_u32 s{S_W2B}, s{S_W2B}, s{S_T1}")
    a.e(f"s_lshl_b32 s{S_T0}, s{S_C}, 1")
    a.e(f"s_add_u32 s{S_T0}, s{S_T0}, s{S_T2}")
    a.e(f"s_mul_i32 s{S_T0}, s{S_T0}, 144")
    a.e(f"s_and_b32 s{S_T2}, s{S_R}, 1")
    a.e(f"s_mul_i32 s{S_T2}, s{S_T2}, 72")
    a.e(f"s_add_u32 s{S_T0}, s{S_T0}, s{S_T2}")
    a.e(f"s_add_u32 s{S_T0}, s{S_T0}, 16")
    a.e(f"s_mul_i32 s{S_W2X}, s{S_T0}, 1152")
    a.e(f"s_add_u32 s{S_W2X}, s{S_W2X}, s{S_T1}")
    def rd_bases():
        a.e(f"v_lshrrev_b32 v{t0}, 2, v{V_LANE}")
        a.e(f"v_mul_u32_u24 v{t0}, 288, v{t0}")
        a.e(f"v_and_b32 v{t1}, 3, v{V_LANE}")
        a.e(f"v_lshl_add_u32 v{t2}, v{t1}, 3, v{t0}")
        a.e(f"s_mul_i32 s{S_T0}, s{S_C}, 144")
        a.e(f"v_add_u32 v{V_RD}, s{S_T0}, v{t2}")
        a.e(f"v_mul_u32_u24 v{t1}, 72, v{t1}")
        a.e(f"v_add3_u32 v{V_RD+3}, v{t0}, v{t1}, 32")
        for k in (1, 2):
            a.e(f"v_add_u32 v{V_RD+k}, {49152*k}, v{V_RD}")
            a.e(f"v_add_u32 v{V_RD+3+k}, {49152*k}, v{V_RD+3}")
    rd_bases()
    a.e(f"v_lshlrev_b32 v{V_L8}, 3, v{V_LANE}")
    a.e(f"v_mov_b32 v{V_ONE}, 0x3f803f80")
    a.e(f"s_lshl_b32 s{S_T0}, s{S_RB}, 3")
    a.e(f"s_lshl_b32 s{S_T1}, s{S_R}, 1")
    a.e(f"s_add_u32 s{S_T0}, s{S_T0}, s{S_T1}")
    a.e(f"s_add_u32 s{S_T0}, s{S_T0}, s{S_C}")
    a.e(f"s_mov_b32 s{S_RT0}, s{S_T0}")
    a.e(f"s_xor_b32 s{S_RT1}, s{S_T0}, 1")
    a.e(f"s_lshl_b32 s{S_HB}, s{S_HG}, 3")
    a.e(f"s_lshl_b32 s{S_T1}, s{S_C}, 2")
    a.e(f"s_add_u32 s{S_HB}, s{S_HB}, s{S_T1}")
    a.e(f"s_lshl_b32 s{S_HB}, s{S_HB}, 16")
    a.e(f"s_lshl_b32 s{S_KS}, s{S_RB}, 2")
    a.e(f"s_add_u32 s{S_KS}, s{S_KS}, s{S_R}")
    a.e(f"s_lshl_b32 s{S_KS}, s{S_KS}, 10")
    itk = []

    def after_x():
        a.e(f"v_min_u32 v{t0}, 2, v{V_LANE}")
        a.e(f"v_sub_u32 v{t0}, s{S_RB}, v{t0}")
        a.e(f"v_max_i32 v{t0}, 0, v{t0}")
        a.e(f"v_lshlrev_b32 v{t0}, 2, v{t0}")
        itk.append(G.init_issue(a, t0, t1))
    G.layernorm(a, xtk, after_x=after_x, after_wait=None if G.FLAG('EARLYW') else after_wait)
    stamp(a, 'f')

    dtk = {}
    SEC = {0: 1152, 1: 2304, 2: 0}

    def dma(Gs, n):
        if Gs >= 37 or Gs == 27:
            return
        p, s = (Gs // 9, Gs % 9) if Gs < 27 else (3, Gs - 28)
        a.e(f"s_add_u32 m0, s{S_WLDS}, {(Gs % NS)*SB + n*1024}")
        if p < 3:
            a.e(f"s_add_u32 s{S_T3}, s{S_W1B}, {s*64*3456 + SEC[p]}")
            v, rs = VD[n], R_W1
        elif s < 8:
            a.e(f"s_add_u32 s{S_T3}, s{S_W2B}, {s*72*1152}")
            v, rs = VD[n], R_W2
        else:
            a.e(f"s_mov_b32 s{S_T3}, s{S_W2X}")
            v, rs = VDX[n], R_W2
        if n == 2:
            a.e("s_mov_b64 exec, 0xffff")
        dtk[Gs] = a.e(f"buffer_load_dwordx4 v{v}, {sr(rs,4)}, s{S_T3} offen lds")
        if n == 2:
            a.e("s_mov_b64 exec, -1")

    def acc(t, rho):
        return ACC + (t * 2 + rho) * 4 if t < 4 else ACC + 32

    TOFF = (0, 40, 72, 112)

    def gemm_pass(p, issue_next, extra_wait=None, after_bar=None, hooks=None):
        swap = (p == 1)
        frags = []
        for ks in range(18):
            Gs = p * 9 + ks // 2 + (1 if p == 3 else 0)
            base = (Gs % NS) * SB + (ks & 1) * 9216
            for t in range(5):
                A = base + (TOFF[t] if t < 4 else 0)
                k = A // 49152
                vb = V_RD + k + (3 if t == 4 else 0)
                im = A - 49152 * k

                def mk(ac, b, first):
                    if swap:
                        return lambda r: f"v_mfma_f32_16x16x32_bf16 {vr(ac,4)}, {vr(b,4)}, {vr(r,4)}, {'0' if first else vr(ac,4)}"
                    return lambda r: f"v_mfma_f32_16x16x32_bf16 {vr(ac,4)}, {vr(r,4)}, {vr(b,4)}, {'0' if first else vr(ac,4)}"
                frags.append(dict(stage=Gs, first=(ks % 2 == 0 and t == 0), rd=[(vb, im), (vb, im + 4608)],
                                  mf=[mk(acc(t, rho), X(rho, ks), ks == 0) for rho in range(2 if t < 4 else 1)]))
        fill = {}
        for s in range(9):
            tgt = p * 9 + s + NS - 2
            if tgt >= (p + 1) * 9 and not issue_next:
                continue
            if p == 3:
                tgt += 1
            n0 = max(s * 10 - PD + 2, 0)
            for n in range(3):
                fill.setdefault(n0 + 2 * n, []).append(lambda tgt=tgt, n=n: dma(tgt, n))

        for n_, fn in (hooks or {}).items():
            fill.setdefault(n_, []).extend(fn)

        def on_stage(Gs):
            tk = dtk[Gs]
            if extra_wait and Gs in extra_wait:
                tk = max(tk, extra_wait[Gs])
            a.wait_vm(tk)
            a.e("s_barrier")
            if after_bar and Gs in after_bar:
                after_bar[Gs]()
        G.run_stream(a, frags, fill, on_stage)

    def pack_pairs(name):
        a.e(f"s_cmp_eq_u32 s{S_C}, 0")
        a.e(f"s_cbranch_scc0 L_pp_{name}1")
        for cc in range(2):
            if cc:
                a.e(f"s_branch L_pp_{name}x")
                a.raw(f"L_pp_{name}1:")
                a.e("s_nop 7")
            for t in range(4):
                A, B = acc(t, 0), acc(t, 1)
                if cc == 0:
                    a.e(f"v_cvt_pk_bf16_f32 v{A}, v{A}, v{A+1}")
                    a.e(f"v_cvt_pk_bf16_f32 v{A+1}, v{A+2}, v{A+3}")
                    a.e(f"v_cvt_pk_bf16_f32 v{A+2}, v{B}, v{B+1}")
                    a.e(f"v_cvt_pk_bf16_f32 v{A+3}, v{B+2}, v{B+3}")
                else:
                    a.e(f"v_cvt_pk_bf16_f32 v{A+3}, v{A+2}, v{A+3}")
                    a.e(f"v_cvt_pk_bf16_f32 v{A+2}, v{A}, v{A+1}")
                    a.e(f"v_cvt_pk_bf16_f32 v{A}, v{B}, v{B+1}")
                    a.e(f"v_cvt_pk_bf16_f32 v{A+1}, v{B+2}, v{B+3}")
        a.raw(f"L_pp_{name}x:")

    def store_pairs(base):
        for t in range(4):
            a.e(f"s_add_u32 s{S_T0}, s{S_KS}, s{S_HB}")
            a.e(f"s_add_u32 s{S_T0}, s{S_T0}, {base + t*65536}")
            a.e(f"buffer_store_dwordx4 {vr(acc(t,0),4)}, v{V_L16}, {sr(R_WS,4)}, s{S_T0} offen sc1")

    def epi_kq(base0, basex, scale):
        pack_pairs("k")
        store_pairs(base0)
        A = acc(4, 0)
        a.e(f"v_cvt_pk_bf16_f32 v{A}, v{A}, v{A+1}")
        a.e(f"v_cvt_pk_bf16_f32 v{A+1}, v{A+2}, v{A+3}")
        a.e(f"s_lshl_b32 s{S_T0}, s{S_RT0}, 9")
        a.e(f"s_lshl_b32 s{S_T1}, s{S_HG}, 16")
        a.e(f"s_add_u32 s{S_T0}, s{S_T0}, s{S_T1}")
        a.e(f"s_add_u32 s{S_T0}, s{S_T0}, {basex}")
        return a.e(f"buffer_store_dwordx2 {vr(A,2)}, v{V_L8}, {sr(R_WS,4)}, s{S_T0} offen sc1")

    def epi_v():
        pack_pairs("v")
        store_pairs(G.V0)
        A = acc(4, 0)
        a.e(f"v_cvt_pk_bf16_f32 v{A}, v{A}, v{A+1}")
        a.e(f"v_cvt_pk_bf16_f32 v{A+1}, v{A+2}, v{A+3}")
        a.e(f"v_and_b32 v{t0}, 8, v{V_LANE}")
        a.e(f"v_cmp_eq_u32 vcc, 0, v{t0}")
        a.e(f"v_cndmask_b32 v{A+2}, v{V_ONE}, v{A}, vcc")
        a.e(f"v_cndmask_b32 v{A+3}, v{V_ONE}, v{A+1}, vcc")
        a.e(f"v_cndmask_b32 v{A}, v{A}, v{V_ONE}, vcc")
        a.e(f"v_cndmask_b32 v{A+1}, v{A+1}, v{V_ONE}, vcc")
        a.e(f"s_lshl_b32 s{S_T0}, s{S_C}, 3")
        a.e(f"s_add_u32 s{S_T0}, s{S_T0}, s{S_KS}")
        a.e(f"s_lshl_b32 s{S_T1}, s{S_HG}, 17")
        a.e(f"s_add_u32 s{S_T0}, s{S_T0}, s{S_T1}")
        a.e(f"s_add_u32 s{S_T0}, s{S_T0}, {G.VX}")
        a.e(f"buffer_store_dwordx2 {vr(A+2,2)}, v{V_L16}, {sr(R_WS,4)}, s{S_T0} offen sc1")
        a.e(f"s_add_u32 s{S_T0}, s{S_T0}, 65536")
        tk = a.e(f"buffer_store_dwordx2 {vr(A,2)}, v{V_L16}, {sr(R_WS,4)}, s{S_T0} offen sc1")
        return tk

    def set_flag(val, name):
        a.e(f"s_cmp_eq_u32 s{S_W}, 0")
        a.e(f"s_cbranch_scc0 L_fl_{name}")
        a.e(f"s_lshl_b32 s{S_T0}, s{S_RB}, 11")
        a.e(f"s_lshl_b32 s{S_T1}, s{S_HG}, 2")
        a.e(f"s_add_u32 s{S_T0}, s{S_T0}, s{S_T1}")
        a.e(f"s_add_u32 s{S_T0}, s{S_T0}, {G.FLG}")
        a.e(f"v_mov_b32 v{t0}, {val}")
        a.e(f"v_mov_b32 v{t1}, 0")
        a.e("s_mov_b64 exec, 1")
        a.e_untracked(f"buffer_store_dword v{t0}, v{t1}, {sr(R_WS,4)}, s{S_T0} offen sc1")
        a.e("s_mov_b64 exec, -1")
        a.raw(f"L_fl_{name}:")

    def poll(name, vaddr, vtmp, want, one_wave=True):
        if one_wave:
            a.e(f"s_cmp_eq_u32 s{S_W}, 0")
            a.e(f"s_cbranch_scc0 L_poll_{name}_x")
        a.e(f"s_mov_b32 s{S_T2}, 0")
        a.e(f"s_mov_b32 s{S_T0}, {G.FLG}")
        a.raw(f"L_poll_{name}:")
        a.e_untracked(f"buffer_load_dword v{vtmp}, v{vaddr}, {sr(R_WS,4)}, s{S_T0} offen sc1")
        a.e(f"s_add_u32 s{S_T2}, s{S_T2}, 1")
        a.e(f"s_cmp_gt_u32 s{S_T2}, 0x40000")
        a.e(f"s_cbranch_scc1 L_poll_{name}_x")
        a.e("s_waitcnt vmcnt(0)")
        a.e(f"v_cmp_gt_u32 vcc, {want}, v{vtmp}")
        a.e(f"s_cbranch_vccz L_poll_{name}_x")
        a.e("s_sleep 2")
        a.e(f"s_branch L_poll_{name}")
        a.raw(f"L_poll_{name}_x:")
        if one_wave:
            a.e("s_barrier")

    for Gs in range(NS - 2):
        for n in range(3):
            dma(Gs, n)
    G.init_check(a, "a", t0, t1, itk[0])
    stamp(a, 'n')
    gemm_pass(0, True)
    stamp(a, 'o')
    epi_kq(G.K0, G.KX, False)
    stamp(a, 'p')
    gemm_pass(1, True)
    stamp(a, 'q')
    tkv = epi_v()
    stamp(a, 'r')
    order = [X(r_, s_) for s_ in range(18) for r_ in range(2)]
    want = [x_ for g_ in (8, 4, 0) for i_ in range(4) for x_ in (('k', 2 * (g_ + i_)), ('v', g_ + i_))] + \
           [('k', 2 * i_ + 1) for i_ in range(12)]
    RM = {w_: order[i_] for i_, w_ in enumerate(want)}

    def KR(k):
        return RM[('k', k)]

    def VR(v):
        return RM[('v', v)]
    TQ, MQ, CQ, QA, O0, OX, VXB = 16, 48, 52, 60, 68, 12, 92
    vNEG, vM, vT1, vT2, vOA, vOB = 86, 87, 88, 89, 90, 91
    vQ, vVX = 248, 249
    XS = 250
    vL8 = V_L8
    S_P, S_KT0 = 71, 73
    M = [4, 6, 8, 10]
    MQ0, MQ1, MVER, MODD, MP = 12, 14, 16, 18, 100
    SO = [75, 69, 70]
    LQ0, LQX, LKX, LVX = 0, 32768, 36864, 49152
    XK, XV = 86, 92
    vS1, vS2 = 250, 251

    def mk_srd(rs, off_sgpr, size=65536):
        a.e(f"s_add_u32 s{rs}, s{G.S_WS}, s{off_sgpr}")
        a.e(f"s_addc_u32 s{rs+1}, s{G.S_WS+1}, 0")
        a.e(f"s_mov_b32 s{rs+2}, {size}")
        a.e(f"s_mov_b32 s{rs+3}, 0x20000")
    tks_ = {}

    def att_setup():
        a.e(f"s_lshr_b32 s{S_P}, s{S_W}, 1")
        a.e(f"s_lshl_b32 s{S_KT0}, s{S_RB}, 3")
        a.e(f"s_sub_u32 s{S_KT0}, s{S_KT0}, 16")
        for b in range(3):
            a.e(f"s_add_u32 s{S_T0}, s{S_KT0}, {8*b}")
            a.e(f"s_lshl_b32 s{SO[b]}, s{S_T0}, 9")
            a.e(f"s_cmp_lt_i32 s{S_T0}, 0")
            a.e(f"s_cselect_b32 s{SO[b]}, 0x70000000, s{SO[b]}")
        a.e(f"s_lshl_b32 s{S_T0}, s{S_HG}, 16")
        a.e(f"s_add_u32 s{S_T0}, s{S_T0}, {G.KX}")
        mk_srd(R_X, S_T0)
        a.e(f"s_lshl_b32 s{S_T0}, s{S_HG}, 1")
        a.e(f"s_add_u32 s{S_T0}, s{S_T0}, s{S_C}")
        a.e(f"s_lshl_b32 s{S_T0}, s{S_T0}, 16")
        a.e(f"s_add_u32 s{S_T0}, s{S_T0}, {G.VX}")
        mk_srd(R_W1, S_T0)
        a.e(f"s_lshl_b32 s{S_T1}, s{S_HG}, 3")
        a.e(f"s_add_u32 s{S_T1}, s{S_T1}, s{S_W}")
        a.e(f"s_lshl_b32 s{S_T1}, s{S_T1}, 16")
        for rs, base in ((R_A, G.K0), (R_B, G.V0)):
            a.e(f"s_add_u32 s{S_T0}, s{S_T1}, {base}")
            mk_srd(rs, S_T0)
        a.e(f"s_lshl_b32 s{S_T2}, s{S_W}, 9")
        a.e(f"v_add_u32 v{vS1}, s{S_T2}, v{vL8}")
        a.e(f"s_lshl_b32 s{S_T2}, s{S_R}, 10")
        a.e(f"v_add_u32 v{vS2}, s{S_T2}, v{V_L16}")

    def att_poll():
        a.e(f"v_and_b32 v{t0}, 1, v{V_LANE}")
        a.e(f"v_add_u32 v{t0}, 1, v{t0}")
        a.e(f"v_sub_u32 v{t0}, s{S_RB}, v{t0}")
        a.e(f"v_max_i32 v{t0}, 0, v{t0}")
        a.e(f"v_lshlrev_b32 v{t0}, 11, v{t0}")
        a.e(f"s_lshl_b32 s{S_T0}, s{S_HG}, 2")
        a.e(f"v_add_u32 v{t0}, s{S_T0}, v{t0}")
        poll("kv", t0, t1, 1, one_wave=False)

    def lsh(b):
        def f():
            a.e(f"buffer_load_dwordx2 {vr(XK+2*b,2)}, v{vS1}, {sr(R_X,4)}, s{SO[b]} offen sc1")
            tks_['sh'] = a.e(f"buffer_load_dwordx4 {vr(XV+4*b,4)}, v{vS2}, {sr(R_W1,4)}, s{SO[b]} offen sc1")
        return f

    def lk(k):
        def f():
            tks_['kv'] = a.e(f"buffer_load_dwordx4 {vr(KR(k),4)}, v{V_L16}, {sr(R_A,4)}, s{SO[k//8]} offen offset:{(k%8)*512} sc1")
        return f

    def lv(k):
        def f():
            tks_['kv'] = a.e(f"buffer_load_dwordx4 {vr(VR(k),4)}, v{V_L16}, {sr(R_B,4)}, s{SO[k//4]} offen offset:{(k%4)*1024} sc1")
        return f
    FST = int(os.environ.get("FST", "3"))
    KSP = int(os.environ.get("KSP", "12"))
    lds_ = [(lk if w_[0] == 'k' else lv)(w_[1]) for w_ in want[:24]]
    n_own = FST * 10 - PD + 2
    hooks = {n_own: [att_setup]}
    rest = []
    pos = n_own + 1
    for i_, f_ in enumerate([lsh(2)] + lds_[:8]):
        free_at = ((i_ - 1) // 2 + 1) * 5 + 1
        pos = max(pos + 1, free_at)
        hooks.setdefault(pos, []).append(f_)
    hooks.setdefault(KSP * 5, []).append(att_poll)
    pos = KSP * 5
    for i_, f_ in enumerate([lsh(1), lsh(0)] + lds_[8:]):
        qi = i_ - 2 + 8
        free_at = (qi // 2 + 1) * 5 + 1 if i_ >= 2 else 0
        pos = max(pos + 1, free_at)
        if pos < 89:
            hooks.setdefault(pos, []).append(f_)
        else:
            rest.append(f_)
    gemm_pass(2, False, extra_wait={18 + FST: tkv}, after_bar={18 + FST: lambda: set_flag(1, "kv")}, hooks=hooks)
    for f_ in rest:
        f_()
    tsh = tks_['sh']
    tvv = [tks_['kv']]
    for t in range(5):
        for rho in range(2 if t < 4 else 1):
            A = acc(t, rho)
            for i in range(4):
                a.e(f"v_mul_f32 v{A+i}, 0x{qs:x}, v{A+i}")
            a.e(f"v_cvt_pk_bf16_f32 v{A}, v{A}, v{A+1}")
            a.e(f"v_cvt_pk_bf16_f32 v{A+1}, v{A+2}, v{A+3}")
    a.e(f"s_and_b32 s{S_T0}, s{S_RT0}, 7")
    a.e(f"s_lshl_b32 s{S_T0}, s{S_T0}, 9")
    a.e(f"v_add_u32 v252, s{S_T0}, v{vL8}")
    a.e(f"s_lshl_b32 s{S_T1}, s{S_C}, 14")
    a.e(f"v_add_u32 v253, s{S_T1}, v252")
    a.e(f"v_xor_b32 v254, 512, v253")
    stamp(a, 'i')
    a.wait_lg0()
    a.e("s_barrier")
    for t in range(4):
        for rho in range(2):
            a.e(f"ds_write_b64 v{253 if rho == 0 else 254}, {vr(acc(t,rho),2)} offset:{LQ0 + t*4096}")
    a.e(f"ds_write_b64 v252, {vr(acc(4,0),2)} offset:{LQX}")
    a.e(f"s_mul_i32 s{S_T1}, s{S_C}, 12288")
    a.e(f"v_add_u32 v{vS2}, s{S_T1}, v{vS2}")
    a.wait_vm(tsh)
    for b in range(3):
        a.e(f"ds_write_b64 v{vS1}, {vr(XK+2*b,2)} offset:{LKX + b*4096}")
        a.e(f"ds_write_b128 v{vS2}, {vr(XV+4*b,4)} offset:{LVX + b*4096}")
    a.wait_lg0()
    a.e(f"v_mov_b32 v{vNEG}, 0xf149f2ca")
    vTH = 253
    a.e(f"v_mov_b32 v{vTH}, {os.environ.get('LZT', '0x71800000')}")
    a.e(f"v_and_b32 v{vT1}, 15, v{V_LANE}")
    a.e(f"v_lshrrev_b32 v{vT2}, 4, v{V_LANE}")
    a.e(f"v_cmp_eq_u32 {sr(MP,2)}, s{S_P}, v{vT2}")
    a.e(f"v_lshlrev_b32 v{vT2}, 2, v{vT2}")
    for i in range(4):
        a.e(f"v_add_u32 v{vM}, {i}, v{vT2}")
        a.e(f"v_cmp_gt_u32 {sr(M[i],2)}, v{vM}, v{vT1}")
    a.e(f"s_cmp_lt_u32 s{S_P}, 2")
    a.e(f"s_cselect_b64 {sr(MVER,2)}, -1, 0")
    a.e(f"s_bitcmp0_b32 s{S_W}, 0")
    a.e(f"s_cselect_b64 {sr(MQ0,2)}, {sr(MP,2)}, 0")
    a.e(f"s_cselect_b64 {sr(MQ1,2)}, 0, {sr(MP,2)}")
    a.e(f"s_cselect_b64 {sr(MODD,2)}, 0, -1")
    a.e(f"s_lshl_b32 s{S_T0}, s{S_W}, 12")
    a.e(f"v_add_u32 v{vQ}, s{S_T0}, v{vL8}")
    a.e(f"s_mul_i32 s{S_T0}, s{S_C}, 12288")
    a.e(f"s_add_u32 s{S_T0}, s{S_T0}, {LVX}")
    a.e(f"v_add_u32 v{vVX}, s{S_T0}, v{V_L16}")
    S_OA, S_OB = 72, 74
    vO = 252
    a.e(f"s_mul_i32 s{S_T0}, s{S_RB}, {4*36864}")
    a.e(f"s_add_u32 s{S_T0}, s{S_T0}, {G.OF}")
    a.e(f"s_lshl_b32 s{S_T1}, s{S_HG}, 3")
    a.e(f"s_add_u32 s{S_T1}, s{S_T1}, s{S_W}")
    a.e(f"s_lshl_b32 s{S_T1}, s{S_T1}, 10")
    a.e(f"s_add_u32 s{S_OA}, s{S_T1}, s{S_T0}")
    a.e(f"s_add_u32 s{S_T1}, s{S_HG}, 32")
    a.e(f"s_lshl_b32 s{S_T1}, s{S_T1}, 10")
    a.e(f"s_and_b32 s{S_T3}, s{S_W}, 1")
    a.e(f"s_lshl_b32 s{S_T2}, s{S_T3}, 2")
    a.e(f"s_add_u32 s{S_T1}, s{S_T1}, s{S_T2}")
    a.e(f"s_add_u32 s{S_OB}, s{S_T1}, s{S_T0}")
    a.e(f"v_bfe_u32 v{vT2}, v{V_LANE}, 4, 1")
    a.e(f"v_lshlrev_b32 v{vO}, 9, v{vT2}")
    a.e(f"v_lshl_add_u32 v{vO}, v{vT1}, 4, v{vO}")
    a.e(f"v_lshrrev_b32 v{vT2}, 5, v{V_LANE}")
    a.e(f"v_lshl_add_u32 v{vO}, v{vT2}, 3, v{vO}")
    a.wait_lg0()
    a.e("s_barrier")
    a.wait_vm(tvv[-1])
    for k in range(0, 24, 2):
        a.e(f"v_mov_b32 v{KR(k+1)}, v{KR(k)+2}")
        a.e(f"v_mov_b32 v{KR(k+1)+1}, v{KR(k)+3}")
    for k in range(24):
        a.e(f"ds_read_b64 {vr(KR(k)+2,2)}, v{vL8} offset:{LKX + k*512}")

    def ld_q(j):
        q = QA + 4 * (j & 1)
        a.e(f"ds_read_b64 {vr(q,2)}, v{vQ} offset:{LQ0 + j*512}")
        return a.e(f"ds_read_b64 {vr(q+2,2)}, v{vL8} offset:{LQX + j*512}")
    ld_q(0)
    a.wait_vm(tvv[-1])
    a.wait_lg0()
    stamp(a, 'k')
    a.e(f"s_cmp_lt_i32 s{S_KT0}, 0")
    a.e("s_cbranch_scc1 L_head_neg")

    LAZY = int(os.environ.get("LAZY", "1"))
    THR = os.environ.get("LZT", "0x41800000")
    vX1, vX2 = 250, 251
    S_RET = 67

    def core(j, neg, fast):
        o = j & 1
        q = QA + 4 * (j & 1)
        if neg:
            for b in range(2):
                a.e(f"s_cmp_eq_u32 s{SO[b]}, 0x70000000")
                a.e(f"s_cselect_b32 s{S_T0}, 0xf149f2ca, 0")
                for i in range(4):
                    a.e(f"v_mov_b32 v{CQ+4*b+i}, s{S_T0}")

        def cin(k, second):
            b = k >> 3
            if neg and b < 2:
                return vr(CQ + 4 * b, 4)
            return vr(MQ, 4) if second else "0"
        LA = 4

        def tq_(t):
            return TQ + 4 * (t % 8)

        def s1(t):
            a.e(f"v_mfma_f32_16x16x32_bf16 {vr(tq_(t),4)}, {vr(KR(j+t),4)}, {vr(q,4)}, {cin(j+t, False)}")
        tvx = {}

        def ld_vx(u):
            tvx[u] = a.e(f"ds_read_b128 {vr(VXB+4*(u%3),4)}, v{vVX} offset:{((j>>1)+u)*1024}")
        if fast:
            s1(16)
            ld_vx(0)
            ld_vx(1)
            r = tq_(16)
            for i in range(4):
                a.e(f"v_cndmask_b32 v{r+i}, v{r+i}, v{vNEG}, {sr(M[i],2)}")
            a.e(f"v_max_f32 v{vM}, v{r}, v{r+1}")
            a.e(f"v_max_f32 v{vT1}, v{r+2}, v{r+3}")
        else:
            for t in range(LA):
                s1(t)
            for t in range(17):
                if t + LA < 17:
                    s1(t + LA)
                r = tq_(t)
                if t == 0:
                    for i in range(4):
                        a.e(f"v_cndmask_b32 v{r+i}, v{vNEG}, v{r+i}, {sr(M[i],2)}")
                    a.e(f"v_max_f32 v{vM}, v{r}, v{r+1}")
                    a.e(f"v_max_f32 v{vT1}, v{r+2}, v{r+3}")
                    continue
                if t == 16:
                    for i in range(4):
                        a.e(f"v_cndmask_b32 v{r+i}, v{r+i}, v{vNEG}, {sr(M[i],2)}")
                a.e(f"v_max3_f32 v{vM}, v{vM}, v{r}, v{r+1}")
                a.e(f"v_max3_f32 v{vT1}, v{vT1}, v{r+2}, v{r+3}")
            ld_vx(0)
            ld_vx(1)
        a.e(f"v_max_f32 v{vM}, v{vM}, v{vT1}")
        a.e(f"v_mov_b32 v{vT1}, v{vM}")
        a.e(f"v_permlane32_swap_b32 v{vM}, v{vT1}")
        a.e(f"v_max_f32 v{vM}, v{vM}, v{vT1}")
        a.e(f"v_mov_b32 v{vT1}, v{vM}")
        a.e(f"v_permlane16_swap_b32 v{vM}, v{vT1}")
        a.e(f"v_max_f32 v{vM}, v{vM}, v{vT1}")
        for i in range(4):
            a.e(f"v_sub_f32 v{MQ+i}, 0, v{vM}")
        if neg:
            for b in range(2):
                for i in range(4):
                    a.e(f"v_add_f32 v{CQ+4*b+i}, v{CQ+4*b+i}, v{MQ}")

        def sq(sl):
            return TQ + 4 * (sl % 8)

        def s2m(sl):
            t = sl - o
            if 0 <= t <= 16:
                return [f"v_mfma_f32_16x16x32_bf16 {vr(sq(sl),4)}, {vr(KR(j+t),4)}, {vr(q,4)}, {cin(j+t, True)}"]
            return []

        def pvm(u):
            vs = (j >> 1) + u
            return [f"v_mfma_f32_16x16x32_bf16 {vr(O0,4)}, {vr(VR(vs),4)}, {vr(sq(2*u),4)}, {vr(O0,4) if u else '0'}",
                    f"v_mfma_f32_16x16x32_bf16 {vr(OX,4)}, {vr(VXB+4*(u%3),4)}, {vr(sq(2*u),4)}, {vr(OX,4) if u else '0'}"]
        for sl in range(4):
            for m_ in s2m(sl):
                a.e(m_)
        for u in range(9):
            mm = (pvm(u - 1) if u else []) + (s2m(2 * u + 4) + s2m(2 * u + 5) if u + 2 < 9 else [])
            if u:
                a.wait_lg(tvx[u - 1])
            vv = []
            for h in range(2):
                sl = 2 * u + h
                t = sl - o
                if not 0 <= t <= 16:
                    continue
                r = sq(sl)
                if t == 0:
                    vv += [f"v_cndmask_b32 v{r+i}, v{vNEG}, v{r+i}, {sr(M[i],2)}" for i in range(4)]
                if t == 16:
                    vv += [f"v_cndmask_b32 v{r+i}, v{r+i}, v{vNEG}, {sr(M[i],2)}" for i in range(4)]
                vv += [f"v_exp_f32 v{r+i}, v{r+i}" for i in range(4)]
            for h in range(2):
                sl = 2 * u + h
                t = sl - o
                for k2 in range(2):
                    d = sq(2 * u) + 2 * h + k2
                    vv.append(f"v_cvt_pk_bf16_f32 v{d}, v{sq(sl)+2*k2}, v{sq(sl)+2*k2+1}" if 0 <= t <= 16 else f"v_mov_b32 v{d}, 0")
            step = max(1, len(vv) // max(1, len(mm)))
            for k_, v_ in enumerate(vv):
                if mm and k_ % step == 0:
                    a.e(mm.pop(0))
                a.e(v_)
            for m_ in mm:
                a.e(m_)
            if u + 2 < 9:
                ld_vx(u + 2)
        a.wait_lg(tvx[8])
        for m_ in pvm(8):
            a.e(m_)

    def heads(neg):
        sfx = "_neg" if neg else ""
        a.raw(f"L_head{sfx}:")
        a.barrier_hist()
        a.e(f"s_mov_b32 s{S_RET}, {int(neg)}")
        tq = None
        for j in range(8):
            q = QA + 4 * (j & 1)
            if tq is not None:
                a.wait_lg(tq)
            a.e(f"v_cndmask_b32 v{q+2}, 0, v{q+2}, {sr(MQ0,2)}")
            a.e(f"v_cndmask_b32 v{q+3}, 0, v{q+3}, {sr(MQ1,2)}")
            if j < 7:
                tq = ld_q(j + 1)
            core(j, neg, LAZY)
            if LAZY:
                a.e(f"v_add_f32 v{vX1}, |v{O0}|, |v{O0+1}|")
                a.e(f"v_add_f32 v{vX2}, |v{O0+2}|, |v{O0+3}|")
                a.e(f"v_add_f32 v{vT1}, |v{OX}|, |v{OX+1}|")
                a.e(f"v_add_f32 v{vT2}, |v{OX+2}|, |v{OX+3}|")
                a.e(f"v_add_f32 v{vX1}, v{vX1}, v{vX2}")
                a.e(f"v_add_f32 v{vT1}, v{vT1}, v{vT2}")
                a.e(f"v_add_f32 v{vX1}, v{vX1}, v{vT1}")
                a.e(f"v_cmp_nle_f32 vcc, v{vX1}, v{vTH}")
                a.e(f"s_cbranch_vccnz L_slowq{j}")
                a.raw(f"L_cont{sfx}{j}:")
            a.e(f"v_mov_b32 v{vT1}, v{OX}")
            a.e(f"v_mov_b32 v{vT2}, v{OX}")
            a.e(f"v_permlane32_swap_b32 v{vT1}, v{vT2}")
            a.e(f"v_cndmask_b32 v{vT1}, v{vT1}, v{vT2}, {sr(MVER,2)}")
            a.e(f"v_rcp_f32 v{vT1}, v{vT1}")
            a.e(f"v_cndmask_b32 v{OX}, v{OX}, v{OX+2}, {sr(MODD,2)}")
            a.e(f"v_cndmask_b32 v{OX+1}, v{OX+1}, v{OX+3}, {sr(MODD,2)}")
            for i in range(4):
                a.e(f"v_mul_f32 v{O0+i}, v{O0+i}, v{vT1}")
            a.e(f"v_mul_f32 v{OX}, v{OX}, v{vT1}")
            a.e(f"v_mul_f32 v{OX+1}, v{OX+1}, v{vT1}")
            a.e(f"v_cvt_pk_bf16_f32 v{vOA}, v{O0}, v{O0+1}")
            a.e(f"v_cvt_pk_bf16_f32 v{vOB}, v{O0+2}, v{O0+3}")
            a.e(f"v_cvt_pk_bf16_f32 v{vT2}, v{OX}, v{OX+1}")
            a.e(f"s_add_u32 s{S_T1}, s{S_OA}, {(j>>1)*36864 + (j&1)*256}")
            a.e(f"buffer_store_dwordx2 {vr(vOA,2)}, v{vO}, {sr(R_WS,4)}, s{S_T1} offen sc1")
            a.e(f"s_add_u32 s{S_T1}, s{S_OB}, {(j>>1)*36864 + (j&1)*256}")
            a.e(f"s_mov_b64 exec, {sr(MP,2)}")
            a.e(f"buffer_store_dword v{vT2}, v{vO}, {sr(R_WS,4)}, s{S_T1} offen sc1")
            a.e("s_mov_b64 exec, -1")
        a.e("s_branch L_att_done")
    heads(False)
    heads(True)
    if LAZY:
        lg_save = (a.lg, a.lg_done)
        for j in range(8):
            a.raw(f"L_slowq{j}:")
            a.barrier_hist()
            a.e("s_nop 7")
            a.e("s_nop 7")
            a.wait_lg0()
            core(j, True, False)
            a.e("s_nop 7")
            a.e("s_nop 3")
            a.e(f"s_cmp_eq_u32 s{S_RET}, 0")
            a.e(f"s_cbranch_scc1 L_cont{j}")
            a.e(f"s_branch L_cont_neg{j}")
    ool = []
    a.raw("L_att_done:")
    a.barrier_hist()
    a.e("s_setprio 0")
    stamp(a, 'j')
    def assign():
        a.e(f"s_lshl_b32 s{G.T_CE}, s{S_HG}, 6")
        a.e(f"s_lshr_b32 s{S_T0}, s{S_HG}, 1")
        a.e(f"s_add_u32 s{S_T0}, s{S_T0}, 4")
        a.e(f"s_lshl_b32 s{G.T_CL}, s{S_T0}, 6")
        a.e(f"s_and_b32 s{S_T0}, s{S_HG}, 1")
        a.e(f"s_lshl_b32 s{S_T0}, s{S_T0}, 1")
        a.e(f"s_and_b32 s{S_T1}, s{S_W}, 1")
        a.e(f"s_add_u32 s{S_T0}, s{S_T0}, s{S_T1}")
        a.e(f"s_cmp_eq_u32 s{S_C}, 0")
        a.e(f"s_cselect_b32 s{G.T_TR}, s{S_R}, s{S_T0}")
        a.e(f"s_cmp_lt_u32 s{S_W}, 6")
        a.e(f"s_cselect_b32 s{G.T_ACT}, 1, 0")

    def between():
        stamp(a, 'l')
        set_flag(2, "o")
    G.tail(a, "a", assign, between, late_c1=False)
    stamp(a, 'h')
    G.stamp_out(a)
    a.e("s_endpgm")
    for t_ in ool:
        a.raw(t_)
```

```python
import sys
from asmlib import Asm, vr, sr

HS = 0x0000000
PART = 0x1200000
PSZ = 2359296
QF = 0x3000000
K0 = 0x3400000
V0 = 0x3600000
KX = 0x3800000
VX = 0x3840000
OF = 0x3900000
FLG = 0x3E00000
WS_SZ = 0x4000000
XBASE = 16384
LDS_SZ = 163840
LOG2E = 0x3FB8AA3B
NLOG2E = 0xBFB8AA3B

S_X, S_WQKV, S_WO, S_BX, S_WG, S_WU, S_WD, S_OUT, S_DBG, S_WS = 4, 6, 8, 10, 12, 14, 16, 18, 20, 22
R_X, R_W1, R_W2, R_WS, R_DBG, R_A, R_B = 24, 28, 32, 36, 40, 44, 48
S_W, S_R, S_C, S_RB, S_SPLIT, S_T0, S_T1, S_T2, S_T3 = 52, 53, 54, 55, 56, 57, 58, 59, 60
S_WLDS, S_W1B, S_W2B, S_H0, S_H1, S_P0, S_P1, S_NL2E, S_XREG, S_XPAR = 61, 62, 63, 64, 65, 66, 67, 68, 69, 70
S_HG = S_SPLIT

V_LANE, V_L16, V_D1, V_D2 = 1, 2, 3, 4
V_RD = 5
V_T = 11
FR = 16
NFR = int(__import__("os").environ.get("NFR", "6"))
PD = NFR - 2
ACC = 40
XN = 104


def X(rho, s):
    return XN + (rho * 18 + s) * 4


def X32(s):
    return XN + s * 4


import os
STAMP = int(os.environ.get("STAMP", "0"))
_DEF = {"EARLYW": "1"}
def FLAG(n):
    return int(os.environ.get(n, _DEF.get(n, "0")))
MAPC = int(os.environ.get("MAPC", "0"))
_nst = [0]
STSEL = os.environ.get("STSEL", "a,b,f,g,h").split(",")
def stamp(a, name="a"):
    if not STAMP or name not in STSEL:
        return
    k = _nst[0]; _nst[0] += 1
    a.e(f"s_memtime s[{76+4*k}:{77+4*k}]")
    a.e(f"s_memrealtime s[{78+4*k}:{79+4*k}]")
    a.wait_lg0()

def stamp_out(a):
    if not STAMP:
        return
    n = _nst[0]; _nst[0] = 0
    a.e(f"s_lshl_b32 s{S_T0}, s2, 6")
    a.e(f"s_add_u32 s{S_T0}, s{S_T0}, 0x3F00000")
    a.e(f"v_mov_b32 v20, 0")
    a.e(f"s_cmp_eq_u32 s{S_W}, {os.environ.get('STW', '0')}")
    a.e(f"s_cbranch_scc0 L_nostamp{id(a)}_{a.nins}")
    lab = a.out[-1].split()[-1]
    for k in range(n):
        a.e(f"v_mov_b32 v16, s{76+4*k}")
        a.e(f"v_mov_b32 v17, s{78+4*k}")
        a.e(f"buffer_store_dwordx2 v[16:17], v20, {sr(R_WS,4)}, s{S_T0} offen offset:{8*k}")
        a.e("s_nop 2")
    if FLAG("STDBG"):
        a.e(f"s_and_b32 s{S_T0}, s2, 63")
        a.e(f"s_cmp_eq_u32 s{S_T0}, 9")
        a.e(f"s_cbranch_scc0 {lab}")
        a.e(f"s_lshr_b32 s{S_T0}, s2, 6")
        a.e(f"s_cmp_eq_u32 s{S_T0}, 0")
        a.e(f"s_cselect_b32 s{S_T1}, 0, 32")
        a.e(f"s_add_u32 s{S_T0}, s{S_T0}, 1")
        a.e(f"s_and_b32 s{S_T0}, s{S_T0}, 2")
        a.e(f"s_cbranch_scc1 {lab}")
        for k in range(1, n):
            a.e(f"s_sub_u32 s{S_T0}, s{78+4*k}, s78")
            a.e(f"v_mov_b32 v16, s{S_T0}")
            a.e(f"buffer_store_dword v16, v20, {sr(R_DBG,4)}, s{S_T1} offen offset:{4*(k-1)}")
            a.e("s_nop 2")
    a.label(lab)


def srd(a, d, base, nbytes):
    a.e(f"s_mov_b32 s{d}, s{base}")
    a.e(f"s_mov_b32 s{d+1}, s{base+1}")
    a.e(f"s_mov_b32 s{d+2}, {nbytes}")
    a.e(f"s_mov_b32 s{d+3}, 0x20000")


def bf16_round(a, v, tmp=None):
    a.e(f"v_cvt_pk_bf16_f32 v{v}, v{v}, v{v}")
    a.e(f"v_lshlrev_b32 v{v}, 16, v{v}")


def x_stage_issue(a):
    t0, t1, t2 = V_T, V_T + 1, V_T + 2
    a.e(f"v_lshrrev_b32 v{t0}, 3, v{V_LANE}")
    a.e(f"v_and_b32 v{t1}, 7, v{V_LANE}")
    a.e(f"v_lshrrev_b32 v{t2}, 1, v{t0}")
    a.e(f"v_xor_b32 v{t1}, v{t1}, v{t2}")
    a.e(f"v_mul_u32_u24 v{t0}, 1152, v{t0}")
    a.e(f"v_lshl_add_u32 v{t2}, v{t1}, 4, v{t0}")
    a.e(f"v_xor_b32 v{t1}, 4, v{t1}")
    a.e(f"v_lshl_add_u32 v{t1}, v{t1}, 4, v{t0}")
    a.e(f"v_add_u32 v{t1}, {8*1152-1024}, v{t1}")
    a.e(f"s_lshl_b32 s{S_T0}, s{S_RB}, 7")
    a.e(f"s_lshl_b32 s{S_T1}, s{S_R}, 5")
    a.e(f"s_add_u32 s{S_T0}, s{S_T0}, s{S_T1}")
    a.e(f"s_lshl_b32 s{S_T1}, s{S_C}, 4")
    a.e(f"s_add_u32 s{S_T0}, s{S_T0}, s{S_T1}")
    a.e(f"s_mul_i32 s{S_T0}, s{S_T0}, 1152")
    a.e(f"s_lshl_b32 s{S_T1}, s{S_R}, 1")
    a.e(f"s_add_u32 s{S_T2}, s{S_T1}, s{S_C}")
    a.e(f"s_mul_i32 s{S_XREG}, s{S_T2}, 18432")
    a.e(f"s_add_u32 s{S_XREG}, s{S_XREG}, {XBASE}")
    a.e(f"s_xor_b32 s{S_T2}, s{S_T2}, 1")
    a.e(f"s_mul_i32 s{S_XPAR}, s{S_T2}, 18432")
    a.e(f"s_add_u32 s{S_XPAR}, s{S_XPAR}, {XBASE}")
    tk = None
    a.e(f"s_lshr_b32 s{S_T2}, s2, {5 if MAPC else 6}")
    a.e(f"s_lshl_b32 s{S_T2}, s{S_T2}, {7 if MAPC else 8}")
    for cb in range(9):
        a.e(f"s_lshl_b32 s{S_T3}, s{S_T2}, 4")
        a.e(f"s_add_u32 m0, s{S_XREG}, s{S_T3}")
        a.e(f"s_add_u32 s{S_T1}, s{S_T0}, s{S_T2}")
        a.e(f"buffer_load_dwordx4 v{t2}, {sr(R_X,4)}, s{S_T1} offen lds")
        tk = a.e(f"buffer_load_dwordx4 v{t1}, {sr(R_X,4)}, s{S_T1} offen offset:1024 lds")
        if cb < 8:
            a.e(f"s_add_u32 s{S_T2}, s{S_T2}, 128")
            a.e(f"s_cmp_eq_u32 s{S_T2}, 1152")
            a.e(f"s_cselect_b32 s{S_T2}, 0, s{S_T2}")
    return tk


def init_issue(a, vaddr, vtmp):
    return a.e(f"buffer_load_dword v{vtmp}, v{vaddr}, {sr(R_DBG,4)}, 0 offen offset:64 sc1")


def init_check(a, name, vaddr, vtmp, tk):
    a.wait_vm(tk)
    a.e(f"v_cmp_eq_u32 vcc, 0, v{vtmp}")
    a.e(f"s_cbranch_vccz L_ic_{name}_x")
    a.e(f"s_mov_b32 s{S_T2}, 0")
    a.raw(f"L_ic_{name}:")
    a.e_untracked(f"buffer_load_dword v{vtmp}, v{vaddr}, {sr(R_DBG,4)}, 0 offen offset:64 sc1")
    a.e(f"s_add_u32 s{S_T2}, s{S_T2}, 1")
    a.e(f"s_cmp_gt_u32 s{S_T2}, 0x40000")
    a.e(f"s_cbranch_scc1 L_ic_{name}_x")
    a.e("s_waitcnt vmcnt(0)")
    a.e(f"v_cmp_eq_u32 vcc, 0, v{vtmp}")
    a.e(f"s_cbranch_vccnz L_ic_{name}")
    a.raw(f"L_ic_{name}_x:")


def layernorm(a, xtk, after_x=None, m32=False, after_wait=None):
    T = ACC
    m, q = T, T + 1
    a.e(f"v_and_b32 v{m}, 15, v{V_LANE}")
    a.e(f"v_lshrrev_b32 v{q}, 4, v{V_LANE}")
    b = T + 2
    a.e(f"v_and_b32 v{b}, 1, v{q}")
    a.e(f"v_lshlrev_b32 v{b}, 3, v{b}")
    a.e(f"v_lshl_add_u32 v{b}, v{m}, 7, v{b}")
    a.e(f"v_add_u32 v{b}, s{S_XREG}, v{b}")
    sw = T + 3
    a.e(f"v_lshrrev_b32 v{sw}, 1, v{m}")
    if m32:
        a.e(f"v_and_b32 v{T+4}, 2, v{q}")
    else:
        a.e(f"v_lshrrev_b32 v{T+4}, 1, v{q}")
    a.e(f"v_xor_b32 v{sw}, v{sw}, v{T+4}")
    ad = T + 8
    for k in range(4):
        a.e(f"v_xor_b32 v{T+4}, {(4*(k>>1) + (k&1)) if m32 else 2*k}, v{sw}")
        a.e(f"v_lshl_add_u32 v{ad+k}, v{T+4}, 4, v{b}")
    ones = T + 12
    for k in range(4):
        a.e(f"v_mov_b32 v{ones+k}, 0x3f803f80")
    a.wait_vm(xtk)
    stamp(a, 'b')
    if after_wait:
        after_wait()
    s1, s2 = T + 16, T + 20
    tks = []
    for s in range(18):
        for j in range(2):
            tk = a.e(f"ds_read_b64 {vr(X(0,s)+2*j,2)}, v{ad+2*(s&1)+j} offset:{(s>>1)*2048}")
        tks.append(tk)
        if s >= 4:
            ss = s - 4
            a.wait_lg(tks[ss])
            a.e(f"v_mfma_f32_16x16x32_bf16 {vr(s1,4)}, {vr(ones,4)}, {vr(X(0,ss),4)}, {vr(s1,4) if ss else '0'}")
            a.e(f"v_mfma_f32_16x16x32_bf16 {vr(s2,4)}, {vr(X(0,ss),4)}, {vr(X(0,ss),4)}, {vr(s2,4) if ss else '0'}")
    for ss in range(14, 18):
        a.wait_lg(tks[ss])
        a.e(f"v_mfma_f32_16x16x32_bf16 {vr(s1,4)}, {vr(ones,4)}, {vr(X(0,ss),4)}, {vr(s1,4)}")
        a.e(f"v_mfma_f32_16x16x32_bf16 {vr(s2,4)}, {vr(X(0,ss),4)}, {vr(X(0,ss),4)}, {vr(s2,4)}")
    t = T + 4
    a.e(f"v_and_b32 v{t}, 3, v{m}")
    a.e(f"v_cmp_eq_u32 vcc, 1, v{t}")
    a.e(f"v_cndmask_b32 v{s2}, v{s2}, v{s2+1}, vcc")
    a.e(f"v_cmp_eq_u32 vcc, 2, v{t}")
    a.e(f"v_cndmask_b32 v{s2}, v{s2}, v{s2+2}, vcc")
    a.e(f"v_cmp_eq_u32 vcc, 3, v{t}")
    a.e(f"v_cndmask_b32 v{s2}, v{s2}, v{s2+3}, vcc")
    a.e(f"v_lshrrev_b32 v{t}, 2, v{m}")
    a.e(f"v_lshl_add_u32 v{t}, v{t}, 4, v{m}")
    a.e(f"v_lshlrev_b32 v{t}, 2, v{t}")
    tk = a.e(f"ds_bpermute_b32 v{s2}, v{t}, v{s2}")
    inv = 0x3AE38E39
    a.e(f"v_mul_f32 v{s1}, 0x{inv:x}, v{s1}")
    a.wait_lg(tk)
    a.e(f"v_mul_f32 v{s2}, 0x{inv:x}, v{s2}")
    a.e(f"v_fma_f32 v{s2}, -v{s1}, v{s1}, v{s2}")
    a.e(f"v_max_f32 v{s2}, 0, v{s2}")
    bf16_round(a, s2)
    a.e(f"v_add_f32 v{s2}, 0x3727c5ac, v{s2}")
    bf16_round(a, s2)
    a.e(f"v_sqrt_f32 v{s2}, v{s2}")
    bf16_round(a, s2)
    a.e(f"v_rcp_f32 v{s2}, v{s2}")
    bf16_round(a, s1)
    a.e(f"v_mul_f32 v{s1}, v{s1}, v{s2}")
    a.e(f"v_sub_f32 v{s1}, 0, v{s1}")
    stamp(a, 'c')
    wa = T + 5
    a.e(f"v_add_u32 v{wa}, s{S_XREG}, v{V_L16}")
    tmp = T + 24
    for s in range(18):
        for k in range(4):
            xr = X(0, s) + k
            lo = tmp + 2 * k
            a.e(f"v_lshlrev_b32 v{lo}, 16, v{xr}")
            a.e(f"v_and_b32 v{lo+1}, 0xffff0000, v{xr}")
        for k in range(4):
            lo = tmp + 2 * k
            a.e(f"v_fma_f32 v{lo}, v{lo}, v{s2}, v{s1}")
            a.e(f"v_fma_f32 v{lo+1}, v{lo+1}, v{s2}, v{s1}")
        for k in range(4):
            lo = tmp + 2 * k
            a.e(f"v_cvt_pk_bf16_f32 v{X(0,s)+k}, v{lo}, v{lo+1}")
        a.e(f"ds_write_b128 v{wa}, {vr(X(0,s),4)} offset:{s*1024}")
    if m32:
        a.e(f"s_min_u32 s{S_T0}, s{S_XREG}, s{S_XPAR}")
        a.e(f"v_bfe_u32 v{T+4}, v{V_LANE}, 4, 1")
        a.e(f"v_mul_u32_u24 v{wa}, 18432, v{T+4}")
        a.e(f"v_lshrrev_b32 v{T+4}, 5, v{V_LANE}")
        a.e(f"v_lshl_add_u32 v{wa}, v{T+4}, 8, v{wa}")
        a.e(f"v_lshl_add_u32 v{wa}, v{m}, 4, v{wa}")
        a.e(f"v_add_u32 v{wa}, s{S_T0}, v{wa}")
    else:
        a.e(f"v_add_u32 v{wa}, s{S_XPAR}, v{V_L16}")
    a.wait_lg0()
    stamp(a, 'd')
    a.e("s_barrier")
    stamp(a, 'e')
    if after_x:
        after_x()
    if m32:
        for s in range(36):
            a.e(f"ds_read_b128 {vr(X32(s),4)}, v{wa} offset:{s*512}")
    else:
        for s in range(18):
            a.e(f"ds_read_b128 {vr(X(1,s),4)}, v{wa} offset:{s*1024}")
    a.wait_lg0()
    a.e("s_barrier")


def run_stream(a, frags, fill, on_stage, wrap=False, prime=True, tick=None, base=0):
    N = len(frags)
    assert (not wrap) or N % NFR == 0
    if tick is None:
        tick = {}

    def rd(m, j):
        f = frags[m % N]
        if j == 0 and f.get("first"):
            on_stage(f["stage"] + (1000 if m >= N else 0))
        r = FR + 4 * (m % NFR)
        vb, imm = f["rd"][j]
        if FLAG("NORD") and not prime:
            tick[m] = a.lg
            return
        tick[m] = a.e(f"ds_read_b64_tr_b16 {vr(r+2*j,2)}, v{vb} offset:{imm}")

    if prime:
        for m in range(min(PD, N)):
            rd(m, 0)
            rd(m, 1)
        if wrap:
            return tick
    for n in range(N):
        f = frags[n]
        r = FR + 4 * (n % NFR)
        fl = list(fill.get(n, []))
        nm = len(f["mf"])
        for c in f.get("pre", []):
            c()
        a.wait_lg(tick[n])
        for k, mf in enumerate(f["mf"]):
            a.e(mf(r))
            if n + PD < N or wrap:
                if nm == 1:
                    rd(n + PD, 0)
                    rd(n + PD, 1)
                elif k < 2:
                    rd(n + PD, k)
            cnt = (len(fl) + (nm - k) - 1) // (nm - k)
            for c in fl[:cnt]:
                c()
            fl = fl[cnt:]
    if wrap:
        return {m: tick[N + m] for m in range(PD)}
    return tick


def loop(a, label, body, niter_sgpr_dec):
    a.raw(label + ":")
    n0 = len(a.out)
    body()
    niter_sgpr_dec(label)
    t1 = a.out[n0:]
    n1 = len(a.out)
    body()
    niter_sgpr_dec(label)
    t2 = a.out[n1:]
    if t1 != t2:
        for x, y in zip(t1, t2):
            if x != y:
                sys.stderr.write(f"LOOP MISMATCH {label}: {x!r} vs {y!r}\n")
        assert len(t1) == len(t2), "loop body length mismatch"
        import re
        for k, (x, y) in enumerate(zip(t1, t2)):
            if x != y:
                mx, my = re.match(r"\s*s_waitcnt (vm|lgkm)cnt\((\d+)\)", x), re.match(r"\s*s_waitcnt (vm|lgkm)cnt\((\d+)\)", y)
                assert mx and my and mx.group(1) == my.group(1), (x, y)
                t1[k] = x if int(mx.group(2)) <= int(my.group(2)) else y
        a.out[n0:n1] = t1
    del a.out[n1:]


V_FW, V_FR, V_FV, V_FT = 248, 249, 252, 253
FLAGS = 147456


class Sync:
    def __init__(self, a, tag):
        self.a, self.tag, self.slow, self.tk, self.n = a, tag, {}, None, 0

    def setup(self):
        a = self.a
        a.e(f"s_lshl_b32 s{S_T0}, s{S_W}, 8")
        a.e(f"s_add_u32 s{S_T0}, s{S_T0}, {FLAGS+64}")
        a.e(f"v_lshlrev_b32 v{V_FW}, 2, v{V_LANE}")
        a.e(f"v_add_u32 v{V_FW}, s{S_T0}, v{V_FW}")
        a.e(f"s_lshl_b32 s{S_T0}, s{S_W}, 2")
        a.e(f"s_add_u32 s{S_T0}, s{S_T0}, {FLAGS}")
        a.e(f"v_mov_b32 v{V_FT}, s{S_T0}")
        a.e(f"v_cmp_eq_u32 vcc, 0, v{V_LANE}")
        a.e(f"v_cndmask_b32 v{V_FW}, v{V_FW}, v{V_FT}, vcc")
        a.e(f"v_and_b32 v{V_FR}, 7, v{V_LANE}")
        a.e(f"v_lshlrev_b32 v{V_FR}, 2, v{V_FR}")
        a.e(f"v_add_u32 v{V_FR}, {FLAGS}, v{V_FR}")
        a.e(f"v_mov_b32 v{V_FV}, 0")
        a.e(f"ds_write_b32 v{V_FW}, v{V_FV}")

    def arrive(self, tk):
        a = self.a
        a.e(f"v_add_u32 v{V_FV}, 1, v{V_FV}")
        a.wait_vm(tk)
        a.e(f"ds_write_b32 v{V_FW}, v{V_FV}")

    def read(self):
        self.tk = self.a.e(f"ds_read_b32 v{V_FT}, v{V_FR}")

    def check(self, name):
        a = self.a
        if FLAG("NOBAR"):
            return
        a.wait_lg(self.tk)
        a.e(f"v_cmp_lt_u32 vcc, v{V_FT}, v{V_FV}")
        a.e(f"s_cbranch_vccnz L_slow_{self.tag}_{name}")
        a.raw(f"L_back_{self.tag}_{name}:")
        self.slow[name] = 1

    def emit_slow(self):
        a = self.a
        for name in self.slow:
            a.raw(f"L_slow_{self.tag}_{name}:")
            a.raw(f"    ds_read_b32 v{V_FT}, v{V_FR}")
            a.raw(f"    s_waitcnt lgkmcnt(0)")
            a.raw(f"    v_cmp_lt_u32 vcc, v{V_FT}, v{V_FV}")
            a.raw(f"    s_cbranch_vccnz L_slow_{self.tag}_{name}")
            a.raw(f"    s_branch L_back_{self.tag}_{name}")


def spread(fill, items, n0, n1):
    L = len(items)
    span = n1 - n0
    for i, it in enumerate(items):
        n = n0 + (i * span) // L
        fill.setdefault(n, []).append(it)


def rd_bases(a):
    t0, t1, t2 = V_T, V_T + 1, V_T + 2
    a.e(f"v_lshrrev_b32 v{t0}, 4, v{V_LANE}")
    a.e(f"v_lshrrev_b32 v{t1}, 1, v{t0}")
    a.e(f"v_lshlrev_b32 v{t1}, 10, v{t1}")
    a.e(f"v_and_b32 v{t0}, 1, v{t0}")
    a.e(f"v_lshl_add_u32 v{t1}, v{t0}, 8, v{t1}")
    a.e(f"v_lshl_add_u32 v{t1}, v{t0}, 5, v{t1}")
    a.e(f"v_bfe_u32 v{t2}, v{V_LANE}, 2, 2")
    a.e(f"v_lshl_add_u32 v{t1}, v{t2}, 6, v{t1}")
    a.e(f"v_and_b32 v{t2}, 3, v{V_LANE}")
    a.e(f"v_lshl_add_u32 v{t1}, v{t2}, 3, v{t1}")
    a.e(f"s_lshl_b32 s{S_T0}, s{S_C}, 9")
    a.e(f"v_add_u32 v{V_RD}, s{S_T0}, v{t1}")
    a.e(f"v_xor_b32 v{V_RD+3}, 32, v{V_RD}")
    for k in (1, 2):
        a.e(f"v_add_u32 v{V_RD+k}, {49152*k}, v{V_RD}")
        a.e(f"v_add_u32 v{V_RD+3+k}, {49152*k}, v{V_RD+3}")


def rd_bases32(a):
    t1, t2 = V_T + 1, V_T + 2
    a.e(f"v_lshrrev_b32 v{t1}, 5, v{V_LANE}")
    a.e(f"v_lshlrev_b32 v{t1}, 8, v{t1}")
    a.e(f"v_bfe_u32 v{t2}, v{V_LANE}, 2, 2")
    a.e(f"v_lshl_add_u32 v{t1}, v{t2}, 6, v{t1}")
    a.e(f"v_bfe_u32 v{t2}, v{V_LANE}, 4, 1")
    a.e(f"v_lshl_add_u32 v{t1}, v{t2}, 5, v{t1}")
    a.e(f"v_and_b32 v{t2}, 3, v{V_LANE}")
    a.e(f"v_lshl_add_u32 v{t1}, v{t2}, 3, v{t1}")
    a.e(f"s_lshl_b32 s{S_T0}, s{S_C}, 9")
    a.e(f"v_add_u32 v{V_RD}, s{S_T0}, v{t1}")
    for k in (1, 2):
        a.e(f"v_add_u32 v{V_RD+k}, {49152*k}, v{V_RD}")


T_CE, T_CL, T_TR, T_TC, T_ACT, T_FE, T_FS, T_AE, T_AL, T_BK0, T_BK1, T_NG, T_RB_, T_XB = 66, 70, 72, 71, 73, 63, 62, 64, 65, 74, 75, 69, 67, 98


def tail(a, tag, assign, between, late_c1):
    a.e("s_load_dwordx2 s[4:5], s[0:1], 56")
    a.e("s_load_dwordx2 s[6:7], s[0:1], 16")
    a.e("s_load_dwordx2 s[8:9], s[0:1], 0")
    a.wait_lg0()
    VF1, VF2, VFL, VFO, VG = 248, 249, 250, 251, V_T + 2
    a.e(f"v_min_u32 v{VF1}, 11, v{V_LANE}")
    a.e(f"v_lshlrev_b32 v{VF1}, 2, v{VF1}")
    a.e(f"v_and_b32 v{VF2}, 3, v{V_LANE}")
    a.e(f"v_lshlrev_b32 v{VF2}, 2, v{VF2}")
    assign()
    a.e(f"s_cmp_eq_u32 s{S_C}, 0")
    a.e(f"s_cselect_b32 s{T_TC}, s{T_CE}, s{T_CL}")
    a.e(f"s_lshr_b32 s{T_NG}, s{T_TC}, 7")
    a.e(f"s_bfe_u32 s{S_T0}, s{T_TC}, 0x10006")
    a.e(f"s_lshl_b32 s{T_BK0}, s{S_T0}, 3")
    a.e(f"s_lshl_b32 s{S_T0}, s{T_TR}, 1")
    a.e(f"s_add_u32 s{T_BK0}, s{T_BK0}, s{S_T0}")
    a.e(f"s_add_u32 s{T_BK1}, s{T_BK0}, 1")
    a.e(f"s_lshl_b32 s{T_FS}, s{S_RB}, 11")
    a.e(f"s_add_u32 s{T_FS}, s{T_FS}, {FLG}")
    a.e(f"s_lshl_b32 s{S_T1}, s{T_NG}, 6")
    a.e(f"s_add_u32 s{T_FE}, s{T_FS}, s{S_T1}")
    a.e(f"s_add_u32 s{T_FE}, s{T_FE}, 128")
    a.e(f"s_lshl_b32 s{S_T0}, s{S_RB}, 2")
    a.e(f"s_add_u32 s{S_T0}, s{S_T0}, s{T_TR}")
    a.e(f"s_mul_i32 s{S_T0}, s{S_T0}, {32*1152}")
    a.e(f"s_add_u32 s{T_AE}, s{S_T0}, s{T_TC}")
    a.e(f"s_add_u32 s{T_AL}, s{T_AE}, 32")
    srd(a, R_A, 4, 2359296)
    srd(a, R_B, 6, 663552)
    srd(a, R_X, 8, 2359296)
    a.e(f"s_mov_b32 s{S_NL2E}, 0x{NLOG2E:x}")
    a.e(f"s_lshl_b32 s{S_WLDS}, s{S_W}, 10")
    rd_bases32(a)
    a.e(f"v_and_b32 v{VG}, 31, v{V_LANE}")
    a.e(f"v_mul_u32_u24 v{VG}, 1152, v{VG}")
    a.e(f"v_lshrrev_b32 v{VFL}, 5, v{V_LANE}")
    a.e(f"v_lshl_add_u32 v{VG}, v{VFL}, 3, v{VG}")
    a.e(f"s_sub_u32 s{S_T0}, s{T_CL}, s{T_CE}")
    a.e(f"v_mul_lo_u32 v{V_D2}, v{VFL}, s{S_T0}")
    a.e(f"v_bfe_u32 v{VFL}, v{V_LANE}, 2, 3")
    a.e(f"v_mul_u32_u24 v{VFL}, 1152, v{VFL}")
    a.e(f"v_add_u32 v{V_D2}, v{V_D2}, v{VFL}")
    a.e(f"v_and_b32 v{VFL}, 3, v{V_LANE}")
    a.e(f"v_lshl_add_u32 v{V_D2}, v{VFL}, 4, v{V_D2}")
    a.e(f"v_bfe_u32 v{VFL}, v{V_LANE}, 4, 1")
    a.e(f"v_mul_u32_u24 v{VFL}, {32*1152}, v{VFL}")
    a.e(f"v_add_u32 v{V_D1}, v{V_D2}, v{VFL}")
    a.e(f"s_lshr_b32 s{S_T0}, s{S_W}, 1")
    a.e(f"s_mul_i32 s{S_T1}, s{S_T0}, 18")
    a.e(f"s_and_b32 s{S_T2}, s{S_T0}, 1")
    a.e(f"s_lshl_b32 s{S_T2}, s{S_T2}, 1")
    a.e(f"s_add_u32 s{S_T1}, s{S_T1}, s{S_T2}")
    a.e(f"s_and_b32 s{S_T2}, s{S_W}, 1")
    a.e(f"s_lshl_b32 s{S_T3}, s{S_T2}, 3")
    a.e(f"s_add_u32 s{S_T1}, s{S_T1}, s{S_T3}")
    a.e(f"s_mul_i32 s{S_T1}, s{S_T1}, 1152")
    a.e(f"s_add_u32 s{T_RB_}, s{S_T1}, s{T_CE}")
    a.e(f"s_mul_i32 s{S_T0}, s{S_T0}, 144")
    a.e(f"s_mul_i32 s{S_T2}, s{S_T2}, 72")
    a.e(f"s_add_u32 s{S_T0}, s{S_T0}, s{S_T2}")
    a.e(f"s_add_u32 s{S_T0}, s{S_T0}, 16")
    a.e(f"s_mul_i32 s{S_T0}, s{S_T0}, 1152")
    a.e(f"s_add_u32 s{T_XB}, s{S_T0}, s{T_CE}")
    a.e(f"buffer_load_dword v{VFO}, v{VF2}, {sr(R_WS,4)}, s{T_FS} offen sc1")
    tst = a.e(f"buffer_load_dword v{VFL}, v{VF1}, {sr(R_WS,4)}, s{T_FE} offen sc1")
    a.e("s_barrier")
    for k in range(8):
        a.e(f"s_add_u32 m0, s{S_WLDS}, {k*8192}")
        a.e(f"s_add_u32 s{S_T3}, s{T_RB_}, {k*72*1152}")
        a.e(f"buffer_load_dwordx4 v{V_D2}, {sr(R_B,4)}, s{S_T3} offen lds")
    a.e(f"s_add_u32 m0, s{S_WLDS}, {8*8192}")
    a.e("s_nop 0")
    a.e(f"buffer_load_dwordx4 v{V_D1}, {sr(R_B,4)}, s{T_XB} offen lds")
    a.wait_vm(tst)
    a.e("s_barrier")
    between()
    a.e(f"s_cmp_lg_u32 s{T_ACT}, 0")
    a.e(f"s_cbranch_scc1 L_{tag}_work")
    a.e("s_waitcnt vmcnt(0)")
    a.e("s_barrier")
    a.e(f"s_branch L_{tag}_fin")
    a.raw(f"L_{tag}_work:")

    def addr(A):
        k = A // 49152
        return [(V_RD + k, A - 49152 * k), (V_RD + k, A - 49152 * k + 1024)]

    def mk(acc, b, first):
        return lambda r: f"v_mfma_f32_32x32x16_bf16 {vr(acc,16)}, {vr(r,4)}, {vr(b,4)}, {'0' if first else vr(acc,16)}"

    def spin(name, vaddr, soff, want, preloaded=False, VFL=VFL):
        name = tag + name
        a.e(f"s_mov_b32 s{S_T2}, 0")
        if preloaded:
            a.e(f"s_branch L_sp_{name}_c")
        a.raw(f"L_sp_{name}:")
        a.e_untracked(f"buffer_load_dword v{VFL}, v{vaddr}, {sr(R_WS,4)}, s{soff} offen sc1")
        a.e(f"s_add_u32 s{S_T2}, s{S_T2}, 1")
        a.e(f"s_cmp_gt_u32 s{S_T2}, 0x40000")
        a.e(f"s_cbranch_scc1 L_sp_{name}_x")
        a.e("s_waitcnt vmcnt(0)")
        a.raw(f"L_sp_{name}_c:")
        a.e(f"v_cmp_gt_u32 vcc, {want}, v{VFL}")
        a.e(f"s_cbranch_vccz L_sp_{name}_x")
        a.e("s_sleep 4")
        a.e(f"s_branch L_sp_{name}")
        a.raw(f"L_sp_{name}_x:")

    def ld_part(dst, bk, xr, aoff):
        a.e(f"s_mul_i32 s{S_T0}, s{S_RB}, 9")
        a.e(f"s_add_u32 s{S_T0}, s{S_T0}, s{T_NG}")
        a.e(f"s_lshl_b32 s{S_T0}, s{S_T0}, 4")
        a.e(f"s_add_u32 s{S_T0}, s{S_T0}, s{bk}")
        a.e(f"s_lshl_b32 s{S_T0}, s{S_T0}, 10")
        a.e(f"s_add_u32 s{S_T0}, s{S_T0}, {PART}")
        for p in range(12):
            a.e(f"buffer_load_dwordx4 {vr(dst+4*p,4)}, v{V_L16}, {sr(R_WS,4)}, s{S_T0} offen sc1")
            if p < 11:
                a.e(f"s_add_u32 s{S_T0}, s{S_T0}, {PSZ}")
        a.e(f"buffer_load_dwordx2 {vr(xr,2)}, v{VG}, {sr(R_X,4)}, s{aoff} offen")
        a.e(f"buffer_load_dwordx2 {vr(xr+2,2)}, v{VG}, {sr(R_X,4)}, s{aoff} offen offset:16")

    def unp(dst, src):
        for k in range(4):
            a.e(f"v_lshlrev_b32 v{dst+2*k}, 16, v{src+k}")
            a.e(f"v_and_b32 v{dst+2*k+1}, 0xffff0000, v{src+k}")

    def rnd(F, Pk):
        for k in range(4):
            a.e(f"v_cvt_pk_bf16_f32 v{Pk+k}, v{F+2*k}, v{F+2*k+1}")
        unp(F, Pk)

    def silu_sum(src, F, T, Pk):
        for p in range(12):
            unp(F if p == 0 else T, src + 4 * p)
            if p:
                for k in range(8):
                    a.e(f"v_add_f32 v{F+k}, v{F+k}, v{T+k}")
        rnd(F, Pk)
        for k in range(8):
            a.e(f"v_mul_f32 v{T+k}, s{S_NL2E}, v{F+k}")
        for k in range(8):
            a.e(f"v_exp_f32 v{T+k}, v{T+k}")
        for k in range(8):
            a.e(f"v_add_f32 v{T+k}, 1.0, v{T+k}")
        for k in range(8):
            a.e(f"v_rcp_f32 v{T+k}, v{T+k}")
        for k in range(8):
            a.e(f"v_mul_f32 v{F+k}, v{F+k}, v{T+k}")
        rnd(F, Pk)

    def finish(F, T, Pk, sreg, xr, aoff):
        rnd(sreg, Pk)
        for k in range(8):
            a.e(f"v_mul_f32 v{F+k}, v{F+k}, v{sreg+k}")
        rnd(F, Pk)
        unp(T, xr)
        for k in range(8):
            a.e(f"v_add_f32 v{F+k}, v{F+k}, v{T+k}")
        for k in range(4):
            a.e(f"v_cvt_pk_bf16_f32 v{Pk+k}, v{F+2*k}, v{F+2*k+1}")
        om = os.environ.get("OSTM", "")
        a.e(f"buffer_store_dwordx2 {vr(Pk,2)}, v{VG}, {sr(R_A,4)}, s{aoff} offen {om}")
        a.e(f"buffer_store_dwordx2 {vr(Pk+2,2)}, v{VG}, {sr(R_A,4)}, s{aoff} offen offset:16 {om}")
    PE, PL = X32(0), X32(12)
    XE, XL_ = ACC, ACC + 4
    FE, FL_, TT, PK, PK2, SACC = ACC + 8, ACC + 16, ACC + 24, ACC + 32, ACC + 36, ACC + 48

    to = {}

    def ld_o(ks):
        a.e(f"s_lshl_b32 s{S_T0}, s{S_RB}, 2")
        a.e(f"s_add_u32 s{S_T0}, s{S_T0}, s{T_TR}")
        a.e(f"s_mul_i32 s{S_T0}, s{S_T0}, 36864")
        a.e(f"s_add_u32 s{S_T0}, s{S_T0}, {OF + ks[0]*1024}")
        for n, k in enumerate(ks):
            if n % 4 == 0 and n:
                a.e(f"s_add_u32 s{S_T0}, s{S_T0}, 4096")
            to[k] = a.e(f"buffer_load_dwordx4 {vr(X32(k),4)}, v{V_L16}, {sr(R_WS,4)}, s{S_T0} offen offset:{(n%4)*1024} sc1")

    def gemm(order):
        fr3 = [dict(stage=0, first=False, rd=addr(k * 2048), pre=[lambda k=k: a.wait_vm(to[k])], mf=[mk(SACC, X32(k), n == 0)]) for n, k in enumerate(order)]
        run_stream(a, fr3, {}, None)
    if late_c1:
        a.e(f"s_cmp_eq_u32 s{S_C}, 0")
        a.e(f"s_cbranch_scc0 L_{tag}_late")
    spin("ea", VF1, T_FE, 1, preloaded=True)
    ld_part(PE, T_BK0, XE, T_AE)
    ld_part(PL, T_BK1, XL_, T_AL)
    a.e(f"buffer_load_dword v{VFO}, v{VF2}, {sr(R_WS,4)}, s{T_FS} offen sc1")
    a.wait_vm0()
    a.e("s_barrier")
    spin("oa", VF2, T_FS, 2, preloaded=True, VFL=VFO)
    ld_o(list(range(24, 36)))
    silu_sum(PE, FE, TT, PK)
    ld_o(list(range(0, 12)))
    silu_sum(PL, FL_, TT, PK)
    ld_o(list(range(12, 24)))
    stamp(a, 't')
    gemm(list(range(24, 36)) + list(range(0, 24)))
    if late_c1:
        a.e(f"s_branch L_{tag}_join")
        a.raw(f"L_{tag}_late:")
        a.barrier_hist()
        a.wait_vm0()
        a.e("s_barrier")
        spin("ob", VF2, T_FS, 2, preloaded=True, VFL=VFO)
        ld_o(list(range(36)))
        tf = a.e(f"buffer_load_dword v{VFL}, v{VF1}, {sr(R_WS,4)}, s{T_FE} offen sc1")
        gemm(list(range(36)))
        stamp(a, 'u')
        a.wait_vm(tf)
        spin("eb", VF1, T_FE, 1, preloaded=True)
        ld_part(PE, T_BK0, XE, T_AE)
        tp = a.vm
        ld_part(PL, T_BK1, XL_, T_AL)
        a.wait_vm(tp)
        silu_sum(PE, FE, TT, PK)
        a.wait_vm0()
        silu_sum(PL, FL_, TT, PK)
        a.raw(f"L_{tag}_join:")
        a.e("s_nop 7")
        a.e("s_nop 7")
    finish(FE, TT, PK, SACC, XE, T_AE)
    finish(FL_, TT, PK2, SACC + 8, XL_, T_AL)
    a.raw(f"L_{tag}_fin:")


def mlp(a):
    KPS = int(os.environ.get("KPS", "3"))
    NS = 18 // KPS
    SB = KPS * 8192
    FPS = KPS * 4
    USEBAR = os.environ.get("SYNC", "bar") == "bar"
    SL = int(os.environ.get("SLACK", str(FPS - 4)))
    t0, t1, t2 = V_T + 3, V_T + 4, ACC
    a.e(f"s_cmp_lt_u32 s{S_W}, 4")
    a.e(f"s_cselect_b32 s{R_W1}, s{S_WG}, s{S_WU}")
    a.e(f"s_cselect_b32 s{R_W1+1}, s{S_WG+1}, s{S_WU+1}")
    a.e(f"s_mov_b32 s{R_W1+2}, 5308416")
    a.e(f"s_mov_b32 s{R_W1+3}, 0x20000")
    srd(a, R_W2, S_WD, 5308416)
    stamp(a)
    xtk = x_stage_issue(a)
    a.e(f"v_bfe_u32 v{t0}, v{V_LANE}, 2, 3")
    a.e(f"v_and_b32 v{t1}, 3, v{V_LANE}")
    a.e(f"v_lshrrev_b32 v{t2}, 5, v{V_LANE}")
    a.e(f"v_lshlrev_b32 v{t2}, 6, v{t2}")
    a.e(f"v_lshl_add_u32 v{t1}, v{t1}, 4, v{t2}")
    a.e(f"v_mul_u32_u24 v{V_D1}, 9216, v{t0}")
    a.e(f"v_add_u32 v{V_D1}, v{V_D1}, v{t1}")
    a.e(f"v_mul_u32_u24 v{V_D2}, 1152, v{t0}")
    a.e(f"v_add_u32 v{V_D2}, v{V_D2}, v{t1}")
    a.e(f"s_lshl_b32 s{S_WLDS}, s{S_W}, 10")
    a.e(f"s_mul_i32 s{S_T0}, s{S_SPLIT}, 384")
    a.e(f"s_mul_i32 s{S_W1B}, s{S_R}, {8*9216}")
    a.e(f"s_lshl_b32 s{S_T1}, s{S_T0}, 1")
    a.e(f"s_add_u32 s{S_W1B}, s{S_W1B}, s{S_T1}")
    a.e(f"s_lshl_b32 s{S_T1}, s{S_W}, 3")
    a.e(f"s_add_u32 s{S_T1}, s{S_T1}, s{S_T0}")
    a.e(f"s_mul_i32 s{S_W2B}, s{S_T1}, 1152")
    V_PF, V_PF2 = 8, 9
    S_PFO, S_PFS = S_H1, 98
    R_PF = R_B
    p0, p1 = FR, FR + 1
    NL = 36 if MAPC else 18
    a.e(f"s_and_b32 s{S_T0}, s{S_RB}, {3 if MAPC else 7}")
    a.e(f"s_lshl_b32 s{S_T1}, s{S_T0}, 2")
    a.e(f"s_add_u32 s{S_T1}, s{S_T1}, s{S_R}")
    a.e(f"s_mul_i32 s{S_T1}, s{S_T1}, {NL}")
    a.e(f"v_add_u32 v{p0}, s{S_T1}, v{V_LANE}")
    a.e(f"v_mul_u32_u24 v{p0}, 9216, v{p0}")
    a.e(f"v_cmp_gt_u32 vcc, {NL}, v{V_LANE}")
    a.e(f"v_cndmask_b32 v{V_PF}, -1, v{p0}, vcc")
    a.e(f"v_mul_u32_u24 v{p0}, 86, v{V_LANE}")
    a.e(f"v_lshrrev_b32 v{p0}, 8, v{p0}")
    a.e(f"v_mul_u32_u24 v{p1}, 3, v{p0}")
    a.e(f"v_sub_u32 v{p1}, v{V_LANE}, v{p1}")
    a.e(f"s_lshl_b32 s{S_T1}, s{S_T0}, 3")
    a.e(f"s_add_u32 s{S_T1}, s{S_T1}, s{S_W}")
    a.e(f"s_mul_i32 s{S_T1}, s{S_T1}, {NL // 3}")
    a.e(f"v_add_u32 v{p0}, s{S_T1}, v{p0}")
    a.e(f"v_mul_u32_u24 v{p0}, 1152, v{p0}")
    a.e(f"v_lshl_add_u32 v{p0}, v{p1}, 7, v{p0}")
    a.e(f"v_cndmask_b32 v{V_PF2}, -1, v{p0}, vcc")
    for k in range(4):
        a.e(f"s_mov_b32 s{R_PF+k}, s{R_W1+k}")
    a.e(f"s_mul_i32 s{S_PFO}, s{S_SPLIT}, 768")
    a.e(f"s_mov_b32 s{S_PFS}, 128")

    def pf():
        if not FLAG("NOPF"):
            a.e(f"buffer_load_dword v0, v{V_PF}, {sr(R_PF,4)}, s{S_PFO} offen")
        if FLAG("PF64"):
            a.e(f"buffer_load_dword v0, v{V_PF}, {sr(R_PF,4)}, s{S_PFO} offen offset:64")
        a.e(f"s_add_u32 s{S_PFO}, s{S_PFO}, s{S_PFS}")

    dtk = {}

    def dma_raw(g, i, voff, srd_, soff, mid=None):
        if FLAG("NODMA") and a.always:
            dtk[g % NS] = a.vm
            return
        a.e(f"s_add_u32 m0, s{S_WLDS}, {(g % NS) * SB + i*8192}")
        if mid:
            a.e(mid)
        dtk[g % NS] = a.e(f"buffer_load_dwordx4 v{voff}, {sr(srd_,4)}, s{soff} offen lds")

    def dma_p0(d):
        dma_raw(d // KPS, d % KPS, V_D1, R_W1, S_T3, f"s_add_u32 s{S_T3}, s{S_W1B}, {d*294912}")

    def after_wait():
        dma_p0(0)
        dma_p0(1)
        pf()
    if FLAG("EARLYW"):
        after_wait()
    rd_bases32(a)
    a.e(f"s_lshl_b32 s{S_T0}, s{S_SPLIT}, 4")
    a.e(f"s_add_u32 s{S_T0}, s{S_T0}, s{S_RB}")
    a.e(f"s_mul_i32 s{S_T0}, s{S_T0}, 98304")
    a.e(f"s_lshl_b32 s{S_T2}, s{S_R}, 10")
    a.e(f"s_add_u32 s{S_H0}, s{S_T0}, s{S_T2}")
    a.e(f"s_mul_i32 s{S_T0}, s{S_SPLIT}, {PSZ}")
    a.e(f"s_mul_i32 s{S_T3}, s{S_RB}, {9*16384}")
    a.e(f"s_add_u32 s{S_T0}, s{S_T0}, s{S_T3}")
    a.e(f"s_lshl_b32 s{S_T3}, s{S_C}, 13")
    a.e(f"s_add_u32 s{S_T0}, s{S_T0}, s{S_T3}")
    a.e(f"s_add_u32 s{S_T0}, s{S_T0}, {PART}")
    a.e(f"s_lshl_b32 s{S_T2}, s{S_R}, 11")
    a.e(f"s_add_u32 s{S_P0}, s{S_T0}, s{S_T2}")
    a.e(f"s_mov_b32 s{S_NL2E}, 0x{NLOG2E:x}")
    itk = []

    def after_x():
        a.e(f"s_lshl_b32 s{S_T0}, s{S_RB}, 2")
        a.e(f"v_mov_b32 v{V_T+2}, s{S_T0}")
        itk.append(init_issue(a, V_T + 2, V_T + 3))
        pf()
    layernorm(a, xtk, m32=True, after_x=after_x, after_wait=None if FLAG('EARLYW') else after_wait)
    stamp(a, 'f')
    for d in range(2, (NS - 2) * KPS):
        dma_p0(d)
    init_check(a, "m", V_T + 2, V_T + 3, itk[0])
    V_DN = V_T + 4
    VEX = V_T
    S_IT, S_CUR, S_PTR, S_STEP, S_ADJ, S_HST = 71, 72, 73, 74, 75, S_XREG
    R_N = R_A
    a.e(f"s_mov_b32 s{S_IT}, 0")
    a.e(f"s_mov_b32 s{S_CUR}, s{S_W1B}")
    a.e(f"s_mov_b32 s{S_HST}, 0x70000000")
    sy = Sync(a, "m")
    if not USEBAR:
        sy.setup()

    def addr(A):
        k = A // 49152
        return [(V_RD + k, A - 49152 * k), (V_RD + k, A - 49152 * k + 1024)]

    def acc1(st, mat):
        return ACC + st * 32 + mat * 16

    def mk(acc, b, first):
        return lambda r: f"v_mfma_f32_32x32x16_bf16 {vr(acc,16)}, {vr(r,4)}, {vr(b,4)}, {'0' if first else vr(acc,16)}"

    def E(text):
        return lambda: a.e(text)

    def copy_items(mat):
        A_, E_ = acc1(0, mat), acc1(1, mat)
        return [E(f"v_mul_f32 v{E_+i}, s{S_NL2E}, v{A_+i}") if mat == 0 else E(f"v_mov_b32 v{E_+i}, v{A_+i}") for i in range(16)]

    hst = {}

    def epi1(last, st_=1):
        items = []
        G0, U0 = acc1(st_, 0), acc1(st_, 1)
        for u in range(2):
            for h in range(2):
                G, U = G0 + 8 * u + 4 * h, U0 + 8 * u + 4 * h
                items += [E(f"v_mul_f32 v{G+i}, s{S_NL2E}, v{G+i}") for i in range(4)]
                items += [E(f"v_exp_f32 v{G+i}, v{G+i}") for i in range(4)]
                items += [E(f"v_add_f32 v{G+i}, 1.0, v{G+i}") for i in range(4)]
                items += [E(f"v_rcp_f32 v{G+i}, v{G+i}") for i in range(4)]
                items += [E(f"v_mul_f32 v{U+i}, v{U+i}, v{G+i}") for i in range(4)]
            D, U = G0 + 8 * u, U0 + 8 * u
            items += [E(f"v_cvt_pk_bf16_f32 v{D+k}, v{U+2*k}, v{U+2*k+1}") for k in range(4)]
            if not last:
                def st(u=u, D=D):
                    a.e(f"s_add_u32 s{S_T0}, s{S_HST}, {u*4096}")
                    hst[0] = a.e(f"buffer_store_dwordx4 {vr(D,4)}, v{V_L16}, {sr(R_WS,4)}, s{S_T0} offen {os.environ.get('HSTM','')}")
                items.append(st)
            else:
                def st(u=u, D=D):
                    hst[5] = a.e(f"ds_write_b128 v{VEX+1}, {vr(D,4)} offset:{u*4096}")
                items.append(st)
        return items

    ool = []
    def mkfrags(st_):
        frags = []
        for s16 in range(36):
            ks = s16 // 2
            g = ks // KPS
            for mat in range(2):
                A = g * SB + (ks % KPS) * 8192 + mat * 4096 + (s16 & 1) * 2048
                frags.append(dict(stage=g, first=(len(frags) % FPS == 0), rd=addr(A),
                                  mf=[mk(acc1(st_, mat), X32(s16), s16 == 0)]))
        return frags
    fragsAB = [mkfrags(0), mkfrags(1)]
    frags = fragsAB[0]
    DSP = FPS // KPS - 1
    GL = NS - 1

    def place_dma(fl, fn, setf):
        for g in range(NS):
            n0 = max(g * FPS - PD + 2, 0)
            if g == 2 and setf:
                fl.setdefault(n0 - 1, []).append(setf)
            for i in range(KPS):
                fl.setdefault(n0 + DSP * i, []).append(fn(g, i))

    hld = {}

    def pf_switch():
        a.e(f"s_mul_i32 s{S_PFO}, s{S_SPLIT}, {384*1152}")
        a.e(f"s_mov_b32 s{S_PFS}, 384")
        a.e(f"s_mov_b32 s{R_PF}, s{R_W2}")
        a.e(f"s_mov_b32 s{R_PF+1}, s{R_W2+1}")
        a.e(f"v_mov_b32 v{V_PF}, v{V_PF2}")
        pf()

    def build_fill(last, st_=0, sw=False):
        fl = {}
        spread(fl, epi1(False, 1 - st_), 3, int(os.environ.get("EPIEND", "40")))

        def dma1(g, i):
            def f():
                if g < 2:
                    dma_raw(g + NS - 2, i, V_D1, R_W1, S_T3, f"s_add_u32 s{S_T3}, s{S_CUR}, {((g+NS-2)*KPS+i)*294912}")
                else:
                    d = (g - 2) * KPS + i
                    if not last:
                        dma_raw(g - 2, i, V_D1, R_W1, S_T3, f"s_add_u32 s{S_T3}, s{S_CUR}, {128 + d*294912}")
                    else:
                        dma_raw(g - 2, i, V_D2, R_W2, S_T3, f"s_add_u32 s{S_T3}, s{S_W2B}, {(d%6)*73728 + (d//6)*128}")
            return f
        place_dma(fl, dma1, None)
        fl.setdefault(5, []).append(pf_switch if sw else pf)
        if last:
            def hload(kap):
                def f():
                    a.e(f"s_add_u32 s{S_T0}, s{S_H0}, {HS + kap*4096}")
                    if FLAG("NOHLD"):
                        hld[0] = a.vm
                        return
                    hld[0] = a.e(f"buffer_load_dwordx4 {vr(X32(kap),4)}, v{V_L16}, {sr(R_WS,4)}, s{S_T0} offen")
                return f
            NHE = int(os.environ.get("NHE", "13"))
            for kap in range(NHE):
                fl.setdefault((66 * kap) // NHE + 4, []).append(hload(kap))
            hld['late'] = [hload(kap) for kap in range(NHE, 20)]
        return fl
    fill = build_fill(False)

    def add_sync(fl, extra=None):
        if USEBAR:
            return
        for g in range(NS):
            def arr(g=g):
                tk = dtk[g]
                if extra and g in extra:
                    tk = max(tk, extra[g]())
                sy.arrive(tk)
            fl.setdefault((FPS * g - PD - SL) % 72, []).insert(0, arr)
            fl.setdefault((FPS * g - PD - 2) % 72, []).insert(0, sy.read)
    add_sync(fill, {GL: lambda: hst[0]})
    first1 = [True]

    def on_stage1(g):
        g %= 1000
        if first1[0]:
            first1[0] = False
            a.wait_vm(dtk[0])
            a.wait_lg0()
            a.e("s_barrier")
            stamp(a, 'i')
            if FLAG("ITST"):
                a.e("s_memtime s[94:95]")
                a.wait_lg0()
                a.e(f"v_writelane_b32 v255, s94, 0")
            return
        if USEBAR:
            a.wait_vm(max(dtk[g], hst[0]) if g == GL else dtk[g])
            if not FLAG("NOBAR"):
                a.e("s_barrier")
        else:
            sy.check(f"a{g}")

    a.always = True
    tk1 = [run_stream(a, frags, fill, on_stage1, wrap=True, prime=True)]

    def adv():
        if FLAG("ITST"):
            a.e("s_memtime s[94:95]")
            a.wait_lg0()
            a.e(f"s_add_u32 m0, s{S_IT}, 1")
            a.e("s_nop 1")
            a.e(f"v_writelane_b32 v255, s94, m0")
        a.e(f"s_lshl_b32 s{S_T0}, s{S_C}, 13")
        a.e(f"s_lshl_b32 s{S_HST}, s{S_IT}, 14")
        a.e(f"s_add_u32 s{S_HST}, s{S_HST}, s{S_T0}")
        a.e(f"s_add_u32 s{S_HST}, s{S_HST}, s{S_H0}")
        a.e(f"s_add_u32 s{S_CUR}, s{S_CUR}, 128")
        a.e(f"s_add_u32 s{S_IT}, s{S_IT}, 1")

    def body1():
        for st_ in range(2):
            tk1[0] = run_stream(a, fragsAB[st_], build_fill(False, st_), on_stage1, wrap=True, prime=False, tick=dict(tk1[0]))
            adv()

    def dec1(label):
        a.e(f"s_cmp_lt_u32 s{S_IT}, 4")
        a.e(f"s_cbranch_scc1 {label}")
    loop(a, "L_p1", body1, dec1)
    tk1[0] = run_stream(a, fragsAB[0], build_fill(False, 0, sw=True), on_stage1, wrap=True, prime=False, tick=dict(tk1[0]))
    adv()
    run_stream(a, fragsAB[1], build_fill(True, 1), on_stage1, wrap=False, prime=False, tick=dict(tk1[0]))
    if FLAG("ITST"):
        a.e("s_memtime s[94:95]")
        a.wait_lg0()
        a.e(f"v_writelane_b32 v255, s94, 6")
    a.always = False
    for f_ in hld['late']:
        f_()
    ND = (NS - 2) * KPS
    a.e(f"s_add_u32 s{S_PTR}, s{S_W2B}, {(ND%6)*73728 + (ND//6)*128}")
    a.e(f"s_lshl_b32 s{S_T0}, s{S_R}, 10")
    a.e(f"s_add_u32 s{S_T0}, s{S_T0}, {(NS-1)*SB}")
    a.e(f"v_add_u32 v{VEX}, s{S_T0}, v{V_L16}")
    a.e(f"s_lshl_b32 s{S_T0}, s{S_C}, 13")
    a.e(f"v_add_u32 v{VEX+1}, s{S_T0}, v{VEX}")
    its = epi1(True, 1)
    a.wait_lg0()
    for it in its[:20]:
        it()
    a.e("s_barrier")
    for it in its[20:]:
        it()
    a.wait_vm(max(dtk[0], hld[0]))
    a.wait_lg0()
    a.e("s_barrier")
    stamp(a, 'j')
    if FLAG("ITST"):
        a.e("s_memtime s[94:95]")
        a.wait_lg0()
        a.e(f"v_writelane_b32 v255, s94, 7")
    pf()
    for kap in range(20, 24):
        a.e(f"ds_read_b128 {vr(X32(kap),4)}, v{VEX} offset:{(kap-20)*4096}")
    def acc2(j):
        return ACC + j * 16
    S_PST = S_HST
    a.e(f"s_mov_b32 s{S_IT}, 0")
    a.e(f"s_mov_b32 s{S_PST}, 0x70000000")

    def epi2(j, off_sgpr, off_imm):
        items = []
        for u in range(2):
            P = acc2(j) + 8 * u
            items += [E(f"v_cvt_pk_bf16_f32 v{P+k}, v{P+2*k}, v{P+2*k+1}") for k in range(4)]

            def st(u=u, P=P):
                if u == 0:
                    a.e(f"s_add_u32 s{S_P1}, s{S_P0}, {('s%d' % off_sgpr) if off_sgpr is not None else off_imm}")
                pst[j] = a.e(f"buffer_store_dwordx4 {vr(P,4)}, v{V_L16}, {sr(R_WS,4)}, s{S_P1} offen offset:{u*1024} sc1")
            items.append(st)
        return items
    pst = {}
    S_TRG, S_SITE, S_RNG, S_RBLK, S_NG0 = S_CUR, S_STEP, S_ADJ, S_W1B, S_PFS
    RB_, F_, T_, VG = X32(24), ACC + 48, ACC + 56, V_T + 2
    a.e(f"s_lshr_b32 s{S_RNG}, s{S_SPLIT}, 1")
    a.e(f"s_add_u32 s{S_TRG}, s{S_RNG}, {3 if not FLAG('NORED') else 100}")
    a.e(f"s_and_b32 s{S_RBLK}, s{S_SPLIT}, 1")
    a.e(f"s_lshl_b32 s{S_RBLK}, s{S_RBLK}, 3")
    a.e(f"s_add_u32 s{S_RBLK}, s{S_RBLK}, s{S_W}")
    a.e(f"s_mov_b32 s{S_NG0}, 0")
    S_TR2 = S_W2B
    a.e(f"s_mov_b32 s{S_TR2}, 100")
    a.e(f"v_and_b32 v{VG}, 31, v{V_LANE}")
    a.e(f"v_mul_u32_u24 v{VG}, 1152, v{VG}")
    a.e(f"v_lshrrev_b32 v{VG+1}, 5, v{V_LANE}")
    a.e(f"v_lshl_add_u32 v{VG}, v{VG+1}, 3, v{VG}")

    def sub(name, body, nsite):
        b = Asm()
        b.raw(f"L_{name}:")
        body(b)
        for k in range(nsite - 1):
            b.e(f"s_cmp_eq_u32 s{S_SITE}, {k}")
            b.e(f"s_cbranch_scc1 L_{name}_b{k}")
        b.e(f"s_branch L_{name}_b{nsite-1}")
        for k in range(nsite - 1):
            b.raw(f"L_{name}_t{k}:")
            b.e(f"s_mov_b32 s{S_SITE}, {k}")
            b.e(f"s_branch L_{name}")
        ool.append(b.text())

    def flag_addr(b):
        b.e(f"s_lshl_b32 s{S_T0}, s{S_RB}, 11")
        b.e(f"s_lshl_b32 s{S_T1}, s{S_RNG}, 6")
        b.e(f"s_add_u32 s{S_T0}, s{S_T0}, s{S_T1}")
        b.e(f"s_add_u32 s{S_T0}, s{S_T0}, {FLG + 128}")

    def r0(b):
        flag_addr(b)
        b.e(f"v_min_u32 v{T_}, 11, v{V_LANE}")
        b.e(f"v_lshlrev_b32 v{T_}, 2, v{T_}")
        b.e(f"buffer_load_dword v{T_+1}, v{T_}, {sr(R_WS,4)}, s{S_T0} offen sc1")

    def r1(b):
        b.e("s_waitcnt vmcnt(R1WAIT)")
        b.e(f"v_cmp_eq_u32 vcc, 0, v{T_+1}")
        b.e(f"s_add_u32 s{S_T3}, s{S_T0}, 1")
        b.e("s_cbranch_vccz L_r1_px")
        b.e(f"s_cmp_lt_u32 s{S_SITE}, 3")
        b.e("s_cbranch_scc1 L_r1_ret")
        flag_addr(b)
        b.e(f"s_mov_b32 s{S_T2}, 0")
        b.raw("L_r1_poll:")
        b.e(f"buffer_load_dword v{T_+1}, v{T_}, {sr(R_WS,4)}, s{S_T0} offen sc1")
        b.e(f"s_add_u32 s{S_T2}, s{S_T2}, 1")
        b.e(f"s_cmp_gt_u32 s{S_T2}, 0x40000")
        b.e("s_cbranch_scc1 L_r1_px")
        b.e("s_waitcnt vmcnt(0)")
        b.e(f"v_cmp_eq_u32 vcc, 0, v{T_+1}")
        b.e("s_cbranch_vccz L_r1_px")
        b.e("s_sleep 2")
        b.e("s_branch L_r1_poll")
        b.raw("L_r1_px:")
        b.e(f"s_mov_b32 s{S_TRG}, 100")
        b.e(f"s_mov_b32 s{S_TR2}, s{S_T3}")
        b.e(f"s_mul_i32 s{S_T0}, s{S_RB}, 9")
        b.e(f"s_add_u32 s{S_T0}, s{S_T0}, s{S_RNG}")
        b.e(f"s_lshl_b32 s{S_T0}, s{S_T0}, 4")
        b.e(f"s_add_u32 s{S_T0}, s{S_T0}, s{S_RBLK}")
        b.e(f"s_lshl_b32 s{S_T0}, s{S_T0}, 10")
        b.e(f"s_add_u32 s{S_T0}, s{S_T0}, {PART}")
        for p in range(12):
            b.e(f"buffer_load_dwordx4 {vr(RB_+4*p,4)}, v{V_L16}, {sr(R_WS,4)}, s{S_T0} offen sc1")
            if p < 11:
                b.e(f"s_add_u32 s{S_T0}, s{S_T0}, {PSZ}")
        b.raw("L_r1_ret:")

    def r2(b):
        b.e(f"s_mov_b32 s{S_TR2}, 100")
        b.e("s_waitcnt vmcnt(R2WAIT)")
        for p in range(12):
            for k in range(4):
                r = RB_ + 4 * p + k
                d = F_ if p == 0 else T_
                b.e(f"v_lshlrev_b32 v{d+2*k}, 16, v{r}")
                b.e(f"v_and_b32 v{d+2*k+1}, 0xffff0000, v{r}")
            if p:
                for k in range(8):
                    b.e(f"v_add_f32 v{F_+k}, v{F_+k}, v{T_+k}")
        for k in range(4):
            b.e(f"v_cvt_pk_bf16_f32 v{T_+k}, v{F_+2*k}, v{F_+2*k+1}")
        for k in range(4):
            b.e(f"v_lshlrev_b32 v{F_+2*k}, 16, v{T_+k}")
            b.e(f"v_and_b32 v{F_+2*k+1}, 0xffff0000, v{T_+k}")
        for k in range(8):
            b.e(f"v_mul_f32 v{T_+k}, s{S_NL2E}, v{F_+k}")
        for k in range(8):
            b.e(f"v_exp_f32 v{T_+k}, v{T_+k}")
        for k in range(8):
            b.e(f"v_add_f32 v{T_+k}, 1.0, v{T_+k}")
        for k in range(8):
            b.e(f"v_rcp_f32 v{T_+k}, v{T_+k}")
        for k in range(8):
            b.e(f"v_mul_f32 v{F_+k}, v{F_+k}, v{T_+k}")
        for k in range(4):
            b.e(f"v_cvt_pk_bf16_f32 v{T_+k}, v{F_+2*k}, v{F_+2*k+1}")
        b.e(f"s_bfe_u32 s{S_T0}, s{S_RBLK}, 0x20001")
        b.e(f"s_lshl_b32 s{S_T1}, s{S_RB}, 2")
        b.e(f"s_add_u32 s{S_T0}, s{S_T0}, s{S_T1}")
        b.e(f"s_mul_i32 s{S_T0}, s{S_T0}, {32*1152}")
        b.e(f"s_lshl_b32 s{S_T1}, s{S_RNG}, 7")
        b.e(f"s_add_u32 s{S_T0}, s{S_T0}, s{S_T1}")
        b.e(f"s_lshr_b32 s{S_T1}, s{S_RBLK}, 3")
        b.e(f"s_lshl_b32 s{S_T1}, s{S_T1}, 6")
        b.e(f"s_add_u32 s{S_T0}, s{S_T0}, s{S_T1}")
        b.e(f"s_and_b32 s{S_T1}, s{S_RBLK}, 1")
        b.e(f"s_lshl_b32 s{S_T1}, s{S_T1}, 5")
        b.e(f"s_add_u32 s{S_T0}, s{S_T0}, s{S_T1}")
        b.e(f"s_add_u32 s{S_T0}, s{S_T0}, {PART + 12*PSZ}")
        b.e(f"buffer_store_dwordx2 {vr(T_,2)}, v{VG}, {sr(R_WS,4)}, s{S_T0} offen sc1")
        b.e(f"buffer_store_dwordx2 {vr(T_+2,2)}, v{VG}, {sr(R_WS,4)}, s{S_T0} offen offset:16 sc1")
        b.e("s_nop 1")
    vmat = {}

    def site(name, j, d=0):
        def f():
            vmat.setdefault((name, j), []).append(a.vm)
            a.e(f"s_add_u32 s{S_T0}, s{S_NG0}, {j}")
            a.e(f"s_cmp_eq_u32 s{S_T0}, s{S_TR2}" if d else f"s_cmp_ge_u32 s{S_T0}, s{S_TRG}")
            a.e(f"s_cbranch_scc1 L_{name}_t{j}")
            a.raw(f"L_{name}_b{j}:")
        return f

    def signal_code(off_lines, skip0=None, name=""):
        t = [f"L_sg{name}:"]
        if skip0:
            t += [f"    s_cmp_eq_u32 s{S_IT}, 0", f"    s_cbranch_scc1 L_sg{name}_b"]
        t += ["    " + x for x in off_lines]
        t += [f"    s_lshl_b32 s{S_T1}, s{S_RB}, 11", f"    s_add_u32 s{S_T0}, s{S_T0}, s{S_T1}", f"    s_lshl_b32 s{S_T1}, s{S_SPLIT}, 2",
              f"    s_add_u32 s{S_T0}, s{S_T0}, s{S_T1}",
              f"    v_mov_b32 v{VG+1}, 1", f"    v_mov_b32 v0, 0", "    s_mov_b64 exec, 1",
              f"    buffer_store_dword v{VG+1}, v0, {sr(R_WS,4)}, s{S_T0} offen sc1", "    s_mov_b64 exec, -1", f"    s_branch L_sg{name}_b"]
        ool.append("\n".join(t))

    def signal_site(name):
        a.e(f"s_cmp_eq_u32 s{S_W}, 0")
        a.e(f"s_cbranch_scc1 L_sg{name}")
        a.raw(f"L_sg{name}_b:")
    for j in range(3):
        signal_code([f"s_lshl_b32 s{S_T0}, s{S_NG0}, 6", f"s_add_u32 s{S_T0}, s{S_T0}, {FLG + 128 + 64*(j-2)}"], skip0=(j < 2), name=f"p{j}")
    frags2 = []
    for j in range(3):
        for kap in range(24):
            A = j * 49152 + kap * 2048
            frags2.append(dict(stage=A // SB, first=(len(frags2) % FPS == 0), rd=addr(A),
                               mf=[mk(acc2(j), X32(kap), kap == 0)]))
    fill2 = {}
    spread(fill2, epi2(2, S_PST, 0), 2, 8)
    spread(fill2, epi2(0, None, 0), 24 + 2, 24 + 8)
    spread(fill2, epi2(1, None, 16384), 48 + 2, 48 + 8)
    for j in range(3):
        pass

    def dma2(g, i):
        def f():
            t = (g + NS - 2) % NS
            d = t * KPS + i
            dma_raw(t, i, V_D2, R_W2, S_T3, f"s_mov_b32 s{S_T3}, s{S_PTR}")
            a.e(f"s_add_u32 s{S_PTR}, s{S_PTR}, {73728 if d % 6 != 5 else (128 - 5*73728) & 0xffffffff}")
        return f

    def setend():
        a.e(f"s_cmp_eq_u32 s{S_IT}, 2")
        a.e(f"s_cselect_b32 s{S_PTR}, 0x70000000, s{S_PTR}")
    place_dma(fill2, dma2, setend)
    add_sync(fill2)
    first2 = [True]

    def on_stage2(g):
        g %= 1000
        if first2[0]:
            first2[0] = False
            return
        SPG = NS // 3
        if g % SPG == SPG - 1:
            j = g // SPG
            a.wait_vm(max(dtk[g], pst.get((j - 2) % 3, 0) if not FLAG("NOPSTW") else 0))
            a.e("s_barrier")
            signal_site(f"p{j}")
        else:
            a.wait_vm(dtk[g])
            a.e("s_barrier")
    a.always = True
    tk2 = [run_stream(a, frags2, fill2, on_stage2, wrap=True, prime=True)]

    def body2():
        tk2[0] = run_stream(a, frags2, fill2, on_stage2, wrap=True, prime=False, tick=dict(tk2[0]))

    def dec2(label):
        if FLAG("ITST"):
            a.e("s_memtime s[94:95]")
            a.wait_lg0()
            a.e(f"s_add_u32 m0, s{S_IT}, 8")
            a.e("s_nop 1")
            a.e(f"v_writelane_b32 v255, s94, m0")
        a.e(f"s_add_u32 s{S_P0}, s{S_P0}, {3*16384}")
        a.e(f"s_mov_b32 s{S_PST}, {(-16384) & 0xffffffff}")
        a.e(f"s_add_u32 s{S_NG0}, s{S_NG0}, 3")
        a.e(f"s_add_u32 s{S_IT}, s{S_IT}, 1")
        a.e(f"s_cmp_lt_u32 s{S_IT}, 3")
        a.e(f"s_cbranch_scc1 {label}")
    loop(a, "L_p2", body2, dec2)
    a.always = False
    for it in epi2(2, S_PST, 0):
        it()
    if FLAG("ITST"):
        a.e(f"s_lshl_b32 s{S_T0}, s2, 11")
        a.e(f"s_lshl_b32 s{S_T1}, s{S_W}, 8")
        a.e(f"s_add_u32 s{S_T0}, s{S_T0}, s{S_T1}")
        a.e(f"s_add_u32 s{S_T0}, s{S_T0}, 0x3D00000")
        a.e(f"v_lshlrev_b32 v254, 2, v{V_LANE}")
        a.e(f"buffer_store_dword v255, v254, {sr(R_WS,4)}, s{S_T0} offen")
    stamp(a, 'v')
    def assign():
        a.e(f"s_lshr_b32 s{S_T0}, s{S_SPLIT}, 1")
        a.e(f"s_add_u32 s{T_CL}, s{S_T0}, 12")
        a.e(f"s_lshl_b32 s{T_CL}, s{T_CL}, 6")
        a.e(f"s_sub_u32 s{T_CE}, s{T_CL}, 384")
        a.e(f"s_and_b32 s{S_T0}, s{S_SPLIT}, 1")
        a.e(f"s_lshl_b32 s{S_T0}, s{S_T0}, 1")
        a.e(f"s_and_b32 s{S_T1}, s{S_W}, 1")
        a.e(f"s_add_u32 s{T_TR}, s{S_T0}, s{S_T1}")
        a.e(f"s_cmp_lt_u32 s{S_R}, 2")
        a.e(f"s_cselect_b32 s{T_ACT}, 1, 0")

    def between():
        stamp(a, 'g')
        signal_code([f"s_mov_b32 s{S_T0}, {FLG + 128 + 64*7}"], name="p3")
        signal_site("p3")
        signal_code([f"s_mov_b32 s{S_T0}, {FLG + 128 + 64*8}"], name="p4")
        signal_site("p4")
    tail(a, "m", assign, between, late_c1=True)
    stamp(a, 'h')
    stamp_out(a)
    a.e("s_endpgm")
    sy.emit_slow()
    for t in ool:
        a.raw(t)


def k1(a):
    a.raw(".globl recurrent_scan__sliding_block__glu_gated_glu__prompt_kernel\n.p2align 8\n.type recurrent_scan__sliding_block__glu_gated_glu__prompt_kernel,@function\nrecurrent_scan__sliding_block__glu_gated_glu__prompt_kernel:")
    a.e("s_cmp_ge_u32 s2, 256")
    a.e("s_cbranch_scc1 L_k1_end")
    a.e("s_load_dwordx16 s[4:19], s[0:1], 0")
    a.e("s_load_dwordx4 s[20:23], s[0:1], 64")
    a.e(f"v_and_b32 v{V_LANE}, 63, v0")
    a.e(f"v_lshlrev_b32 v{V_L16}, 4, v{V_LANE}")
    a.e(f"v_lshrrev_b32 v{V_T}, 6, v0")
    a.e(f"v_readfirstlane_b32 s{S_W}, v{V_T}")
    a.e(f"s_and_b32 s{S_R}, s{S_W}, 3")
    a.e(f"s_lshr_b32 s{S_C}, s{S_W}, 2")
    a.e(f"s_and_b32 s{S_T0}, s2, 7")
    a.e(f"s_lshr_b32 s{S_T1}, s2, 3")
    if MAPC:
        a.e(f"s_and_b32 s{S_T2}, s{S_T0}, 3")
        a.e(f"s_lshl_b32 s{S_T2}, s{S_T2}, 2")
        a.e(f"s_and_b32 s{S_T3}, s{S_T1}, 3")
        a.e(f"s_add_u32 s{S_RB}, s{S_T2}, s{S_T3}")
        a.e(f"s_lshr_b32 s{S_T0}, s{S_T0}, 2")
        a.e(f"s_lshr_b32 s{S_T1}, s{S_T1}, 2")
    else:
        a.e(f"s_and_b32 s{S_T2}, s{S_T0}, 1")
        a.e(f"s_lshl_b32 s{S_T2}, s{S_T2}, 3")
        a.e(f"s_and_b32 s{S_T3}, s{S_T1}, 7")
        a.e(f"s_add_u32 s{S_RB}, s{S_T2}, s{S_T3}")
        a.e(f"s_lshr_b32 s{S_T0}, s{S_T0}, 1")
        a.e(f"s_lshr_b32 s{S_T1}, s{S_T1}, 3")
    a.e("s_waitcnt lgkmcnt(0)")
    srd(a, R_X, S_X, 2359296)
    srd(a, R_WS, S_WS, WS_SZ)
    srd(a, R_DBG, S_DBG, 256)
    if int(os.environ.get("CODEPF", "0")):
        a.e(f"s_getpc_b64 s[{R_A}:{R_A+1}]")
        a.raw("L_pc0:")
        a.e(f"s_mov_b32 s{R_A+2}, L_k1_end-L_pc0")
        a.e(f"s_mov_b32 s{R_A+3}, 0x20000")
        a.e(f"v_lshlrev_b32 v{V_T}, 6, v0")
        for k in range((int(os.environ.get('CODEPF'))+31)//32):
            a.e(f"s_mov_b32 s{S_T2}, {k*32768}")
            a.e(f"buffer_load_dword v0, v{V_T}, {sr(R_A,4)}, s{S_T2} offen")
    a.e(f"s_cmp_ge_u32 s{S_T1}, {6 if MAPC else 3}")
    a.e("s_cbranch_scc1 L_att")
    a.e(f"s_mul_i32 s{S_SPLIT}, s{S_T0}, {6 if MAPC else 3}")
    a.e(f"s_add_u32 s{S_SPLIT}, s{S_SPLIT}, s{S_T1}")
    if FLAG("MAPA"):
        a.e(f"s_and_b32 s{S_T0}, s2, 7")
        a.e(f"s_mul_i32 s{S_T0}, s{S_T0}, 24")
        a.e(f"s_lshr_b32 s{S_T1}, s2, 3")
        a.e(f"s_add_u32 s{S_T0}, s{S_T0}, s{S_T1}")
        a.e(f"s_lshr_b32 s{S_SPLIT}, s{S_T0}, 4")
        a.e(f"s_and_b32 s{S_RB}, s{S_T0}, 15")
    mlp(a)
    a.label("L_att")
    if MAPC:
        a.e(f"s_lshl_b32 s{S_HG}, s{S_T0}, 1")
        a.e(f"s_add_u32 s{S_HG}, s{S_HG}, s{S_T1}")
        a.e(f"s_sub_u32 s{S_HG}, s{S_HG}, 6")
    else:
        a.e(f"s_mov_b32 s{S_HG}, s{S_T0}")
    try:
        import gen_att
        gen_att.att(a)
    except ImportError:
        pass
    a.label("L_k1_end")
    a.e("s_endpgm")


def desc(name, vgpr, sgpr):
    return f""".p2align 6
.amdhsa_kernel {name}
  .amdhsa_next_free_vgpr {vgpr}
  .amdhsa_next_free_sgpr {sgpr}
  .amdhsa_accum_offset {(vgpr+3)//4*4}
  .amdhsa_group_segment_fixed_size 0
  .amdhsa_kernarg_size 80
  .amdhsa_user_sgpr_count 2
  .amdhsa_user_sgpr_kernarg_segment_ptr 1
  .amdhsa_system_sgpr_workgroup_id_x 1
.end_amdhsa_kernel"""


def main():
    a = Asm()
    a.raw(f"; @launch grid=(256,1,1) block=(512,1,1) lds={LDS_SZ}")
    have_k2 = False
    if have_k2:
        a.raw(gen_k2.LAUNCH)
    a.raw('.amdgcn_target "amdgcn-amd-amdhsa--gfx950"\n.text')
    k1(a)
    if have_k2:
        b = Asm()
        gen_k2.k2(b)
        a.raw(b.text())
    a.raw('.section .rodata,"a"')
    a.raw(desc("recurrent_scan__sliding_block__glu_gated_glu__prompt_kernel", 256, 102))
    if have_k2:
        a.raw(desc("k2_kernel", gen_k2.VGPRS, 48))
    sys.stdout.write(a.text())


if __name__ == "__main__":
    main()
```

```python
import sys
from asmlib import Asm, vr, sr

HS = 0x0000000
PART = 0x1200000
PSZ = 2359296
QF = 0x3000000
K0 = 0x3400000
V0 = 0x3600000
KX = 0x3800000
VX = 0x3840000
OF = 0x3900000
FLG = 0x3E00000
WS_SZ = 0x4000000
XBASE = 16384
LDS_SZ = 163840
LOG2E = 0x3FB8AA3B
NLOG2E = 0xBFB8AA3B

S_X, S_WQKV, S_WO, S_BX, S_WG, S_WU, S_WD, S_OUT, S_DBG, S_WS = 4, 6, 8, 10, 12, 14, 16, 18, 20, 22
R_X, R_W1, R_W2, R_WS, R_DBG, R_A, R_B = 24, 28, 32, 36, 40, 44, 48
S_W, S_R, S_C, S_RB, S_SPLIT, S_T0, S_T1, S_T2, S_T3 = 52, 53, 54, 55, 56, 57, 58, 59, 60
S_WLDS, S_W1B, S_W2B, S_H0, S_H1, S_P0, S_P1, S_NL2E, S_XREG, S_XPAR = 61, 62, 63, 64, 65, 66, 67, 68, 69, 70
S_HG = S_SPLIT

V_LANE, V_L16, V_D1, V_D2 = 1, 2, 3, 4
V_RD = 5
V_T = 11
FR = 16
NFR = int(__import__("os").environ.get("NFR", "6"))
PD = NFR - 2
ACC = 40
XN = 104


def X(rho, s):
    return XN + (rho * 18 + s) * 4


def X32(s):
    return XN + s * 4


import os
STAMP = int(os.environ.get("STAMP", "0"))
_DEF = {"EARLYW": "1"}
def FLAG(n):
    return int(os.environ.get(n, _DEF.get(n, "0")))
MAPC = int(os.environ.get("MAPC", "0"))
_nst = [0]
STSEL = os.environ.get("STSEL", "a,b,f,g,h").split(",")
def stamp(a, name="a"):
    if not STAMP or name not in STSEL:
        return
    k = _nst[0]; _nst[0] += 1
    a.e(f"s_memtime s[{76+4*k}:{77+4*k}]")
    a.e(f"s_memrealtime s[{78+4*k}:{79+4*k}]")
    a.wait_lg0()

def stamp_out(a):
    if not STAMP:
        return
    n = _nst[0]; _nst[0] = 0
    a.e(f"s_lshl_b32 s{S_T0}, s2, 6")
    a.e(f"s_add_u32 s{S_T0}, s{S_T0}, 0x3F00000")
    a.e(f"v_mov_b32 v20, 0")
    a.e(f"s_cmp_eq_u32 s{S_W}, {os.environ.get('STW', '0')}")
    a.e(f"s_cbranch_scc0 L_nostamp{id(a)}_{a.nins}")
    lab = a.out[-1].split()[-1]
    for k in range(n):
        a.e(f"v_mov_b32 v16, s{76+4*k}")
        a.e(f"v_mov_b32 v17, s{78+4*k}")
        a.e(f"buffer_store_dwordx2 v[16:17], v20, {sr(R_WS,4)}, s{S_T0} offen offset:{8*k}")
        a.e("s_nop 2")
    if FLAG("STDBG"):
        a.e(f"s_and_b32 s{S_T0}, s2, 63")
        a.e(f"s_cmp_eq_u32 s{S_T0}, 9")
        a.e(f"s_cbranch_scc0 {lab}")
        a.e(f"s_lshr_b32 s{S_T0}, s2, 6")
        a.e(f"s_cmp_eq_u32 s{S_T0}, 0")
        a.e(f"s_cselect_b32 s{S_T1}, 0, 32")
        a.e(f"s_add_u32 s{S_T0}, s{S_T0}, 1")
        a.e(f"s_and_b32 s{S_T0}, s{S_T0}, 2")
        a.e(f"s_cbranch_scc1 {lab}")
        for k in range(1, n):
            a.e(f"s_sub_u32 s{S_T0}, s{78+4*k}, s78")
            a.e(f"v_mov_b32 v16, s{S_T0}")
            a.e(f"buffer_store_dword v16, v20, {sr(R_DBG,4)}, s{S_T1} offen offset:{4*(k-1)}")
            a.e("s_nop 2")
    a.label(lab)


def srd(a, d, base, nbytes):
    a.e(f"s_mov_b32 s{d}, s{base}")
    a.e(f"s_mov_b32 s{d+1}, s{base+1}")
    a.e(f"s_mov_b32 s{d+2}, {nbytes}")
    a.e(f"s_mov_b32 s{d+3}, 0x20000")


def bf16_round(a, v, tmp=None):
    a.e(f"v_cvt_pk_bf16_f32 v{v}, v{v}, v{v}")
    a.e(f"v_lshlrev_b32 v{v}, 16, v{v}")


def x_stage_issue(a):
    t0, t1, t2 = V_T, V_T + 1, V_T + 2
    a.e(f"v_lshrrev_b32 v{t0}, 3, v{V_LANE}")
    a.e(f"v_and_b32 v{t1}, 7, v{V_LANE}")
    a.e(f"v_lshrrev_b32 v{t2}, 1, v{t0}")
    a.e(f"v_xor_b32 v{t1}, v{t1}, v{t2}")
    a.e(f"v_mul_u32_u24 v{t0}, 1152, v{t0}")
    a.e(f"v_lshl_add_u32 v{t2}, v{t1}, 4, v{t0}")
    a.e(f"v_xor_b32 v{t1}, 4, v{t1}")
    a.e(f"v_lshl_add_u32 v{t1}, v{t1}, 4, v{t0}")
    a.e(f"v_add_u32 v{t1}, {8*1152-1024}, v{t1}")
    a.e(f"s_lshl_b32 s{S_T0}, s{S_RB}, 7")
    a.e(f"s_lshl_b32 s{S_T1}, s{S_R}, 5")
    a.e(f"s_add_u32 s{S_T0}, s{S_T0}, s{S_T1}")
    a.e(f"s_lshl_b32 s{S_T1}, s{S_C}, 4")
    a.e(f"s_add_u32 s{S_T0}, s{S_T0}, s{S_T1}")
    a.e(f"s_mul_i32 s{S_T0}, s{S_T0}, 1152")
    a.e(f"s_lshl_b32 s{S_T1}, s{S_R}, 1")
    a.e(f"s_add_u32 s{S_T2}, s{S_T1}, s{S_C}")
    a.e(f"s_mul_i32 s{S_XREG}, s{S_T2}, 18432")
    a.e(f"s_add_u32 s{S_XREG}, s{S_XREG}, {XBASE}")
    a.e(f"s_xor_b32 s{S_T2}, s{S_T2}, 1")
    a.e(f"s_mul_i32 s{S_XPAR}, s{S_T2}, 18432")
    a.e(f"s_add_u32 s{S_XPAR}, s{S_XPAR}, {XBASE}")
    tk = None
    a.e(f"s_lshr_b32 s{S_T2}, s2, {5 if MAPC else 6}")
    a.e(f"s_lshl_b32 s{S_T2}, s{S_T2}, {7 if MAPC else 8}")
    for cb in range(9):
        a.e(f"s_lshl_b32 s{S_T3}, s{S_T2}, 4")
        a.e(f"s_add_u32 m0, s{S_XREG}, s{S_T3}")
        a.e(f"s_add_u32 s{S_T1}, s{S_T0}, s{S_T2}")
        a.e(f"buffer_load_dwordx4 v{t2}, {sr(R_X,4)}, s{S_T1} offen lds")
        tk = a.e(f"buffer_load_dwordx4 v{t1}, {sr(R_X,4)}, s{S_T1} offen offset:1024 lds")
        if cb < 8:
            a.e(f"s_add_u32 s{S_T2}, s{S_T2}, 128")
            a.e(f"s_cmp_eq_u32 s{S_T2}, 1152")
            a.e(f"s_cselect_b32 s{S_T2}, 0, s{S_T2}")
    return tk


def init_issue(a, vaddr, vtmp):
    return a.e(f"buffer_load_dword v{vtmp}, v{vaddr}, {sr(R_DBG,4)}, 0 offen offset:64 sc1")


def init_check(a, name, vaddr, vtmp, tk):
    a.wait_vm(tk)
    a.e(f"v_cmp_eq_u32 vcc, 0, v{vtmp}")
    a.e(f"s_cbranch_vccz L_ic_{name}_x")
    a.e(f"s_mov_b32 s{S_T2}, 0")
    a.raw(f"L_ic_{name}:")
    a.e_untracked(f"buffer_load_dword v{vtmp}, v{vaddr}, {sr(R_DBG,4)}, 0 offen offset:64 sc1")
    a.e(f"s_add_u32 s{S_T2}, s{S_T2}, 1")
    a.e(f"s_cmp_gt_u32 s{S_T2}, 0x40000")
    a.e(f"s_cbranch_scc1 L_ic_{name}_x")
    a.e("s_waitcnt vmcnt(0)")
    a.e(f"v_cmp_eq_u32 vcc, 0, v{vtmp}")
    a.e(f"s_cbranch_vccnz L_ic_{name}")
    a.raw(f"L_ic_{name}_x:")


def layernorm(a, xtk, after_x=None, m32=False, after_wait=None):
    T = ACC
    m, q = T, T + 1
    a.e(f"v_and_b32 v{m}, 15, v{V_LANE}")
    a.e(f"v_lshrrev_b32 v{q}, 4, v{V_LANE}")
    b = T + 2
    a.e(f"v_and_b32 v{b}, 1, v{q}")
    a.e(f"v_lshlrev_b32 v{b}, 3, v{b}")
    a.e(f"v_lshl_add_u32 v{b}, v{m}, 7, v{b}")
    a.e(f"v_add_u32 v{b}, s{S_XREG}, v{b}")
    sw = T + 3
    a.e(f"v_lshrrev_b32 v{sw}, 1, v{m}")
    if m32:
        a.e(f"v_and_b32 v{T+4}, 2, v{q}")
    else:
        a.e(f"v_lshrrev_b32 v{T+4}, 1, v{q}")
    a.e(f"v_xor_b32 v{sw}, v{sw}, v{T+4}")
    ad = T + 8
    for k in range(4):
        a.e(f"v_xor_b32 v{T+4}, {(4*(k>>1) + (k&1)) if m32 else 2*k}, v{sw}")
        a.e(f"v_lshl_add_u32 v{ad+k}, v{T+4}, 4, v{b}")
    ones = T + 12
    for k in range(4):
        a.e(f"v_mov_b32 v{ones+k}, 0x3f803f80")
    a.wait_vm(xtk)
    stamp(a, 'b')
    if after_wait:
        after_wait()
    s1, s2 = T + 16, T + 20
    tks = []
    for s in range(18):
        for j in range(2):
            tk = a.e(f"ds_read_b64 {vr(X(0,s)+2*j,2)}, v{ad+2*(s&1)+j} offset:{(s>>1)*2048}")
        tks.append(tk)
        if s >= 4:
            ss = s - 4
            a.wait_lg(tks[ss])
            a.e(f"v_mfma_f32_16x16x32_bf16 {vr(s1,4)}, {vr(ones,4)}, {vr(X(0,ss),4)}, {vr(s1,4) if ss else '0'}")
            a.e(f"v_mfma_f32_16x16x32_bf16 {vr(s2,4)}, {vr(X(0,ss),4)}, {vr(X(0,ss),4)}, {vr(s2,4) if ss else '0'}")
    for ss in range(14, 18):
        a.wait_lg(tks[ss])
        a.e(f"v_mfma_f32_16x16x32_bf16 {vr(s1,4)}, {vr(ones,4)}, {vr(X(0,ss),4)}, {vr(s1,4)}")
        a.e(f"v_mfma_f32_16x16x32_bf16 {vr(s2,4)}, {vr(X(0,ss),4)}, {vr(X(0,ss),4)}, {vr(s2,4)}")
    t = T + 4
    a.e(f"v_and_b32 v{t}, 3, v{m}")
    a.e(f"v_cmp_eq_u32 vcc, 1, v{t}")
    a.e(f"v_cndmask_b32 v{s2}, v{s2}, v{s2+1}, vcc")
    a.e(f"v_cmp_eq_u32 vcc, 2, v{t}")
    a.e(f"v_cndmask_b32 v{s2}, v{s2}, v{s2+2}, vcc")
    a.e(f"v_cmp_eq_u32 vcc, 3, v{t}")
    a.e(f"v_cndmask_b32 v{s2}, v{s2}, v{s2+3}, vcc")
    a.e(f"v_lshrrev_b32 v{t}, 2, v{m}")
    a.e(f"v_lshl_add_u32 v{t}, v{t}, 4, v{m}")
    a.e(f"v_lshlrev_b32 v{t}, 2, v{t}")
    tk = a.e(f"ds_bpermute_b32 v{s2}, v{t}, v{s2}")
    inv = 0x3AE38E39
    a.e(f"v_mul_f32 v{s1}, 0x{inv:x}, v{s1}")
    a.wait_lg(tk)
    a.e(f"v_mul_f32 v{s2}, 0x{inv:x}, v{s2}")
    a.e(f"v_fma_f32 v{s2}, -v{s1}, v{s1}, v{s2}")
    a.e(f"v_max_f32 v{s2}, 0, v{s2}")
    bf16_round(a, s2)
    a.e(f"v_add_f32 v{s2}, 0x3727c5ac, v{s2}")
    bf16_round(a, s2)
    a.e(f"v_sqrt_f32 v{s2}, v{s2}")
    bf16_round(a, s2)
    a.e(f"v_rcp_f32 v{s2}, v{s2}")
    bf16_round(a, s1)
    a.e(f"v_mul_f32 v{s1}, v{s1}, v{s2}")
    a.e(f"v_sub_f32 v{s1}, 0, v{s1}")
    stamp(a, 'c')
    wa = T + 5
    a.e(f"v_add_u32 v{wa}, s{S_XREG}, v{V_L16}")
    tmp = T + 24
    for s in range(18):
        for k in range(4):
            xr = X(0, s) + k
            lo = tmp + 2 * k
            a.e(f"v_lshlrev_b32 v{lo}, 16, v{xr}")
            a.e(f"v_and_b32 v{lo+1}, 0xffff0000, v{xr}")
        for k in range(4):
            lo = tmp + 2 * k
            a.e(f"v_fma_f32 v{lo}, v{lo}, v{s2}, v{s1}")
            a.e(f"v_fma_f32 v{lo+1}, v{lo+1}, v{s2}, v{s1}")
        for k in range(4):
            lo = tmp + 2 * k
            a.e(f"v_cvt_pk_bf16_f32 v{X(0,s)+k}, v{lo}, v{lo+1}")
        a.e(f"ds_write_b128 v{wa}, {vr(X(0,s),4)} offset:{s*1024}")
    if m32:
        a.e(f"s_min_u32 s{S_T0}, s{S_XREG}, s{S_XPAR}")
        a.e(f"v_bfe_u32 v{T+4}, v{V_LANE}, 4, 1")
        a.e(f"v_mul_u32_u24 v{wa}, 18432, v{T+4}")
        a.e(f"v_lshrrev_b32 v{T+4}, 5, v{V_LANE}")
        a.e(f"v_lshl_add_u32 v{wa}, v{T+4}, 8, v{wa}")
        a.e(f"v_lshl_add_u32 v{wa}, v{m}, 4, v{wa}")
        a.e(f"v_add_u32 v{wa}, s{S_T0}, v{wa}")
    else:
        a.e(f"v_add_u32 v{wa}, s{S_XPAR}, v{V_L16}")
    a.wait_lg0()
    stamp(a, 'd')
    a.e("s_barrier")
    stamp(a, 'e')
    if after_x:
        after_x()
    if m32:
        for s in range(36):
            a.e(f"ds_read_b128 {vr(X32(s),4)}, v{wa} offset:{s*512}")
    else:
        for s in range(18):
            a.e(f"ds_read_b128 {vr(X(1,s),4)}, v{wa} offset:{s*1024}")
    a.wait_lg0()
    a.e("s_barrier")


def run_stream(a, frags, fill, on_stage, wrap=False, prime=True, tick=None, base=0):
    N = len(frags)
    assert (not wrap) or N % NFR == 0
    if tick is None:
        tick = {}

    def rd(m, j):
        f = frags[m % N]
        if j == 0 and f.get("first"):
            on_stage(f["stage"] + (1000 if m >= N else 0))
        r = FR + 4 * (m % NFR)
        vb, imm = f["rd"][j]
        if FLAG("NORD") and not prime:
            tick[m] = a.lg
            return
        tick[m] = a.e(f"ds_read_b64_tr_b16 {vr(r+2*j,2)}, v{vb} offset:{imm}")

    if prime:
        for m in range(min(PD, N)):
            rd(m, 0)
            rd(m, 1)
        if wrap:
            return tick
    for n in range(N):
        f = frags[n]
        r = FR + 4 * (n % NFR)
        fl = list(fill.get(n, []))
        nm = len(f["mf"])
        for c in f.get("pre", []):
            c()
        a.wait_lg(tick[n])
        for k, mf in enumerate(f["mf"]):
            a.e(mf(r))
            if n + PD < N or wrap:
                if nm == 1:
                    rd(n + PD, 0)
                    rd(n + PD, 1)
                elif k < 2:
                    rd(n + PD, k)
            cnt = (len(fl) + (nm - k) - 1) // (nm - k)
            for c in fl[:cnt]:
                c()
            fl = fl[cnt:]
    if wrap:
        return {m: tick[N + m] for m in range(PD)}
    return tick


def loop(a, label, body, niter_sgpr_dec):
    a.raw(label + ":")
    n0 = len(a.out)
    body()
    niter_sgpr_dec(label)
    t1 = a.out[n0:]
    n1 = len(a.out)
    body()
    niter_sgpr_dec(label)
    t2 = a.out[n1:]
    if t1 != t2:
        for x, y in zip(t1, t2):
            if x != y:
                sys.stderr.write(f"LOOP MISMATCH {label}: {x!r} vs {y!r}\n")
        assert len(t1) == len(t2), "loop body length mismatch"
        import re
        for k, (x, y) in enumerate(zip(t1, t2)):
            if x != y:
                mx, my = re.match(r"\s*s_waitcnt (vm|lgkm)cnt\((\d+)\)", x), re.match(r"\s*s_waitcnt (vm|lgkm)cnt\((\d+)\)", y)
                assert mx and my and mx.group(1) == my.group(1), (x, y)
                t1[k] = x if int(mx.group(2)) <= int(my.group(2)) else y
        a.out[n0:n1] = t1
    del a.out[n1:]


V_FW, V_FR, V_FV, V_FT = 248, 249, 252, 253
FLAGS = 147456


class Sync:
    def __init__(self, a, tag):
        self.a, self.tag, self.slow, self.tk, self.n = a, tag, {}, None, 0

    def setup(self):
        a = self.a
        a.e(f"s_lshl_b32 s{S_T0}, s{S_W}, 8")
        a.e(f"s_add_u32 s{S_T0}, s{S_T0}, {FLAGS+64}")
        a.e(f"v_lshlrev_b32 v{V_FW}, 2, v{V_LANE}")
        a.e(f"v_add_u32 v{V_FW}, s{S_T0}, v{V_FW}")
        a.e(f"s_lshl_b32 s{S_T0}, s{S_W}, 2")
        a.e(f"s_add_u32 s{S_T0}, s{S_T0}, {FLAGS}")
        a.e(f"v_mov_b32 v{V_FT}, s{S_T0}")
        a.e(f"v_cmp_eq_u32 vcc, 0, v{V_LANE}")
        a.e(f"v_cndmask_b32 v{V_FW}, v{V_FW}, v{V_FT}, vcc")
        a.e(f"v_and_b32 v{V_FR}, 7, v{V_LANE}")
        a.e(f"v_lshlrev_b32 v{V_FR}, 2, v{V_FR}")
        a.e(f"v_add_u32 v{V_FR}, {FLAGS}, v{V_FR}")
        a.e(f"v_mov_b32 v{V_FV}, 0")
        a.e(f"ds_write_b32 v{V_FW}, v{V_FV}")

    def arrive(self, tk):
        a = self.a
        a.e(f"v_add_u32 v{V_FV}, 1, v{V_FV}")
        a.wait_vm(tk)
        a.e(f"ds_write_b32 v{V_FW}, v{V_FV}")

    def read(self):
        self.tk = self.a.e(f"ds_read_b32 v{V_FT}, v{V_FR}")

    def check(self, name):
        a = self.a
        if FLAG("NOBAR"):
            return
        a.wait_lg(self.tk)
        a.e(f"v_cmp_lt_u32 vcc, v{V_FT}, v{V_FV}")
        a.e(f"s_cbranch_vccnz L_slow_{self.tag}_{name}")
        a.raw(f"L_back_{self.tag}_{name}:")
        self.slow[name] = 1

    def emit_slow(self):
        a = self.a
        for name in self.slow:
            a.raw(f"L_slow_{self.tag}_{name}:")
            a.raw(f"    ds_read_b32 v{V_FT}, v{V_FR}")
            a.raw(f"    s_waitcnt lgkmcnt(0)")
            a.raw(f"    v_cmp_lt_u32 vcc, v{V_FT}, v{V_FV}")
            a.raw(f"    s_cbranch_vccnz L_slow_{self.tag}_{name}")
            a.raw(f"    s_branch L_back_{self.tag}_{name}")


def spread(fill, items, n0, n1):
    L = len(items)
    span = n1 - n0
    for i, it in enumerate(items):
        n = n0 + (i * span) // L
        fill.setdefault(n, []).append(it)


def rd_bases(a):
    t0, t1, t2 = V_T, V_T + 1, V_T + 2
    a.e(f"v_lshrrev_b32 v{t0}, 4, v{V_LANE}")
    a.e(f"v_lshrrev_b32 v{t1}, 1, v{t0}")
    a.e(f"v_lshlrev_b32 v{t1}, 10, v{t1}")
    a.e(f"v_and_b32 v{t0}, 1, v{t0}")
    a.e(f"v_lshl_add_u32 v{t1}, v{t0}, 8, v{t1}")
    a.e(f"v_lshl_add_u32 v{t1}, v{t0}, 5, v{t1}")
    a.e(f"v_bfe_u32 v{t2}, v{V_LANE}, 2, 2")
    a.e(f"v_lshl_add_u32 v{t1}, v{t2}, 6, v{t1}")
    a.e(f"v_and_b32 v{t2}, 3, v{V_LANE}")
    a.e(f"v_lshl_add_u32 v{t1}, v{t2}, 3, v{t1}")
    a.e(f"s_lshl_b32 s{S_T0}, s{S_C}, 9")
    a.e(f"v_add_u32 v{V_RD}, s{S_T0}, v{t1}")
    a.e(f"v_xor_b32 v{V_RD+3}, 32, v{V_RD}")
    for k in (1, 2):
        a.e(f"v_add_u32 v{V_RD+k}, {49152*k}, v{V_RD}")
        a.e(f"v_add_u32 v{V_RD+3+k}, {49152*k}, v{V_RD+3}")


def rd_bases32(a):
    t1, t2 = V_T + 1, V_T + 2
    a.e(f"v_lshrrev_b32 v{t1}, 5, v{V_LANE}")
    a.e(f"v_lshlrev_b32 v{t1}, 8, v{t1}")
    a.e(f"v_bfe_u32 v{t2}, v{V_LANE}, 2, 2")
    a.e(f"v_lshl_add_u32 v{t1}, v{t2}, 6, v{t1}")
    a.e(f"v_bfe_u32 v{t2}, v{V_LANE}, 4, 1")
    a.e(f"v_lshl_add_u32 v{t1}, v{t2}, 5, v{t1}")
    a.e(f"v_and_b32 v{t2}, 3, v{V_LANE}")
    a.e(f"v_lshl_add_u32 v{t1}, v{t2}, 3, v{t1}")
    a.e(f"s_lshl_b32 s{S_T0}, s{S_C}, 9")
    a.e(f"v_add_u32 v{V_RD}, s{S_T0}, v{t1}")
    for k in (1, 2):
        a.e(f"v_add_u32 v{V_RD+k}, {49152*k}, v{V_RD}")


T_CE, T_CL, T_TR, T_TC, T_ACT, T_FE, T_FS, T_AE, T_AL, T_BK0, T_BK1, T_NG, T_RB_, T_XB = 66, 70, 72, 71, 73, 63, 62, 64, 65, 74, 75, 69, 67, 98


def tail(a, tag, assign, between, late_c1, roles=False):
    a.e("s_load_dwordx2 s[4:5], s[0:1], 56")
    a.e("s_load_dwordx2 s[6:7], s[0:1], 16")
    a.e("s_load_dwordx2 s[8:9], s[0:1], 0")
    a.wait_lg0()
    VF1, VF2, VFL, VFO, VG = 248, 249, 250, 251, V_T + 2
    a.e(f"v_min_u32 v{VF1}, 11, v{V_LANE}")
    a.e(f"v_lshlrev_b32 v{VF1}, 2, v{VF1}")
    a.e(f"v_and_b32 v{VF2}, 3, v{V_LANE}")
    a.e(f"v_lshlrev_b32 v{VF2}, 2, v{VF2}")
    assign()
    if roles:
        a.e(f"s_bitcmp0_b32 s{S_W}, 1")
    else:
        a.e(f"s_cmp_eq_u32 s{S_C}, 0")
    a.e(f"s_cselect_b32 s{T_TC}, s{T_CE}, s{T_CL}")
    a.e(f"s_lshr_b32 s{T_NG}, s{T_TC}, 7")
    a.e(f"s_bfe_u32 s{S_T0}, s{T_TC}, 0x10006")
    a.e(f"s_lshl_b32 s{T_BK0}, s{S_T0}, 3")
    a.e(f"s_lshl_b32 s{S_T0}, s{T_TR}, 1")
    a.e(f"s_add_u32 s{T_BK0}, s{T_BK0}, s{S_T0}")
    a.e(f"s_add_u32 s{T_BK1}, s{T_BK0}, 1")
    a.e(f"s_lshl_b32 s{T_FS}, s{S_RB}, 11")
    a.e(f"s_add_u32 s{T_FS}, s{T_FS}, {FLG}")
    a.e(f"s_lshl_b32 s{S_T1}, s{T_NG}, 6")
    a.e(f"s_add_u32 s{T_FE}, s{T_FS}, s{S_T1}")
    a.e(f"s_add_u32 s{T_FE}, s{T_FE}, 128")
    a.e(f"s_lshl_b32 s{S_T0}, s{S_RB}, 2")
    a.e(f"s_add_u32 s{S_T0}, s{S_T0}, s{T_TR}")
    a.e(f"s_mul_i32 s{S_T0}, s{S_T0}, {32*1152}")
    a.e(f"s_add_u32 s{T_AE}, s{S_T0}, s{T_TC}")
    a.e(f"s_add_u32 s{T_AL}, s{T_AE}, 32")
    srd(a, R_A, 4, 2359296)
    srd(a, R_B, 6, 663552)
    srd(a, R_X, 8, 2359296)
    a.e(f"s_mov_b32 s{S_NL2E}, 0x{NLOG2E:x}")
    a.e(f"s_lshl_b32 s{S_WLDS}, s{S_W}, 10")
    rd_bases32(a)
    a.e(f"v_and_b32 v{VG}, 31, v{V_LANE}")
    a.e(f"v_mul_u32_u24 v{VG}, 1152, v{VG}")
    a.e(f"v_lshrrev_b32 v{VFL}, 5, v{V_LANE}")
    a.e(f"v_lshl_add_u32 v{VG}, v{VFL}, 3, v{VG}")
    a.e(f"s_sub_u32 s{S_T0}, s{T_CL}, s{T_CE}")
    a.e(f"v_mul_lo_u32 v{V_D2}, v{VFL}, s{S_T0}")
    a.e(f"v_bfe_u32 v{VFL}, v{V_LANE}, 2, 3")
    a.e(f"v_mul_u32_u24 v{VFL}, 1152, v{VFL}")
    a.e(f"v_add_u32 v{V_D2}, v{V_D2}, v{VFL}")
    a.e(f"v_and_b32 v{VFL}, 3, v{V_LANE}")
    a.e(f"v_lshl_add_u32 v{V_D2}, v{VFL}, 4, v{V_D2}")
    a.e(f"v_bfe_u32 v{VFL}, v{V_LANE}, 4, 1")
    a.e(f"v_mul_u32_u24 v{VFL}, {32*1152}, v{VFL}")
    a.e(f"v_add_u32 v{V_D1}, v{V_D2}, v{VFL}")
    a.e(f"s_lshr_b32 s{S_T0}, s{S_W}, 1")
    a.e(f"s_mul_i32 s{S_T1}, s{S_T0}, 18")
    a.e(f"s_and_b32 s{S_T2}, s{S_T0}, 1")
    a.e(f"s_lshl_b32 s{S_T2}, s{S_T2}, 1")
    a.e(f"s_add_u32 s{S_T1}, s{S_T1}, s{S_T2}")
    a.e(f"s_and_b32 s{S_T2}, s{S_W}, 1")
    a.e(f"s_lshl_b32 s{S_T3}, s{S_T2}, 3")
    a.e(f"s_add_u32 s{S_T1}, s{S_T1}, s{S_T3}")
    a.e(f"s_mul_i32 s{S_T1}, s{S_T1}, 1152")
    a.e(f"s_add_u32 s{T_RB_}, s{S_T1}, s{T_CE}")
    a.e(f"s_mul_i32 s{S_T0}, s{S_T0}, 144")
    a.e(f"s_mul_i32 s{S_T2}, s{S_T2}, 72")
    a.e(f"s_add_u32 s{S_T0}, s{S_T0}, s{S_T2}")
    a.e(f"s_add_u32 s{S_T0}, s{S_T0}, 16")
    a.e(f"s_mul_i32 s{S_T0}, s{S_T0}, 1152")
    a.e(f"s_add_u32 s{T_XB}, s{S_T0}, s{T_CE}")
    a.e(f"buffer_load_dword v{VFO}, v{VF2}, {sr(R_WS,4)}, s{T_FS} offen sc1")
    tst = a.e(f"buffer_load_dword v{VFL}, v{VF1}, {sr(R_WS,4)}, s{T_FE} offen sc1")
    a.e("s_barrier")
    for k in range(8):
        a.e(f"s_add_u32 m0, s{S_WLDS}, {k*8192}")
        a.e(f"s_add_u32 s{S_T3}, s{T_RB_}, {k*72*1152}")
        a.e(f"buffer_load_dwordx4 v{V_D2}, {sr(R_B,4)}, s{S_T3} offen lds")
    a.e(f"s_add_u32 m0, s{S_WLDS}, {8*8192}")
    a.e("s_nop 0")
    a.e(f"buffer_load_dwordx4 v{V_D1}, {sr(R_B,4)}, s{T_XB} offen lds")
    a.wait_vm(tst)
    a.e("s_barrier")
    between()
    a.e(f"s_cmp_lg_u32 s{T_ACT}, 0")
    a.e(f"s_cbranch_scc1 L_{tag}_work")
    a.e("s_waitcnt vmcnt(0)")
    a.e("s_barrier")
    a.e(f"s_branch L_{tag}_fin")
    a.raw(f"L_{tag}_work:")

    def addr(A):
        k = A // 49152
        return [(V_RD + k, A - 49152 * k), (V_RD + k, A - 49152 * k + 1024)]

    def mk(acc, b, first):
        return lambda r: f"v_mfma_f32_32x32x16_bf16 {vr(acc,16)}, {vr(r,4)}, {vr(b,4)}, {'0' if first else vr(acc,16)}"

    def spin(name, vaddr, soff, want, preloaded=False, VFL=VFL):
        name = tag + name
        a.e(f"s_mov_b32 s{S_T2}, 0")
        if preloaded:
            a.e(f"s_branch L_sp_{name}_c")
        a.raw(f"L_sp_{name}:")
        a.e_untracked(f"buffer_load_dword v{VFL}, v{vaddr}, {sr(R_WS,4)}, s{soff} offen sc1")
        a.e(f"s_add_u32 s{S_T2}, s{S_T2}, 1")
        a.e(f"s_cmp_gt_u32 s{S_T2}, 0x40000")
        a.e(f"s_cbranch_scc1 L_sp_{name}_x")
        a.e("s_waitcnt vmcnt(0)")
        a.raw(f"L_sp_{name}_c:")
        a.e(f"v_cmp_gt_u32 vcc, {want}, v{VFL}")
        a.e(f"s_cbranch_vccz L_sp_{name}_x")
        a.e(f"s_sleep {os.environ.get('SLP', '4')}")
        a.e(f"s_branch L_sp_{name}")
        a.raw(f"L_sp_{name}_x:")

    def ld_part(dst, bk, xr, aoff):
        a.e(f"s_mul_i32 s{S_T0}, s{S_RB}, 9")
        a.e(f"s_add_u32 s{S_T0}, s{S_T0}, s{T_NG}")
        a.e(f"s_lshl_b32 s{S_T0}, s{S_T0}, 4")
        a.e(f"s_add_u32 s{S_T0}, s{S_T0}, s{bk}")
        a.e(f"s_lshl_b32 s{S_T0}, s{S_T0}, 10")
        a.e(f"s_add_u32 s{S_T0}, s{S_T0}, {PART}")
        for p in range(12):
            a.e(f"buffer_load_dwordx4 {vr(dst+4*p,4)}, v{V_L16}, {sr(R_WS,4)}, s{S_T0} offen sc1")
            if p < 11:
                a.e(f"s_add_u32 s{S_T0}, s{S_T0}, {PSZ}")
        a.e(f"buffer_load_dwordx2 {vr(xr,2)}, v{VG}, {sr(R_X,4)}, s{aoff} offen")
        a.e(f"buffer_load_dwordx2 {vr(xr+2,2)}, v{VG}, {sr(R_X,4)}, s{aoff} offen offset:16")

    def unp(dst, src):
        for k in range(4):
            a.e(f"v_lshlrev_b32 v{dst+2*k}, 16, v{src+k}")
            a.e(f"v_and_b32 v{dst+2*k+1}, 0xffff0000, v{src+k}")

    def rnd(F, Pk):
        for k in range(4):
            a.e(f"v_cvt_pk_bf16_f32 v{Pk+k}, v{F+2*k}, v{F+2*k+1}")
        unp(F, Pk)

    def silu_sum(src, F, T, Pk):
        for p in range(12):
            unp(F if p == 0 else T, src + 4 * p)
            if p:
                for k in range(8):
                    a.e(f"v_add_f32 v{F+k}, v{F+k}, v{T+k}")
        rnd(F, Pk)
        for k in range(8):
            a.e(f"v_mul_f32 v{T+k}, s{S_NL2E}, v{F+k}")
        for k in range(8):
            a.e(f"v_exp_f32 v{T+k}, v{T+k}")
        for k in range(8):
            a.e(f"v_add_f32 v{T+k}, 1.0, v{T+k}")
        for k in range(8):
            a.e(f"v_rcp_f32 v{T+k}, v{T+k}")
        for k in range(8):
            a.e(f"v_mul_f32 v{F+k}, v{F+k}, v{T+k}")
        rnd(F, Pk)

    def finish(F, T, Pk, sreg, xr, aoff):
        rnd(sreg, Pk)
        for k in range(8):
            a.e(f"v_mul_f32 v{F+k}, v{F+k}, v{sreg+k}")
        rnd(F, Pk)
        unp(T, xr)
        for k in range(8):
            a.e(f"v_add_f32 v{F+k}, v{F+k}, v{T+k}")
        for k in range(4):
            a.e(f"v_cvt_pk_bf16_f32 v{Pk+k}, v{F+2*k}, v{F+2*k+1}")
        om = os.environ.get("OSTM", "")
        a.e(f"buffer_store_dwordx2 {vr(Pk,2)}, v{VG}, {sr(R_A,4)}, s{aoff} offen {om}")
        a.e(f"buffer_store_dwordx2 {vr(Pk+2,2)}, v{VG}, {sr(R_A,4)}, s{aoff} offen offset:16 {om}")
    PE, PL = X32(0), X32(12)
    XE, XL_ = ACC, ACC + 4
    FE, FL_, TT, PK, PK2, SACC = ACC + 8, ACC + 16, ACC + 24, ACC + 32, ACC + 36, ACC + 48

    to = {}

    def ld_o(ks):
        a.e(f"s_lshl_b32 s{S_T0}, s{S_RB}, 2")
        a.e(f"s_add_u32 s{S_T0}, s{S_T0}, s{T_TR}")
        a.e(f"s_mul_i32 s{S_T0}, s{S_T0}, 36864")
        a.e(f"s_add_u32 s{S_T0}, s{S_T0}, {OF + ks[0]*1024}")
        for n, k in enumerate(ks):
            if n % 4 == 0 and n:
                a.e(f"s_add_u32 s{S_T0}, s{S_T0}, 4096")
            to[k] = a.e(f"buffer_load_dwordx4 {vr(X32(k),4)}, v{V_L16}, {sr(R_WS,4)}, s{S_T0} offen offset:{(n%4)*1024} sc1")

    def gemm(order):
        fr3 = [dict(stage=0, first=False, rd=addr(k * 2048), pre=[lambda k=k: a.wait_vm(to[k])], mf=[mk(SACC, X32(k), n == 0)]) for n, k in enumerate(order)]
        run_stream(a, fr3, {}, None)
    if roles:
        SX = 73728
        a.e(f"s_cmp_eq_u32 s{S_C}, 0")
        a.e(f"s_cbranch_scc0 L_{tag}_sum")
        a.wait_vm0()
        a.e("s_barrier")
        a.e(f"s_cmp_lt_u32 s{S_W}, 2")
        a.e(f"s_cbranch_scc0 L_{tag}_idle")
        spin("og", VF2, T_FS, 2, preloaded=True, VFL=VFO)
        ld_o(list(range(36)))
        SA, SB_ = ACC, ACC + 16
        fr3 = []
        for k in range(36):
            for p_, ac in ((0, SA), (1, SB_)):
                rd_ = [(vb, im + 512 * p_) for vb, im in addr(k * 2048)]
                fr3.append(dict(stage=0, first=False, rd=rd_, pre=[lambda k=k: a.wait_vm(to[k])], mf=[mk(ac, X32(k), k == 0)]))
        run_stream(a, fr3, {}, None)
        a.e(f"s_lshl_b32 s{S_T0}, s{S_W}, 11")
        a.e(f"s_add_u32 s{S_T0}, s{S_T0}, {SX}")
        a.e(f"v_add_u32 v{VFL}, s{S_T0}, v{V_L16}")
        for p_, ac in ((0, SA), (1, SB_)):
            for k in range(8):
                a.e(f"v_cvt_pk_bf16_f32 v{ac+k}, v{ac+2*k}, v{ac+2*k+1}")
            a.e(f"ds_write_b128 v{VFL}, {vr(ac,4)} offset:{p_*4096}")
            a.e(f"ds_write_b128 v{VFL}, {vr(ac+4,4)} offset:{p_*4096+1024}")
        a.wait_lg0()
        a.raw(f"L_{tag}_idle:")
        a.e("s_barrier")
        a.e(f"s_branch L_{tag}_fin")
        a.raw(f"L_{tag}_sum:")
        a.barrier_hist()
        a.wait_vm0()
        a.e("s_barrier")
        spin("es", VF1, T_FE, 1, preloaded=True)
        ld_part(PE, T_BK0, XE, T_AE)
        tp = a.vm
        ld_part(PL, T_BK1, XL_, T_AL)
        a.e(f"s_lshl_b32 s{S_T0}, s{S_R}, 11")
        a.e(f"s_add_u32 s{S_T0}, s{S_T0}, {SX}")
        a.e(f"v_add_u32 v{VFL}, s{S_T0}, v{V_L16}")
        a.wait_vm(tp)
        silu_sum(PE, FE, TT, PK)
        a.wait_vm0()
        silu_sum(PL, FL_, TT, PK)
        stamp(a, 'u')
        a.e("s_barrier")
        a.e(f"ds_read_b128 {vr(PE,4)}, v{VFL}")
        a.e(f"ds_read_b128 {vr(PE+4,4)}, v{VFL} offset:1024")
        a.wait_lg0()
        unp(SACC, PE)
        unp(SACC + 8, PE + 4)
        finish(FE, TT, PK, SACC, XE, T_AE)
        finish(FL_, TT, PK2, SACC + 8, XL_, T_AL)
        a.raw(f"L_{tag}_fin:")
        return
    if late_c1:
        a.e(f"s_cmp_eq_u32 s{S_C}, 0")
        a.e(f"s_cbranch_scc0 L_{tag}_late")
    spin("ea", VF1, T_FE, 1, preloaded=True)
    ld_part(PE, T_BK0, XE, T_AE)
    ld_part(PL, T_BK1, XL_, T_AL)
    a.e(f"buffer_load_dword v{VFO}, v{VF2}, {sr(R_WS,4)}, s{T_FS} offen sc1")
    a.wait_vm0()
    a.e("s_barrier")
    spin("oa", VF2, T_FS, 2, preloaded=True, VFL=VFO)
    ld_o(list(range(24, 36)))
    silu_sum(PE, FE, TT, PK)
    ld_o(list(range(0, 12)))
    silu_sum(PL, FL_, TT, PK)
    ld_o(list(range(12, 24)))
    stamp(a, 't')
    gemm(list(range(24, 36)) + list(range(0, 24)))
    if late_c1:
        a.e(f"s_branch L_{tag}_join")
        a.raw(f"L_{tag}_late:")
        a.barrier_hist()
        a.wait_vm0()
        a.e("s_barrier")
        spin("ob", VF2, T_FS, 2, preloaded=True, VFL=VFO)
        ld_o(list(range(36)))
        tf = a.e(f"buffer_load_dword v{VFL}, v{VF1}, {sr(R_WS,4)}, s{T_FE} offen sc1")
        gemm(list(range(36)))
        stamp(a, 'u')
        a.wait_vm(tf)
        spin("eb", VF1, T_FE, 1, preloaded=True)
        ld_part(PE, T_BK0, XE, T_AE)
        tp = a.vm
        ld_part(PL, T_BK1, XL_, T_AL)
        a.wait_vm(tp)
        silu_sum(PE, FE, TT, PK)
        a.wait_vm0()
        silu_sum(PL, FL_, TT, PK)
        a.raw(f"L_{tag}_join:")
        a.e("s_nop 7")
        a.e("s_nop 7")
    finish(FE, TT, PK, SACC, XE, T_AE)
    finish(FL_, TT, PK2, SACC + 8, XL_, T_AL)
    a.raw(f"L_{tag}_fin:")


def mlp(a):
    KPS = int(os.environ.get("KPS", "3"))
    NS = 18 // KPS
    SB = KPS * 8192
    FPS = KPS * 4
    USEBAR = os.environ.get("SYNC", "bar") == "bar"
    SL = int(os.environ.get("SLACK", str(FPS - 4)))
    t0, t1, t2 = V_T + 3, V_T + 4, ACC
    a.e(f"s_cmp_lt_u32 s{S_W}, 4")
    a.e(f"s_cselect_b32 s{R_W1}, s{S_WG}, s{S_WU}")
    a.e(f"s_cselect_b32 s{R_W1+1}, s{S_WG+1}, s{S_WU+1}")
    a.e(f"s_mov_b32 s{R_W1+2}, 5308416")
    a.e(f"s_mov_b32 s{R_W1+3}, 0x20000")
    srd(a, R_W2, S_WD, 5308416)
    stamp(a)
    xtk = x_stage_issue(a)
    a.e(f"v_bfe_u32 v{t0}, v{V_LANE}, 2, 3")
    a.e(f"v_and_b32 v{t1}, 3, v{V_LANE}")
    a.e(f"v_lshrrev_b32 v{t2}, 5, v{V_LANE}")
    a.e(f"v_lshlrev_b32 v{t2}, 6, v{t2}")
    a.e(f"v_lshl_add_u32 v{t1}, v{t1}, 4, v{t2}")
    a.e(f"v_mul_u32_u24 v{V_D1}, 9216, v{t0}")
    a.e(f"v_add_u32 v{V_D1}, v{V_D1}, v{t1}")
    a.e(f"v_mul_u32_u24 v{V_D2}, 1152, v{t0}")
    a.e(f"v_add_u32 v{V_D2}, v{V_D2}, v{t1}")
    a.e(f"s_lshl_b32 s{S_WLDS}, s{S_W}, 10")
    a.e(f"s_mul_i32 s{S_T0}, s{S_SPLIT}, 384")
    a.e(f"s_mul_i32 s{S_W1B}, s{S_R}, {8*9216}")
    a.e(f"s_lshl_b32 s{S_T1}, s{S_T0}, 1")
    a.e(f"s_add_u32 s{S_W1B}, s{S_W1B}, s{S_T1}")
    a.e(f"s_lshl_b32 s{S_T1}, s{S_W}, 3")
    a.e(f"s_add_u32 s{S_T1}, s{S_T1}, s{S_T0}")
    a.e(f"s_mul_i32 s{S_W2B}, s{S_T1}, 1152")
    V_PF, V_PF2 = 8, 9
    S_PFO, S_PFS = S_H1, 98
    R_PF = R_B
    p0, p1 = FR, FR + 1
    NL = 36 if MAPC else 18
    a.e(f"s_and_b32 s{S_T0}, s{S_RB}, {3 if MAPC else 7}")
    a.e(f"s_lshl_b32 s{S_T1}, s{S_T0}, 2")
    a.e(f"s_add_u32 s{S_T1}, s{S_T1}, s{S_R}")
    a.e(f"s_mul_i32 s{S_T1}, s{S_T1}, {NL}")
    a.e(f"v_add_u32 v{p0}, s{S_T1}, v{V_LANE}")
    a.e(f"v_mul_u32_u24 v{p0}, 9216, v{p0}")
    a.e(f"v_cmp_gt_u32 vcc, {NL}, v{V_LANE}")
    a.e(f"v_cndmask_b32 v{V_PF}, -1, v{p0}, vcc")
    a.e(f"v_mul_u32_u24 v{p0}, 86, v{V_LANE}")
    a.e(f"v_lshrrev_b32 v{p0}, 8, v{p0}")
    a.e(f"v_mul_u32_u24 v{p1}, 3, v{p0}")
    a.e(f"v_sub_u32 v{p1}, v{V_LANE}, v{p1}")
    a.e(f"s_lshl_b32 s{S_T1}, s{S_T0}, 3")
    a.e(f"s_add_u32 s{S_T1}, s{S_T1}, s{S_W}")
    a.e(f"s_mul_i32 s{S_T1}, s{S_T1}, {NL // 3}")
    a.e(f"v_add_u32 v{p0}, s{S_T1}, v{p0}")
    a.e(f"v_mul_u32_u24 v{p0}, 1152, v{p0}")
    a.e(f"v_lshl_add_u32 v{p0}, v{p1}, 7, v{p0}")
    a.e(f"v_cndmask_b32 v{V_PF2}, -1, v{p0}, vcc")
    for k in range(4):
        a.e(f"s_mov_b32 s{R_PF+k}, s{R_W1+k}")
    a.e(f"s_mul_i32 s{S_PFO}, s{S_SPLIT}, 768")
    a.e(f"s_mov_b32 s{S_PFS}, 128")

    def pf():
        if not FLAG("NOPF"):
            a.e(f"buffer_load_dword v0, v{V_PF}, {sr(R_PF,4)}, s{S_PFO} offen")
        if FLAG("PF64"):
            a.e(f"buffer_load_dword v0, v{V_PF}, {sr(R_PF,4)}, s{S_PFO} offen offset:64")
        a.e(f"s_add_u32 s{S_PFO}, s{S_PFO}, s{S_PFS}")

    dtk = {}

    def dma_raw(g, i, voff, srd_, soff, mid=None):
        if FLAG("NODMA") and a.always:
            dtk[g % NS] = a.vm
            return
        a.e(f"s_add_u32 m0, s{S_WLDS}, {(g % NS) * SB + i*8192}")
        if mid:
            a.e(mid)
        dtk[g % NS] = a.e(f"buffer_load_dwordx4 v{voff}, {sr(srd_,4)}, s{soff} offen lds")

    def dma_p0(d):
        dma_raw(d // KPS, d % KPS, V_D1, R_W1, S_T3, f"s_add_u32 s{S_T3}, s{S_W1B}, {d*294912}")

    def after_wait():
        dma_p0(0)
        dma_p0(1)
        pf()
    if FLAG("EARLYW"):
        after_wait()
    rd_bases32(a)
    a.e(f"s_lshl_b32 s{S_T0}, s{S_SPLIT}, 4")
    a.e(f"s_add_u32 s{S_T0}, s{S_T0}, s{S_RB}")
    a.e(f"s_mul_i32 s{S_T0}, s{S_T0}, 98304")
    a.e(f"s_lshl_b32 s{S_T2}, s{S_R}, 10")
    a.e(f"s_add_u32 s{S_H0}, s{S_T0}, s{S_T2}")
    a.e(f"s_mul_i32 s{S_T0}, s{S_SPLIT}, {PSZ}")
    a.e(f"s_mul_i32 s{S_T3}, s{S_RB}, {9*16384}")
    a.e(f"s_add_u32 s{S_T0}, s{S_T0}, s{S_T3}")
    a.e(f"s_lshl_b32 s{S_T3}, s{S_C}, 13")
    a.e(f"s_add_u32 s{S_T0}, s{S_T0}, s{S_T3}")
    a.e(f"s_add_u32 s{S_T0}, s{S_T0}, {PART}")
    a.e(f"s_lshl_b32 s{S_T2}, s{S_R}, 11")
    a.e(f"s_add_u32 s{S_P0}, s{S_T0}, s{S_T2}")
    a.e(f"s_mov_b32 s{S_NL2E}, 0x{NLOG2E:x}")
    itk = []
    PFD = int(os.environ.get('PFD', '2'))

    def after_x():
        a.e(f"s_lshl_b32 s{S_T0}, s{S_RB}, 2")
        a.e(f"v_mov_b32 v{V_T+2}, s{S_T0}")
        itk.append(init_issue(a, V_T + 2, V_T + 3))
        for _ in range(PFD - 1):
            pf()
    layernorm(a, xtk, m32=True, after_x=after_x, after_wait=None if FLAG('EARLYW') else after_wait)
    stamp(a, 'f')
    for d in range(2, (NS - 2) * KPS):
        dma_p0(d)
    init_check(a, "m", V_T + 2, V_T + 3, itk[0])
    V_DN = V_T + 4
    VEX = V_T
    S_IT, S_CUR, S_PTR, S_STEP, S_ADJ, S_HST = 71, 72, 73, 74, 75, S_XREG
    R_N = R_A
    a.e(f"s_mov_b32 s{S_IT}, 0")
    a.e(f"s_mov_b32 s{S_CUR}, s{S_W1B}")
    a.e(f"s_mov_b32 s{S_HST}, 0x70000000")
    sy = Sync(a, "m")
    if not USEBAR:
        sy.setup()

    def addr(A):
        k = A // 49152
        return [(V_RD + k, A - 49152 * k), (V_RD + k, A - 49152 * k + 1024)]

    def acc1(st, mat):
        return ACC + st * 32 + mat * 16

    def mk(acc, b, first):
        return lambda r: f"v_mfma_f32_32x32x16_bf16 {vr(acc,16)}, {vr(r,4)}, {vr(b,4)}, {'0' if first else vr(acc,16)}"

    def E(text):
        return lambda: a.e(text)

    def copy_items(mat):
        A_, E_ = acc1(0, mat), acc1(1, mat)
        return [E(f"v_mul_f32 v{E_+i}, s{S_NL2E}, v{A_+i}") if mat == 0 else E(f"v_mov_b32 v{E_+i}, v{A_+i}") for i in range(16)]

    hst = {}

    def epi1(last, st_=1):
        items = []
        G0, U0 = acc1(st_, 0), acc1(st_, 1)
        for u in range(2):
            for h in range(2):
                G, U = G0 + 8 * u + 4 * h, U0 + 8 * u + 4 * h
                items += [E(f"v_mul_f32 v{G+i}, s{S_NL2E}, v{G+i}") for i in range(4)]
                items += [E(f"v_exp_f32 v{G+i}, v{G+i}") for i in range(4)]
                items += [E(f"v_add_f32 v{G+i}, 1.0, v{G+i}") for i in range(4)]
                items += [E(f"v_rcp_f32 v{G+i}, v{G+i}") for i in range(4)]
                items += [E(f"v_mul_f32 v{U+i}, v{U+i}, v{G+i}") for i in range(4)]
            D, U = G0 + 8 * u, U0 + 8 * u
            items += [E(f"v_cvt_pk_bf16_f32 v{D+k}, v{U+2*k}, v{U+2*k+1}") for k in range(4)]
            if not last:
                def st(u=u, D=D):
                    a.e(f"s_add_u32 s{S_T0}, s{S_HST}, {u*4096}")
                    hst[0] = a.e(f"buffer_store_dwordx4 {vr(D,4)}, v{V_L16}, {sr(R_WS,4)}, s{S_T0} offen {os.environ.get('HSTM','')}")
                items.append(st)
            else:
                def st(u=u, D=D):
                    hst[5] = a.e(f"ds_write_b128 v{VEX+1}, {vr(D,4)} offset:{u*4096}")
                items.append(st)
        return items

    ool = []
    def mkfrags(st_):
        frags = []
        for s16 in range(36):
            ks = s16 // 2
            g = ks // KPS
            for mat in range(2):
                A = g * SB + (ks % KPS) * 8192 + mat * 4096 + (s16 & 1) * 2048
                frags.append(dict(stage=g, first=(len(frags) % FPS == 0), rd=addr(A),
                                  mf=[mk(acc1(st_, mat), X32(s16), s16 == 0)]))
        return frags
    fragsAB = [mkfrags(0), mkfrags(1)]
    frags = fragsAB[0]
    DSP = FPS // KPS - 1
    GL = NS - 1

    def place_dma(fl, fn, setf):
        for g in range(NS):
            n0 = max(g * FPS - PD + 2, 0)
            if g == 2 and setf:
                fl.setdefault(n0 - 1, []).append(setf)
            for i in range(KPS):
                fl.setdefault(n0 + DSP * i, []).append(fn(g, i))

    hld = {}

    def pf_switch():
        a.e(f"s_mul_i32 s{S_PFO}, s{S_SPLIT}, {384*1152}")
        a.e(f"s_mov_b32 s{S_PFS}, 384")
        a.e(f"s_mov_b32 s{R_PF}, s{R_W2}")
        a.e(f"s_mov_b32 s{R_PF+1}, s{R_W2+1}")
        a.e(f"v_mov_b32 v{V_PF}, v{V_PF2}")
        pf()

    if PFD > 2:
        ool.append("\n".join(["L_p1_pf:",
            f"    s_mul_i32 s{S_PFO}, s{S_SPLIT}, {384*1152}", f"    s_mov_b32 s{S_PFS}, 384",
            f"    s_mov_b32 s{R_PF}, s{R_W2}", f"    s_mov_b32 s{R_PF+1}, s{R_W2+1}", f"    v_mov_b32 v{V_PF}, v{V_PF2}", "    s_nop 1", "    s_branch L_p1_pfb"]))

    def build_fill(last, st_=0, sw=False, inloop=False):
        fl = {}
        spread(fl, epi1(False, 1 - st_), 3, int(os.environ.get("EPIEND", "40")))

        def dma1(g, i):
            def f():
                if g < 2:
                    dma_raw(g + NS - 2, i, V_D1, R_W1, S_T3, f"s_add_u32 s{S_T3}, s{S_CUR}, {((g+NS-2)*KPS+i)*294912}")
                else:
                    d = (g - 2) * KPS + i
                    if not last:
                        dma_raw(g - 2, i, V_D1, R_W1, S_T3, f"s_add_u32 s{S_T3}, s{S_CUR}, {128 + d*294912}")
                    else:
                        dma_raw(g - 2, i, V_D2, R_W2, S_T3, f"s_add_u32 s{S_T3}, s{S_W2B}, {(d%6)*73728 + (d//6)*128}")
            return f
        place_dma(fl, dma1, None)
        if inloop and PFD > 2 and (6 - PFD) % 2 == st_:
            def pfd():
                a.e(f"s_cmp_eq_u32 s{S_IT}, {6 - PFD}")
                a.e("s_cbranch_scc1 L_p1_pf")
                a.raw("L_p1_pfb:")
                pf()
            fl.setdefault(5, []).append(pfd)
        else:
            fl.setdefault(5, []).append(pf_switch if (sw and PFD == 2) else pf)
        if last:
            def hload(kap):
                def f():
                    a.e(f"s_add_u32 s{S_T0}, s{S_H0}, {HS + kap*4096}")
                    if FLAG("NOHLD"):
                        hld[0] = a.vm
                        return
                    hld[0] = a.e(f"buffer_load_dwordx4 {vr(X32(kap),4)}, v{V_L16}, {sr(R_WS,4)}, s{S_T0} offen")
                return f
            NHE = int(os.environ.get("NHE", "13"))
            for kap in range(NHE):
                fl.setdefault((66 * kap) // NHE + 4, []).append(hload(kap))
            hld['late'] = [hload(kap) for kap in range(NHE, 20)]
        return fl
    fill = build_fill(False)

    def add_sync(fl, extra=None):
        if USEBAR:
            return
        for g in range(NS):
            def arr(g=g):
                tk = dtk[g]
                if extra and g in extra:
                    tk = max(tk, extra[g]())
                sy.arrive(tk)
            fl.setdefault((FPS * g - PD - SL) % 72, []).insert(0, arr)
            fl.setdefault((FPS * g - PD - 2) % 72, []).insert(0, sy.read)
    add_sync(fill, {GL: lambda: hst[0]})
    first1 = [True]

    def on_stage1(g):
        g %= 1000
        if first1[0]:
            first1[0] = False
            a.wait_vm(dtk[0])
            a.wait_lg0()
            a.e("s_barrier")
            stamp(a, 'i')
            if FLAG("ITST"):
                a.e("s_memtime s[94:95]")
                a.wait_lg0()
                a.e(f"v_writelane_b32 v255, s94, 0")
            return
        if USEBAR:
            a.wait_vm(max(dtk[g], hst[0]) if g == GL else dtk[g])
            if not FLAG("NOBAR"):
                a.e("s_barrier")
        else:
            sy.check(f"a{g}")

    a.always = True
    tk1 = [run_stream(a, frags, fill, on_stage1, wrap=True, prime=True)]

    def adv():
        if FLAG("ITST"):
            a.e("s_memtime s[94:95]")
            a.wait_lg0()
            a.e(f"s_add_u32 m0, s{S_IT}, 1")
            a.e("s_nop 1")
            a.e(f"v_writelane_b32 v255, s94, m0")
        a.e(f"s_lshl_b32 s{S_T0}, s{S_C}, 13")
        a.e(f"s_lshl_b32 s{S_HST}, s{S_IT}, 14")
        a.e(f"s_add_u32 s{S_HST}, s{S_HST}, s{S_T0}")
        a.e(f"s_add_u32 s{S_HST}, s{S_HST}, s{S_H0}")
        a.e(f"s_add_u32 s{S_CUR}, s{S_CUR}, 128")
        a.e(f"s_add_u32 s{S_IT}, s{S_IT}, 1")

    def body1():
        for st_ in range(2):
            tk1[0] = run_stream(a, fragsAB[st_], build_fill(False, st_, inloop=True), on_stage1, wrap=True, prime=False, tick=dict(tk1[0]))
            adv()

    def dec1(label):
        a.e(f"s_cmp_lt_u32 s{S_IT}, 4")
        a.e(f"s_cbranch_scc1 {label}")
    loop(a, "L_p1", body1, dec1)
    tk1[0] = run_stream(a, fragsAB[0], build_fill(False, 0, sw=True), on_stage1, wrap=True, prime=False, tick=dict(tk1[0]))
    adv()
    run_stream(a, fragsAB[1], build_fill(True, 1), on_stage1, wrap=False, prime=False, tick=dict(tk1[0]))
    if FLAG("ITST"):
        a.e("s_memtime s[94:95]")
        a.wait_lg0()
        a.e(f"v_writelane_b32 v255, s94, 6")
    a.always = False
    for f_ in hld['late']:
        f_()
    ND = (NS - 2) * KPS
    a.e(f"s_add_u32 s{S_PTR}, s{S_W2B}, {(ND%6)*73728 + (ND//6)*128}")
    a.e(f"s_lshl_b32 s{S_T0}, s{S_R}, 10")
    a.e(f"s_add_u32 s{S_T0}, s{S_T0}, {(NS-1)*SB}")
    a.e(f"v_add_u32 v{VEX}, s{S_T0}, v{V_L16}")
    a.e(f"s_lshl_b32 s{S_T0}, s{S_C}, 13")
    a.e(f"v_add_u32 v{VEX+1}, s{S_T0}, v{VEX}")
    its = epi1(True, 1)
    a.wait_lg0()
    for it in its[:20]:
        it()
    a.e("s_barrier")
    for it in its[20:]:
        it()
    a.wait_vm(max(dtk[0], hld[0]))
    a.wait_lg0()
    a.e("s_barrier")
    stamp(a, 'j')
    if FLAG("ITST"):
        a.e("s_memtime s[94:95]")
        a.wait_lg0()
        a.e(f"v_writelane_b32 v255, s94, 7")
    pf()
    for kap in range(20, 24):
        a.e(f"ds_read_b128 {vr(X32(kap),4)}, v{VEX} offset:{(kap-20)*4096}")
    def acc2(j):
        return ACC + j * 16
    S_PST = S_HST
    a.e(f"s_mov_b32 s{S_IT}, 0")
    a.e(f"s_mov_b32 s{S_PST}, 0x70000000")

    def epi2(j, off_sgpr, off_imm):
        items = []
        for u in range(2):
            P = acc2(j) + 8 * u
            items += [E(f"v_cvt_pk_bf16_f32 v{P+k}, v{P+2*k}, v{P+2*k+1}") for k in range(4)]

            def st(u=u, P=P):
                if u == 0:
                    a.e(f"s_add_u32 s{S_P1}, s{S_P0}, {('s%d' % off_sgpr) if off_sgpr is not None else off_imm}")
                pst[j] = a.e(f"buffer_store_dwordx4 {vr(P,4)}, v{V_L16}, {sr(R_WS,4)}, s{S_P1} offen offset:{u*1024} sc1")
            items.append(st)
        return items
    pst = {}
    S_TRG, S_SITE, S_RNG, S_RBLK, S_NG0 = S_CUR, S_STEP, S_ADJ, S_W1B, S_PFS
    RB_, F_, T_, VG = X32(24), ACC + 48, ACC + 56, V_T + 2
    a.e(f"s_lshr_b32 s{S_RNG}, s{S_SPLIT}, 1")
    a.e(f"s_add_u32 s{S_TRG}, s{S_RNG}, {3 if not FLAG('NORED') else 100}")
    a.e(f"s_and_b32 s{S_RBLK}, s{S_SPLIT}, 1")
    a.e(f"s_lshl_b32 s{S_RBLK}, s{S_RBLK}, 3")
    a.e(f"s_add_u32 s{S_RBLK}, s{S_RBLK}, s{S_W}")
    a.e(f"s_mov_b32 s{S_NG0}, 0")
    S_TR2 = S_W2B
    a.e(f"s_mov_b32 s{S_TR2}, 100")
    a.e(f"v_and_b32 v{VG}, 31, v{V_LANE}")
    a.e(f"v_mul_u32_u24 v{VG}, 1152, v{VG}")
    a.e(f"v_lshrrev_b32 v{VG+1}, 5, v{V_LANE}")
    a.e(f"v_lshl_add_u32 v{VG}, v{VG+1}, 3, v{VG}")

    def sub(name, body, nsite):
        b = Asm()
        b.raw(f"L_{name}:")
        body(b)
        for k in range(nsite - 1):
            b.e(f"s_cmp_eq_u32 s{S_SITE}, {k}")
            b.e(f"s_cbranch_scc1 L_{name}_b{k}")
        b.e(f"s_branch L_{name}_b{nsite-1}")
        for k in range(nsite - 1):
            b.raw(f"L_{name}_t{k}:")
            b.e(f"s_mov_b32 s{S_SITE}, {k}")
            b.e(f"s_branch L_{name}")
        ool.append(b.text())

    def flag_addr(b):
        b.e(f"s_lshl_b32 s{S_T0}, s{S_RB}, 11")
        b.e(f"s_lshl_b32 s{S_T1}, s{S_RNG}, 6")
        b.e(f"s_add_u32 s{S_T0}, s{S_T0}, s{S_T1}")
        b.e(f"s_add_u32 s{S_T0}, s{S_T0}, {FLG + 128}")

    def r0(b):
        flag_addr(b)
        b.e(f"v_min_u32 v{T_}, 11, v{V_LANE}")
        b.e(f"v_lshlrev_b32 v{T_}, 2, v{T_}")
        b.e(f"buffer_load_dword v{T_+1}, v{T_}, {sr(R_WS,4)}, s{S_T0} offen sc1")

    def r1(b):
        b.e("s_waitcnt vmcnt(R1WAIT)")
        b.e(f"v_cmp_eq_u32 vcc, 0, v{T_+1}")
        b.e(f"s_add_u32 s{S_T3}, s{S_T0}, 1")
        b.e("s_cbranch_vccz L_r1_px")
        b.e(f"s_cmp_lt_u32 s{S_SITE}, 3")
        b.e("s_cbranch_scc1 L_r1_ret")
        flag_addr(b)
        b.e(f"s_mov_b32 s{S_T2}, 0")
        b.raw("L_r1_poll:")
        b.e(f"buffer_load_dword v{T_+1}, v{T_}, {sr(R_WS,4)}, s{S_T0} offen sc1")
        b.e(f"s_add_u32 s{S_T2}, s{S_T2}, 1")
        b.e(f"s_cmp_gt_u32 s{S_T2}, 0x40000")
        b.e("s_cbranch_scc1 L_r1_px")
        b.e("s_waitcnt vmcnt(0)")
        b.e(f"v_cmp_eq_u32 vcc, 0, v{T_+1}")
        b.e("s_cbranch_vccz L_r1_px")
        b.e("s_sleep 2")
        b.e("s_branch L_r1_poll")
        b.raw("L_r1_px:")
        b.e(f"s_mov_b32 s{S_TRG}, 100")
        b.e(f"s_mov_b32 s{S_TR2}, s{S_T3}")
        b.e(f"s_mul_i32 s{S_T0}, s{S_RB}, 9")
        b.e(f"s_add_u32 s{S_T0}, s{S_T0}, s{S_RNG}")
        b.e(f"s_lshl_b32 s{S_T0}, s{S_T0}, 4")
        b.e(f"s_add_u32 s{S_T0}, s{S_T0}, s{S_RBLK}")
        b.e(f"s_lshl_b32 s{S_T0}, s{S_T0}, 10")
        b.e(f"s_add_u32 s{S_T0}, s{S_T0}, {PART}")
        for p in range(12):
            b.e(f"buffer_load_dwordx4 {vr(RB_+4*p,4)}, v{V_L16}, {sr(R_WS,4)}, s{S_T0} offen sc1")
            if p < 11:
                b.e(f"s_add_u32 s{S_T0}, s{S_T0}, {PSZ}")
        b.raw("L_r1_ret:")

    def r2(b):
        b.e(f"s_mov_b32 s{S_TR2}, 100")
        b.e("s_waitcnt vmcnt(R2WAIT)")
        for p in range(12):
            for k in range(4):
                r = RB_ + 4 * p + k
                d = F_ if p == 0 else T_
                b.e(f"v_lshlrev_b32 v{d+2*k}, 16, v{r}")
                b.e(f"v_and_b32 v{d+2*k+1}, 0xffff0000, v{r}")
            if p:
                for k in range(8):
                    b.e(f"v_add_f32 v{F_+k}, v{F_+k}, v{T_+k}")
        for k in range(4):
            b.e(f"v_cvt_pk_bf16_f32 v{T_+k}, v{F_+2*k}, v{F_+2*k+1}")
        for k in range(4):
            b.e(f"v_lshlrev_b32 v{F_+2*k}, 16, v{T_+k}")
            b.e(f"v_and_b32 v{F_+2*k+1}, 0xffff0000, v{T_+k}")
        for k in range(8):
            b.e(f"v_mul_f32 v{T_+k}, s{S_NL2E}, v{F_+k}")
        for k in range(8):
            b.e(f"v_exp_f32 v{T_+k}, v{T_+k}")
        for k in range(8):
            b.e(f"v_add_f32 v{T_+k}, 1.0, v{T_+k}")
        for k in range(8):
            b.e(f"v_rcp_f32 v{T_+k}, v{T_+k}")
        for k in range(8):
            b.e(f"v_mul_f32 v{F_+k}, v{F_+k}, v{T_+k}")
        for k in range(4):
            b.e(f"v_cvt_pk_bf16_f32 v{T_+k}, v{F_+2*k}, v{F_+2*k+1}")
        b.e(f"s_bfe_u32 s{S_T0}, s{S_RBLK}, 0x20001")
        b.e(f"s_lshl_b32 s{S_T1}, s{S_RB}, 2")
        b.e(f"s_add_u32 s{S_T0}, s{S_T0}, s{S_T1}")
        b.e(f"s_mul_i32 s{S_T0}, s{S_T0}, {32*1152}")
        b.e(f"s_lshl_b32 s{S_T1}, s{S_RNG}, 7")
        b.e(f"s_add_u32 s{S_T0}, s{S_T0}, s{S_T1}")
        b.e(f"s_lshr_b32 s{S_T1}, s{S_RBLK}, 3")
        b.e(f"s_lshl_b32 s{S_T1}, s{S_T1}, 6")
        b.e(f"s_add_u32 s{S_T0}, s{S_T0}, s{S_T1}")
        b.e(f"s_and_b32 s{S_T1}, s{S_RBLK}, 1")
        b.e(f"s_lshl_b32 s{S_T1}, s{S_T1}, 5")
        b.e(f"s_add_u32 s{S_T0}, s{S_T0}, s{S_T1}")
        b.e(f"s_add_u32 s{S_T0}, s{S_T0}, {PART + 12*PSZ}")
        b.e(f"buffer_store_dwordx2 {vr(T_,2)}, v{VG}, {sr(R_WS,4)}, s{S_T0} offen sc1")
        b.e(f"buffer_store_dwordx2 {vr(T_+2,2)}, v{VG}, {sr(R_WS,4)}, s{S_T0} offen offset:16 sc1")
        b.e("s_nop 1")
    vmat = {}

    def site(name, j, d=0):
        def f():
            vmat.setdefault((name, j), []).append(a.vm)
            a.e(f"s_add_u32 s{S_T0}, s{S_NG0}, {j}")
            a.e(f"s_cmp_eq_u32 s{S_T0}, s{S_TR2}" if d else f"s_cmp_ge_u32 s{S_T0}, s{S_TRG}")
            a.e(f"s_cbranch_scc1 L_{name}_t{j}")
            a.raw(f"L_{name}_b{j}:")
        return f

    def signal_code(off_lines, skip0=None, name=""):
        t = [f"L_sg{name}:"]
        if skip0:
            t += [f"    s_cmp_eq_u32 s{S_IT}, 0", f"    s_cbranch_scc1 L_sg{name}_b"]
        t += ["    " + x for x in off_lines]
        t += [f"    s_lshl_b32 s{S_T1}, s{S_RB}, 11", f"    s_add_u32 s{S_T0}, s{S_T0}, s{S_T1}", f"    s_lshl_b32 s{S_T1}, s{S_SPLIT}, 2",
              f"    s_add_u32 s{S_T0}, s{S_T0}, s{S_T1}",
              f"    v_mov_b32 v{VG+1}, 1", f"    v_mov_b32 v0, 0", "    s_mov_b64 exec, 1",
              f"    buffer_store_dword v{VG+1}, v0, {sr(R_WS,4)}, s{S_T0} offen sc1", "    s_mov_b64 exec, -1", f"    s_branch L_sg{name}_b"]
        ool.append("\n".join(t))

    def signal_site(name):
        a.e(f"s_cmp_eq_u32 s{S_W}, 0")
        a.e(f"s_cbranch_scc1 L_sg{name}")
        a.raw(f"L_sg{name}_b:")
    for j in range(3):
        signal_code([f"s_lshl_b32 s{S_T0}, s{S_NG0}, 6", f"s_add_u32 s{S_T0}, s{S_T0}, {FLG + 128 + 64*(j-2)}"], skip0=(j < 2), name=f"p{j}")
    frags2 = []
    for j in range(3):
        for kap in range(24):
            A = j * 49152 + kap * 2048
            frags2.append(dict(stage=A // SB, first=(len(frags2) % FPS == 0), rd=addr(A),
                               mf=[mk(acc2(j), X32(kap), kap == 0)]))
    fill2 = {}
    spread(fill2, epi2(2, S_PST, 0), 2, 8)
    spread(fill2, epi2(0, None, 0), 24 + 2, 24 + 8)
    spread(fill2, epi2(1, None, 16384), 48 + 2, 48 + 8)
    for j in range(3):
        pass

    def dma2(g, i):
        def f():
            t = (g + NS - 2) % NS
            d = t * KPS + i
            dma_raw(t, i, V_D2, R_W2, S_T3, f"s_mov_b32 s{S_T3}, s{S_PTR}")
            a.e(f"s_add_u32 s{S_PTR}, s{S_PTR}, {73728 if d % 6 != 5 else (128 - 5*73728) & 0xffffffff}")
        return f

    def setend():
        a.e(f"s_cmp_eq_u32 s{S_IT}, 2")
        a.e(f"s_cselect_b32 s{S_PTR}, 0x70000000, s{S_PTR}")
    place_dma(fill2, dma2, setend)
    add_sync(fill2)
    first2 = [True]

    def on_stage2(g):
        g %= 1000
        if first2[0]:
            first2[0] = False
            return
        SPG = NS // 3
        if g % SPG == SPG - 1:
            j = g // SPG
            a.wait_vm(max(dtk[g], pst.get((j - 2) % 3, 0) if not FLAG("NOPSTW") else 0))
            a.e("s_barrier")
            signal_site(f"p{j}")
        else:
            a.wait_vm(dtk[g])
            a.e("s_barrier")
    a.always = True
    tk2 = [run_stream(a, frags2, fill2, on_stage2, wrap=True, prime=True)]

    def body2():
        tk2[0] = run_stream(a, frags2, fill2, on_stage2, wrap=True, prime=False, tick=dict(tk2[0]))

    def dec2(label):
        if FLAG("ITST"):
            a.e("s_memtime s[94:95]")
            a.wait_lg0()
            a.e(f"s_add_u32 m0, s{S_IT}, 8")
            a.e("s_nop 1")
            a.e(f"v_writelane_b32 v255, s94, m0")
        a.e(f"s_add_u32 s{S_P0}, s{S_P0}, {3*16384}")
        a.e(f"s_mov_b32 s{S_PST}, {(-16384) & 0xffffffff}")
        a.e(f"s_add_u32 s{S_NG0}, s{S_NG0}, 3")
        a.e(f"s_add_u32 s{S_IT}, s{S_IT}, 1")
        a.e(f"s_cmp_lt_u32 s{S_IT}, 3")
        a.e(f"s_cbranch_scc1 {label}")
    loop(a, "L_p2", body2, dec2)
    a.always = False
    for it in epi2(2, S_PST, 0):
        it()
    if FLAG("ITST"):
        a.e(f"s_lshl_b32 s{S_T0}, s2, 11")
        a.e(f"s_lshl_b32 s{S_T1}, s{S_W}, 8")
        a.e(f"s_add_u32 s{S_T0}, s{S_T0}, s{S_T1}")
        a.e(f"s_add_u32 s{S_T0}, s{S_T0}, 0x3D00000")
        a.e(f"v_lshlrev_b32 v254, 2, v{V_LANE}")
        a.e(f"buffer_store_dword v255, v254, {sr(R_WS,4)}, s{S_T0} offen")
    stamp(a, 'v')
    def assign():
        a.e(f"s_lshr_b32 s{S_T0}, s{S_SPLIT}, 1")
        a.e(f"s_add_u32 s{T_CL}, s{S_T0}, 12")
        a.e(f"s_lshl_b32 s{T_CL}, s{T_CL}, 6")
        a.e(f"s_sub_u32 s{T_CE}, s{T_CL}, 384")
        a.e(f"s_and_b32 s{S_T0}, s{S_SPLIT}, 1")
        a.e(f"s_lshl_b32 s{S_T0}, s{S_T0}, 1")
        a.e(f"s_and_b32 s{S_T1}, s{S_W}, 1")
        a.e(f"s_add_u32 s{T_TR}, s{S_T0}, s{S_T1}")
        a.e(f"s_mov_b32 s{T_ACT}, 1")

    def between():
        stamp(a, 'g')
        signal_code([f"s_mov_b32 s{S_T0}, {FLG + 128 + 64*7}"], name="p3")
        signal_site("p3")
        signal_code([f"s_mov_b32 s{S_T0}, {FLG + 128 + 64*8}"], name="p4")
        signal_site("p4")
    tail(a, "m", assign, between, late_c1=True, roles=True)
    stamp(a, 'h')
    stamp_out(a)
    a.e("s_endpgm")
    sy.emit_slow()
    for t in ool:
        a.raw(t)


def k1(a):
    a.raw(".globl recurrent_scan__sliding_block__glu_gated_glu__prompt_kernel\n.p2align 8\n.type recurrent_scan__sliding_block__glu_gated_glu__prompt_kernel,@function\nrecurrent_scan__sliding_block__glu_gated_glu__prompt_kernel:")
    a.e("s_cmp_ge_u32 s2, 256")
    a.e("s_cbranch_scc1 L_k1_end")
    a.e("s_load_dwordx16 s[4:19], s[0:1], 0")
    a.e("s_load_dwordx4 s[20:23], s[0:1], 64")
    a.e(f"v_and_b32 v{V_LANE}, 63, v0")
    a.e(f"v_lshlrev_b32 v{V_L16}, 4, v{V_LANE}")
    a.e(f"v_lshrrev_b32 v{V_T}, 6, v0")
    a.e(f"v_readfirstlane_b32 s{S_W}, v{V_T}")
    a.e(f"s_and_b32 s{S_R}, s{S_W}, 3")
    a.e(f"s_lshr_b32 s{S_C}, s{S_W}, 2")
    a.e(f"s_and_b32 s{S_T0}, s2, 7")
    a.e(f"s_lshr_b32 s{S_T1}, s2, 3")
    if MAPC:
        a.e(f"s_and_b32 s{S_T2}, s{S_T0}, 3")
        a.e(f"s_lshl_b32 s{S_T2}, s{S_T2}, 2")
        a.e(f"s_and_b32 s{S_T3}, s{S_T1}, 3")
        a.e(f"s_add_u32 s{S_RB}, s{S_T2}, s{S_T3}")
        a.e(f"s_lshr_b32 s{S_T0}, s{S_T0}, 2")
        a.e(f"s_lshr_b32 s{S_T1}, s{S_T1}, 2")
    else:
        a.e(f"s_and_b32 s{S_T2}, s{S_T0}, 1")
        a.e(f"s_lshl_b32 s{S_T2}, s{S_T2}, 3")
        a.e(f"s_and_b32 s{S_T3}, s{S_T1}, 7")
        a.e(f"s_add_u32 s{S_RB}, s{S_T2}, s{S_T3}")
        a.e(f"s_lshr_b32 s{S_T0}, s{S_T0}, 1")
        a.e(f"s_lshr_b32 s{S_T1}, s{S_T1}, 3")
    a.e("s_waitcnt lgkmcnt(0)")
    srd(a, R_X, S_X, 2359296)
    srd(a, R_WS, S_WS, WS_SZ)
    srd(a, R_DBG, S_DBG, 256)
    if int(os.environ.get("CODEPF", "0")):
        a.e(f"s_getpc_b64 s[{R_A}:{R_A+1}]")
        a.raw("L_pc0:")
        a.e(f"s_mov_b32 s{R_A+2}, L_k1_end-L_pc0")
        a.e(f"s_mov_b32 s{R_A+3}, 0x20000")
        a.e(f"v_lshlrev_b32 v{V_T}, 6, v0")
        for k in range((int(os.environ.get('CODEPF'))+31)//32):
            a.e(f"s_mov_b32 s{S_T2}, {k*32768}")
            a.e(f"buffer_load_dword v0, v{V_T}, {sr(R_A,4)}, s{S_T2} offen")
    a.e(f"s_cmp_ge_u32 s{S_T1}, {6 if MAPC else 3}")
    a.e("s_cbranch_scc1 L_att")
    a.e(f"s_mul_i32 s{S_SPLIT}, s{S_T0}, {6 if MAPC else 3}")
    a.e(f"s_add_u32 s{S_SPLIT}, s{S_SPLIT}, s{S_T1}")
    if FLAG("MAPA"):
        a.e(f"s_and_b32 s{S_T0}, s2, 7")
        a.e(f"s_mul_i32 s{S_T0}, s{S_T0}, 24")
        a.e(f"s_lshr_b32 s{S_T1}, s2, 3")
        a.e(f"s_add_u32 s{S_T0}, s{S_T0}, s{S_T1}")
        a.e(f"s_lshr_b32 s{S_SPLIT}, s{S_T0}, 4")
        a.e(f"s_and_b32 s{S_RB}, s{S_T0}, 15")
    mlp(a)
    a.label("L_att")
    if MAPC:
        a.e(f"s_lshl_b32 s{S_HG}, s{S_T0}, 1")
        a.e(f"s_add_u32 s{S_HG}, s{S_HG}, s{S_T1}")
        a.e(f"s_sub_u32 s{S_HG}, s{S_HG}, 6")
    else:
        a.e(f"s_mov_b32 s{S_HG}, s{S_T0}")
    try:
        import gen_att
        gen_att.att(a)
    except ImportError:
        pass
    a.label("L_k1_end")
    a.e("s_endpgm")


def desc(name, vgpr, sgpr):
    return f""".p2align 6
.amdhsa_kernel {name}
  .amdhsa_next_free_vgpr {vgpr}
  .amdhsa_next_free_sgpr {sgpr}
  .amdhsa_accum_offset {(vgpr+3)//4*4}
  .amdhsa_group_segment_fixed_size 0
  .amdhsa_kernarg_size 80
  .amdhsa_user_sgpr_count 2
  .amdhsa_user_sgpr_kernarg_segment_ptr 1
  .amdhsa_system_sgpr_workgroup_id_x 1
.end_amdhsa_kernel"""


def main():
    a = Asm()
    a.raw(f"; @launch grid=(256,1,1) block=(512,1,1) lds={LDS_SZ}")
    have_k2 = False
    if have_k2:
        a.raw(gen_k2.LAUNCH)
    a.raw('.amdgcn_target "amdgcn-amd-amdhsa--gfx950"\n.text')
    k1(a)
    if have_k2:
        b = Asm()
        gen_k2.k2(b)
        a.raw(b.text())
    a.raw('.section .rodata,"a"')
    a.raw(desc("recurrent_scan__sliding_block__glu_gated_glu__prompt_kernel", 256, 102))
    if have_k2:
        a.raw(desc("k2_kernel", gen_k2.VGPRS, 48))
    sys.stdout.write(a.text())


if __name__ == "__main__":
    main()
```

```python
import sys
from asmlib import Asm, vr, sr

HS = 0x0000000
PART = 0x1200000
PSZ = 2359296
QF = 0x3000000
K0 = 0x3400000
V0 = 0x3600000
KX = 0x3800000
VX = 0x3840000
OF = 0x3900000
FLG = 0x3E00000
WS_SZ = 0x4000000
XBASE = 16384
LDS_SZ = 163840
LOG2E = 0x3FB8AA3B
NLOG2E = 0xBFB8AA3B

S_X, S_WQKV, S_WO, S_BX, S_WG, S_WU, S_WD, S_OUT, S_DBG, S_WS = 4, 6, 8, 10, 12, 14, 16, 18, 20, 22
R_X, R_W1, R_W2, R_WS, R_DBG, R_A, R_B = 24, 28, 32, 36, 40, 44, 48
S_W, S_R, S_C, S_RB, S_SPLIT, S_T0, S_T1, S_T2, S_T3 = 52, 53, 54, 55, 56, 57, 58, 59, 60
S_WLDS, S_W1B, S_W2B, S_H0, S_H1, S_P0, S_P1, S_NL2E, S_XREG, S_XPAR = 61, 62, 63, 64, 65, 66, 67, 68, 69, 70
S_HG = S_SPLIT

V_LANE, V_L16, V_D1, V_D2 = 1, 2, 3, 4
V_RD = 5
V_T = 11
FR = 16
NFR = int(__import__("os").environ.get("NFR", "6"))
PD = NFR - 2
ACC = 40
XN = 104


def X(rho, s):
    return XN + (rho * 18 + s) * 4


def X32(s):
    return XN + s * 4


import os
STAMP = int(os.environ.get("STAMP", "0"))
_DEF = {"EARLYW": "1", "PEEL2": "1"}
def FLAG(n):
    return int(os.environ.get(n, _DEF.get(n, "0")))
MAPC = int(os.environ.get("MAPC", "0"))
_nst = [0]
STSEL = os.environ.get("STSEL", "a,b,f,g,h").split(",")
def stamp(a, name="a"):
    if not STAMP or name not in STSEL:
        return
    k = _nst[0]; _nst[0] += 1
    a.e(f"s_memtime s[{76+4*k}:{77+4*k}]")
    a.e(f"s_memrealtime s[{78+4*k}:{79+4*k}]")
    a.wait_lg0()

def stamp_out(a):
    if not STAMP:
        return
    n = _nst[0]; _nst[0] = 0
    a.e(f"s_lshl_b32 s{S_T0}, s2, 6")
    a.e(f"s_add_u32 s{S_T0}, s{S_T0}, 0x3F00000")
    a.e(f"v_mov_b32 v20, 0")
    a.e(f"s_cmp_eq_u32 s{S_W}, {os.environ.get('STW', '0')}")
    a.e(f"s_cbranch_scc0 L_nostamp{id(a)}_{a.nins}")
    lab = a.out[-1].split()[-1]
    for k in range(n):
        a.e(f"v_mov_b32 v16, s{76+4*k}")
        a.e(f"v_mov_b32 v17, s{78+4*k}")
        a.e(f"buffer_store_dwordx2 v[16:17], v20, {sr(R_WS,4)}, s{S_T0} offen offset:{8*k}")
        a.e("s_nop 2")
    if FLAG("STDBG"):
        a.e(f"s_and_b32 s{S_T0}, s2, 63")
        a.e(f"s_cmp_eq_u32 s{S_T0}, 9")
        a.e(f"s_cbranch_scc0 {lab}")
        a.e(f"s_lshr_b32 s{S_T0}, s2, 6")
        a.e(f"s_cmp_eq_u32 s{S_T0}, 0")
        a.e(f"s_cselect_b32 s{S_T1}, 0, 32")
        a.e(f"s_add_u32 s{S_T0}, s{S_T0}, 1")
        a.e(f"s_and_b32 s{S_T0}, s{S_T0}, 2")
        a.e(f"s_cbranch_scc1 {lab}")
        for k in range(1, n):
            a.e(f"s_sub_u32 s{S_T0}, s{78+4*k}, s78")
            a.e(f"v_mov_b32 v16, s{S_T0}")
            a.e(f"buffer_store_dword v16, v20, {sr(R_DBG,4)}, s{S_T1} offen offset:{4*(k-1)}")
            a.e("s_nop 2")
    a.label(lab)


def srd(a, d, base, nbytes):
    a.e(f"s_mov_b32 s{d}, s{base}")
    a.e(f"s_mov_b32 s{d+1}, s{base+1}")
    a.e(f"s_mov_b32 s{d+2}, {nbytes}")
    a.e(f"s_mov_b32 s{d+3}, 0x20000")


def bf16_round(a, v, tmp=None):
    a.e(f"v_cvt_pk_bf16_f32 v{v}, v{v}, v{v}")
    a.e(f"v_lshlrev_b32 v{v}, 16, v{v}")


def x_stage_issue(a):
    t0, t1, t2 = V_T, V_T + 1, V_T + 2
    a.e(f"v_lshrrev_b32 v{t0}, 3, v{V_LANE}")
    a.e(f"v_and_b32 v{t1}, 7, v{V_LANE}")
    a.e(f"v_lshrrev_b32 v{t2}, 1, v{t0}")
    a.e(f"v_xor_b32 v{t1}, v{t1}, v{t2}")
    a.e(f"v_mul_u32_u24 v{t0}, 1152, v{t0}")
    a.e(f"v_lshl_add_u32 v{t2}, v{t1}, 4, v{t0}")
    a.e(f"v_xor_b32 v{t1}, 4, v{t1}")
    a.e(f"v_lshl_add_u32 v{t1}, v{t1}, 4, v{t0}")
    a.e(f"v_add_u32 v{t1}, {8*1152-1024}, v{t1}")
    a.e(f"s_lshl_b32 s{S_T0}, s{S_RB}, 7")
    a.e(f"s_lshl_b32 s{S_T1}, s{S_R}, 5")
    a.e(f"s_add_u32 s{S_T0}, s{S_T0}, s{S_T1}")
    a.e(f"s_lshl_b32 s{S_T1}, s{S_C}, 4")
    a.e(f"s_add_u32 s{S_T0}, s{S_T0}, s{S_T1}")
    a.e(f"s_mul_i32 s{S_T0}, s{S_T0}, 1152")
    a.e(f"s_lshl_b32 s{S_T1}, s{S_R}, 1")
    a.e(f"s_add_u32 s{S_T2}, s{S_T1}, s{S_C}")
    a.e(f"s_mul_i32 s{S_XREG}, s{S_T2}, 18432")
    a.e(f"s_add_u32 s{S_XREG}, s{S_XREG}, {XBASE}")
    a.e(f"s_xor_b32 s{S_T2}, s{S_T2}, 1")
    a.e(f"s_mul_i32 s{S_XPAR}, s{S_T2}, 18432")
    a.e(f"s_add_u32 s{S_XPAR}, s{S_XPAR}, {XBASE}")
    tk = None
    a.e(f"s_lshr_b32 s{S_T2}, s2, {5 if MAPC else 6}")
    a.e(f"s_lshl_b32 s{S_T2}, s{S_T2}, {7 if MAPC else 8}")
    for cb in range(9):
        a.e(f"s_lshl_b32 s{S_T3}, s{S_T2}, 4")
        a.e(f"s_add_u32 m0, s{S_XREG}, s{S_T3}")
        a.e(f"s_add_u32 s{S_T1}, s{S_T0}, s{S_T2}")
        a.e(f"buffer_load_dwordx4 v{t2}, {sr(R_X,4)}, s{S_T1} offen lds")
        tk = a.e(f"buffer_load_dwordx4 v{t1}, {sr(R_X,4)}, s{S_T1} offen offset:1024 lds")
        if cb < 8:
            a.e(f"s_add_u32 s{S_T2}, s{S_T2}, 128")
            a.e(f"s_cmp_eq_u32 s{S_T2}, 1152")
            a.e(f"s_cselect_b32 s{S_T2}, 0, s{S_T2}")
    return tk


def init_issue(a, vaddr, vtmp):
    return a.e(f"buffer_load_dword v{vtmp}, v{vaddr}, {sr(R_DBG,4)}, 0 offen offset:64 sc1")


def init_check(a, name, vaddr, vtmp, tk):
    a.wait_vm(tk)
    a.e(f"v_cmp_eq_u32 vcc, 0, v{vtmp}")
    a.e(f"s_cbranch_vccz L_ic_{name}_x")
    a.e(f"s_mov_b32 s{S_T2}, 0")
    a.raw(f"L_ic_{name}:")
    a.e_untracked(f"buffer_load_dword v{vtmp}, v{vaddr}, {sr(R_DBG,4)}, 0 offen offset:64 sc1")
    a.e(f"s_add_u32 s{S_T2}, s{S_T2}, 1")
    a.e(f"s_cmp_gt_u32 s{S_T2}, 0x40000")
    a.e(f"s_cbranch_scc1 L_ic_{name}_x")
    a.e("s_waitcnt vmcnt(0)")
    a.e(f"v_cmp_eq_u32 vcc, 0, v{vtmp}")
    a.e(f"s_cbranch_vccnz L_ic_{name}")
    a.raw(f"L_ic_{name}_x:")


def layernorm(a, xtk, after_x=None, m32=False, after_wait=None):
    T = ACC
    m, q = T, T + 1
    a.e(f"v_and_b32 v{m}, 15, v{V_LANE}")
    a.e(f"v_lshrrev_b32 v{q}, 4, v{V_LANE}")
    b = T + 2
    a.e(f"v_and_b32 v{b}, 1, v{q}")
    a.e(f"v_lshlrev_b32 v{b}, 3, v{b}")
    a.e(f"v_lshl_add_u32 v{b}, v{m}, 7, v{b}")
    a.e(f"v_add_u32 v{b}, s{S_XREG}, v{b}")
    sw = T + 3
    a.e(f"v_lshrrev_b32 v{sw}, 1, v{m}")
    if m32:
        a.e(f"v_and_b32 v{T+4}, 2, v{q}")
    else:
        a.e(f"v_lshrrev_b32 v{T+4}, 1, v{q}")
    a.e(f"v_xor_b32 v{sw}, v{sw}, v{T+4}")
    ad = T + 8
    for k in range(4):
        a.e(f"v_xor_b32 v{T+4}, {(4*(k>>1) + (k&1)) if m32 else 2*k}, v{sw}")
        a.e(f"v_lshl_add_u32 v{ad+k}, v{T+4}, 4, v{b}")
    ones = T + 12
    for k in range(4):
        a.e(f"v_mov_b32 v{ones+k}, 0x3f803f80")
    a.wait_vm(xtk)
    stamp(a, 'b')
    if after_wait:
        after_wait()
    s1, s2 = T + 16, T + 20
    tks = []
    for s in range(18):
        for j in range(2):
            tk = a.e(f"ds_read_b64 {vr(X(0,s)+2*j,2)}, v{ad+2*(s&1)+j} offset:{(s>>1)*2048}")
        tks.append(tk)
        if s >= 4:
            ss = s - 4
            a.wait_lg(tks[ss])
            a.e(f"v_mfma_f32_16x16x32_bf16 {vr(s1,4)}, {vr(ones,4)}, {vr(X(0,ss),4)}, {vr(s1,4) if ss else '0'}")
            a.e(f"v_mfma_f32_16x16x32_bf16 {vr(s2,4)}, {vr(X(0,ss),4)}, {vr(X(0,ss),4)}, {vr(s2,4) if ss else '0'}")
    for ss in range(14, 18):
        a.wait_lg(tks[ss])
        a.e(f"v_mfma_f32_16x16x32_bf16 {vr(s1,4)}, {vr(ones,4)}, {vr(X(0,ss),4)}, {vr(s1,4)}")
        a.e(f"v_mfma_f32_16x16x32_bf16 {vr(s2,4)}, {vr(X(0,ss),4)}, {vr(X(0,ss),4)}, {vr(s2,4)}")
    t = T + 4
    a.e(f"v_and_b32 v{t}, 3, v{m}")
    a.e(f"v_cmp_eq_u32 vcc, 1, v{t}")
    a.e(f"v_cndmask_b32 v{s2}, v{s2}, v{s2+1}, vcc")
    a.e(f"v_cmp_eq_u32 vcc, 2, v{t}")
    a.e(f"v_cndmask_b32 v{s2}, v{s2}, v{s2+2}, vcc")
    a.e(f"v_cmp_eq_u32 vcc, 3, v{t}")
    a.e(f"v_cndmask_b32 v{s2}, v{s2}, v{s2+3}, vcc")
    a.e(f"v_lshrrev_b32 v{t}, 2, v{m}")
    a.e(f"v_lshl_add_u32 v{t}, v{t}, 4, v{m}")
    a.e(f"v_lshlrev_b32 v{t}, 2, v{t}")
    tk = a.e(f"ds_bpermute_b32 v{s2}, v{t}, v{s2}")
    inv = 0x3AE38E39
    a.e(f"v_mul_f32 v{s1}, 0x{inv:x}, v{s1}")
    a.wait_lg(tk)
    a.e(f"v_mul_f32 v{s2}, 0x{inv:x}, v{s2}")
    a.e(f"v_fma_f32 v{s2}, -v{s1}, v{s1}, v{s2}")
    a.e(f"v_max_f32 v{s2}, 0, v{s2}")
    bf16_round(a, s2)
    a.e(f"v_add_f32 v{s2}, 0x3727c5ac, v{s2}")
    bf16_round(a, s2)
    a.e(f"v_sqrt_f32 v{s2}, v{s2}")
    bf16_round(a, s2)
    a.e(f"v_rcp_f32 v{s2}, v{s2}")
    bf16_round(a, s1)
    a.e(f"v_mul_f32 v{s1}, v{s1}, v{s2}")
    a.e(f"v_sub_f32 v{s1}, 0, v{s1}")
    stamp(a, 'c')
    wa = T + 5
    a.e(f"v_add_u32 v{wa}, s{S_XREG}, v{V_L16}")
    tmp = T + 24
    for s in range(18):
        for k in range(4):
            xr = X(0, s) + k
            lo = tmp + 2 * k
            a.e(f"v_lshlrev_b32 v{lo}, 16, v{xr}")
            a.e(f"v_and_b32 v{lo+1}, 0xffff0000, v{xr}")
        for k in range(4):
            lo = tmp + 2 * k
            a.e(f"v_fma_f32 v{lo}, v{lo}, v{s2}, v{s1}")
            a.e(f"v_fma_f32 v{lo+1}, v{lo+1}, v{s2}, v{s1}")
        for k in range(4):
            lo = tmp + 2 * k
            a.e(f"v_cvt_pk_bf16_f32 v{X(0,s)+k}, v{lo}, v{lo+1}")
        a.e(f"ds_write_b128 v{wa}, {vr(X(0,s),4)} offset:{s*1024}")
    if m32:
        a.e(f"s_min_u32 s{S_T0}, s{S_XREG}, s{S_XPAR}")
        a.e(f"v_bfe_u32 v{T+4}, v{V_LANE}, 4, 1")
        a.e(f"v_mul_u32_u24 v{wa}, 18432, v{T+4}")
        a.e(f"v_lshrrev_b32 v{T+4}, 5, v{V_LANE}")
        a.e(f"v_lshl_add_u32 v{wa}, v{T+4}, 8, v{wa}")
        a.e(f"v_lshl_add_u32 v{wa}, v{m}, 4, v{wa}")
        a.e(f"v_add_u32 v{wa}, s{S_T0}, v{wa}")
    else:
        a.e(f"v_add_u32 v{wa}, s{S_XPAR}, v{V_L16}")
    a.wait_lg0()
    stamp(a, 'd')
    a.e("s_barrier")
    stamp(a, 'e')
    if after_x:
        after_x()
    if m32:
        for s in range(36):
            a.e(f"ds_read_b128 {vr(X32(s),4)}, v{wa} offset:{s*512}")
    else:
        for s in range(18):
            a.e(f"ds_read_b128 {vr(X(1,s),4)}, v{wa} offset:{s*1024}")
    a.wait_lg0()
    a.e("s_barrier")


def run_stream(a, frags, fill, on_stage, wrap=False, prime=True, tick=None, base=0):
    N = len(frags)
    assert (not wrap) or N % NFR == 0
    if tick is None:
        tick = {}

    def rd(m, j):
        f = frags[m % N]
        if j == 0 and f.get("first"):
            on_stage(f["stage"] + (1000 if m >= N else 0))
        r = FR + 4 * (m % NFR)
        vb, imm = f["rd"][j]
        if FLAG("NORD") and not prime:
            tick[m] = a.lg
            return
        tick[m] = a.e(f"ds_read_b64_tr_b16 {vr(r+2*j,2)}, v{vb} offset:{imm}")

    if prime:
        for m in range(min(PD, N)):
            rd(m, 0)
            rd(m, 1)
        if wrap:
            return tick
    for n in range(N):
        f = frags[n]
        r = FR + 4 * (n % NFR)
        fl = list(fill.get(n, []))
        nm = len(f["mf"])
        for c in f.get("pre", []):
            c()
        a.wait_lg(tick[n])
        for k, mf in enumerate(f["mf"]):
            a.e(mf(r))
            if n + PD < N or wrap:
                if nm == 1:
                    rd(n + PD, 0)
                    rd(n + PD, 1)
                elif k < 2:
                    rd(n + PD, k)
            cnt = (len(fl) + (nm - k) - 1) // (nm - k)
            for c in fl[:cnt]:
                c()
            fl = fl[cnt:]
    if wrap:
        return {m: tick[N + m] for m in range(PD)}
    return tick


def loop(a, label, body, niter_sgpr_dec):
    a.raw(label + ":")
    n0 = len(a.out)
    body()
    niter_sgpr_dec(label)
    t1 = a.out[n0:]
    n1 = len(a.out)
    body()
    niter_sgpr_dec(label)
    t2 = a.out[n1:]
    if t1 != t2:
        for x, y in zip(t1, t2):
            if x != y:
                sys.stderr.write(f"LOOP MISMATCH {label}: {x!r} vs {y!r}\n")
        assert len(t1) == len(t2), "loop body length mismatch"
        import re
        for k, (x, y) in enumerate(zip(t1, t2)):
            if x != y:
                mx, my = re.match(r"\s*s_waitcnt (vm|lgkm)cnt\((\d+)\)", x), re.match(r"\s*s_waitcnt (vm|lgkm)cnt\((\d+)\)", y)
                assert mx and my and mx.group(1) == my.group(1), (x, y)
                t1[k] = x if int(mx.group(2)) <= int(my.group(2)) else y
        a.out[n0:n1] = t1
    del a.out[n1:]


V_FW, V_FR, V_FV, V_FT = 248, 249, 252, 253
FLAGS = 147456


class Sync:
    def __init__(self, a, tag):
        self.a, self.tag, self.slow, self.tk, self.n = a, tag, {}, None, 0

    def setup(self):
        a = self.a
        a.e(f"s_lshl_b32 s{S_T0}, s{S_W}, 8")
        a.e(f"s_add_u32 s{S_T0}, s{S_T0}, {FLAGS+64}")
        a.e(f"v_lshlrev_b32 v{V_FW}, 2, v{V_LANE}")
        a.e(f"v_add_u32 v{V_FW}, s{S_T0}, v{V_FW}")
        a.e(f"s_lshl_b32 s{S_T0}, s{S_W}, 2")
        a.e(f"s_add_u32 s{S_T0}, s{S_T0}, {FLAGS}")
        a.e(f"v_mov_b32 v{V_FT}, s{S_T0}")
        a.e(f"v_cmp_eq_u32 vcc, 0, v{V_LANE}")
        a.e(f"v_cndmask_b32 v{V_FW}, v{V_FW}, v{V_FT}, vcc")
        a.e(f"v_and_b32 v{V_FR}, 7, v{V_LANE}")
        a.e(f"v_lshlrev_b32 v{V_FR}, 2, v{V_FR}")
        a.e(f"v_add_u32 v{V_FR}, {FLAGS}, v{V_FR}")
        a.e(f"v_mov_b32 v{V_FV}, 0")
        a.e(f"ds_write_b32 v{V_FW}, v{V_FV}")

    def arrive(self, tk):
        a = self.a
        a.e(f"v_add_u32 v{V_FV}, 1, v{V_FV}")
        a.wait_vm(tk)
        a.e(f"ds_write_b32 v{V_FW}, v{V_FV}")

    def read(self):
        self.tk = self.a.e(f"ds_read_b32 v{V_FT}, v{V_FR}")

    def check(self, name):
        a = self.a
        if FLAG("NOBAR"):
            return
        a.wait_lg(self.tk)
        a.e(f"v_cmp_lt_u32 vcc, v{V_FT}, v{V_FV}")
        a.e(f"s_cbranch_vccnz L_slow_{self.tag}_{name}")
        a.raw(f"L_back_{self.tag}_{name}:")
        self.slow[name] = 1

    def emit_slow(self):
        a = self.a
        for name in self.slow:
            a.raw(f"L_slow_{self.tag}_{name}:")
            a.raw(f"    ds_read_b32 v{V_FT}, v{V_FR}")
            a.raw(f"    s_waitcnt lgkmcnt(0)")
            a.raw(f"    v_cmp_lt_u32 vcc, v{V_FT}, v{V_FV}")
            a.raw(f"    s_cbranch_vccnz L_slow_{self.tag}_{name}")
            a.raw(f"    s_branch L_back_{self.tag}_{name}")


def spread(fill, items, n0, n1):
    L = len(items)
    span = n1 - n0
    for i, it in enumerate(items):
        n = n0 + (i * span) // L
        fill.setdefault(n, []).append(it)


def rd_bases(a):
    t0, t1, t2 = V_T, V_T + 1, V_T + 2
    a.e(f"v_lshrrev_b32 v{t0}, 4, v{V_LANE}")
    a.e(f"v_lshrrev_b32 v{t1}, 1, v{t0}")
    a.e(f"v_lshlrev_b32 v{t1}, 10, v{t1}")
    a.e(f"v_and_b32 v{t0}, 1, v{t0}")
    a.e(f"v_lshl_add_u32 v{t1}, v{t0}, 8, v{t1}")
    a.e(f"v_lshl_add_u32 v{t1}, v{t0}, 5, v{t1}")
    a.e(f"v_bfe_u32 v{t2}, v{V_LANE}, 2, 2")
    a.e(f"v_lshl_add_u32 v{t1}, v{t2}, 6, v{t1}")
    a.e(f"v_and_b32 v{t2}, 3, v{V_LANE}")
    a.e(f"v_lshl_add_u32 v{t1}, v{t2}, 3, v{t1}")
    a.e(f"s_lshl_b32 s{S_T0}, s{S_C}, 9")
    a.e(f"v_add_u32 v{V_RD}, s{S_T0}, v{t1}")
    a.e(f"v_xor_b32 v{V_RD+3}, 32, v{V_RD}")
    for k in (1, 2):
        a.e(f"v_add_u32 v{V_RD+k}, {49152*k}, v{V_RD}")
        a.e(f"v_add_u32 v{V_RD+3+k}, {49152*k}, v{V_RD+3}")


def rd_bases32(a):
    t1, t2 = V_T + 1, V_T + 2
    a.e(f"v_lshrrev_b32 v{t1}, 5, v{V_LANE}")
    a.e(f"v_lshlrev_b32 v{t1}, 8, v{t1}")
    a.e(f"v_bfe_u32 v{t2}, v{V_LANE}, 2, 2")
    a.e(f"v_lshl_add_u32 v{t1}, v{t2}, 6, v{t1}")
    a.e(f"v_bfe_u32 v{t2}, v{V_LANE}, 4, 1")
    a.e(f"v_lshl_add_u32 v{t1}, v{t2}, 5, v{t1}")
    a.e(f"v_and_b32 v{t2}, 3, v{V_LANE}")
    a.e(f"v_lshl_add_u32 v{t1}, v{t2}, 3, v{t1}")
    a.e(f"s_lshl_b32 s{S_T0}, s{S_C}, 9")
    a.e(f"v_add_u32 v{V_RD}, s{S_T0}, v{t1}")
    for k in (1, 2):
        a.e(f"v_add_u32 v{V_RD+k}, {49152*k}, v{V_RD}")


T_CE, T_CL, T_TR, T_TC, T_ACT, T_FE, T_FS, T_AE, T_AL, T_BK0, T_BK1, T_NG, T_RB_, T_XB = 66, 70, 72, 71, 73, 63, 62, 64, 65, 74, 75, 69, 67, 98


def tail(a, tag, assign, between, late_c1, roles=False):
    a.e("s_load_dwordx2 s[4:5], s[0:1], 56")
    a.e("s_load_dwordx2 s[6:7], s[0:1], 16")
    a.e("s_load_dwordx2 s[8:9], s[0:1], 0")
    a.wait_lg0()
    VF1, VF2, VFL, VFO, VG = 248, 249, 250, 251, V_T + 2
    a.e(f"v_min_u32 v{VF1}, 11, v{V_LANE}")
    a.e(f"v_lshlrev_b32 v{VF1}, 2, v{VF1}")
    a.e(f"v_and_b32 v{VF2}, 3, v{V_LANE}")
    a.e(f"v_lshlrev_b32 v{VF2}, 2, v{VF2}")
    assign()
    if roles:
        a.e(f"s_bitcmp0_b32 s{S_W}, 1")
    else:
        a.e(f"s_cmp_eq_u32 s{S_C}, 0")
    a.e(f"s_cselect_b32 s{T_TC}, s{T_CE}, s{T_CL}")
    a.e(f"s_lshr_b32 s{T_NG}, s{T_TC}, 7")
    a.e(f"s_bfe_u32 s{S_T0}, s{T_TC}, 0x10006")
    a.e(f"s_lshl_b32 s{T_BK0}, s{S_T0}, 3")
    a.e(f"s_lshl_b32 s{S_T0}, s{T_TR}, 1")
    a.e(f"s_add_u32 s{T_BK0}, s{T_BK0}, s{S_T0}")
    a.e(f"s_add_u32 s{T_BK1}, s{T_BK0}, 1")
    a.e(f"s_lshl_b32 s{T_FS}, s{S_RB}, 11")
    a.e(f"s_add_u32 s{T_FS}, s{T_FS}, {FLG}")
    a.e(f"s_lshl_b32 s{S_T1}, s{T_NG}, 6")
    a.e(f"s_add_u32 s{T_FE}, s{T_FS}, s{S_T1}")
    a.e(f"s_add_u32 s{T_FE}, s{T_FE}, 128")
    a.e(f"s_lshl_b32 s{S_T0}, s{S_RB}, 2")
    a.e(f"s_add_u32 s{S_T0}, s{S_T0}, s{T_TR}")
    a.e(f"s_mul_i32 s{S_T0}, s{S_T0}, {32*1152}")
    a.e(f"s_add_u32 s{T_AE}, s{S_T0}, s{T_TC}")
    a.e(f"s_add_u32 s{T_AL}, s{T_AE}, 32")
    srd(a, R_A, 4, 2359296)
    srd(a, R_B, 6, 663552)
    srd(a, R_X, 8, 2359296)
    a.e(f"s_mov_b32 s{S_NL2E}, 0x{NLOG2E:x}")
    a.e(f"s_lshl_b32 s{S_WLDS}, s{S_W}, 10")
    rd_bases32(a)
    a.e(f"v_and_b32 v{VG}, 31, v{V_LANE}")
    a.e(f"v_mul_u32_u24 v{VG}, 1152, v{VG}")
    a.e(f"v_lshrrev_b32 v{VFL}, 5, v{V_LANE}")
    a.e(f"v_lshl_add_u32 v{VG}, v{VFL}, 3, v{VG}")
    a.e(f"s_sub_u32 s{S_T0}, s{T_CL}, s{T_CE}")
    a.e(f"v_mul_lo_u32 v{V_D2}, v{VFL}, s{S_T0}")
    a.e(f"v_bfe_u32 v{VFL}, v{V_LANE}, 2, 3")
    a.e(f"v_mul_u32_u24 v{VFL}, 1152, v{VFL}")
    a.e(f"v_add_u32 v{V_D2}, v{V_D2}, v{VFL}")
    a.e(f"v_and_b32 v{VFL}, 3, v{V_LANE}")
    a.e(f"v_lshl_add_u32 v{V_D2}, v{VFL}, 4, v{V_D2}")
    a.e(f"v_bfe_u32 v{VFL}, v{V_LANE}, 4, 1")
    a.e(f"v_mul_u32_u24 v{VFL}, {32*1152}, v{VFL}")
    a.e(f"v_add_u32 v{V_D1}, v{V_D2}, v{VFL}")
    a.e(f"s_lshr_b32 s{S_T0}, s{S_W}, 1")
    a.e(f"s_mul_i32 s{S_T1}, s{S_T0}, 18")
    a.e(f"s_and_b32 s{S_T2}, s{S_T0}, 1")
    a.e(f"s_lshl_b32 s{S_T2}, s{S_T2}, 1")
    a.e(f"s_add_u32 s{S_T1}, s{S_T1}, s{S_T2}")
    a.e(f"s_and_b32 s{S_T2}, s{S_W}, 1")
    a.e(f"s_lshl_b32 s{S_T3}, s{S_T2}, 3")
    a.e(f"s_add_u32 s{S_T1}, s{S_T1}, s{S_T3}")
    a.e(f"s_mul_i32 s{S_T1}, s{S_T1}, 1152")
    a.e(f"s_add_u32 s{T_RB_}, s{S_T1}, s{T_CE}")
    a.e(f"s_mul_i32 s{S_T0}, s{S_T0}, 144")
    a.e(f"s_mul_i32 s{S_T2}, s{S_T2}, 72")
    a.e(f"s_add_u32 s{S_T0}, s{S_T0}, s{S_T2}")
    a.e(f"s_add_u32 s{S_T0}, s{S_T0}, 16")
    a.e(f"s_mul_i32 s{S_T0}, s{S_T0}, 1152")
    a.e(f"s_add_u32 s{T_XB}, s{S_T0}, s{T_CE}")
    a.e(f"buffer_load_dword v{VFO}, v{VF2}, {sr(R_WS,4)}, s{T_FS} offen sc1")
    tst = a.e(f"buffer_load_dword v{VFL}, v{VF1}, {sr(R_WS,4)}, s{T_FE} offen sc1")
    a.e("s_barrier")
    for k in range(8):
        a.e(f"s_add_u32 m0, s{S_WLDS}, {k*8192}")
        a.e(f"s_add_u32 s{S_T3}, s{T_RB_}, {k*72*1152}")
        a.e(f"buffer_load_dwordx4 v{V_D2}, {sr(R_B,4)}, s{S_T3} offen lds")
    a.e(f"s_add_u32 m0, s{S_WLDS}, {8*8192}")
    a.e("s_nop 0")
    a.e(f"buffer_load_dwordx4 v{V_D1}, {sr(R_B,4)}, s{T_XB} offen lds")
    a.wait_vm(tst)
    a.e("s_barrier")
    between()
    a.e(f"s_cmp_lg_u32 s{T_ACT}, 0")
    a.e(f"s_cbranch_scc1 L_{tag}_work")
    a.e("s_waitcnt vmcnt(0)")
    a.e("s_barrier")
    a.e(f"s_branch L_{tag}_fin")
    a.raw(f"L_{tag}_work:")

    def addr(A):
        k = A // 49152
        return [(V_RD + k, A - 49152 * k), (V_RD + k, A - 49152 * k + 1024)]

    def mk(acc, b, first):
        return lambda r: f"v_mfma_f32_32x32x16_bf16 {vr(acc,16)}, {vr(r,4)}, {vr(b,4)}, {'0' if first else vr(acc,16)}"

    def spin(name, vaddr, soff, want, preloaded=False, VFL=VFL):
        name = tag + name
        a.e(f"s_mov_b32 s{S_T2}, 0")
        if preloaded:
            a.e(f"s_branch L_sp_{name}_c")
        a.raw(f"L_sp_{name}:")
        a.e_untracked(f"buffer_load_dword v{VFL}, v{vaddr}, {sr(R_WS,4)}, s{soff} offen sc1")
        a.e(f"s_add_u32 s{S_T2}, s{S_T2}, 1")
        a.e(f"s_cmp_gt_u32 s{S_T2}, 0x40000")
        a.e(f"s_cbranch_scc1 L_sp_{name}_x")
        a.e("s_waitcnt vmcnt(0)")
        a.raw(f"L_sp_{name}_c:")
        a.e(f"v_cmp_gt_u32 vcc, {want}, v{VFL}")
        a.e(f"s_cbranch_vccz L_sp_{name}_x")
        a.e(f"s_sleep {os.environ.get('SLP', '1')}")
        a.e(f"s_branch L_sp_{name}")
        a.raw(f"L_sp_{name}_x:")

    def ld_part(dst, bk, xr, aoff):
        a.e(f"s_mul_i32 s{S_T0}, s{S_RB}, 9")
        a.e(f"s_add_u32 s{S_T0}, s{S_T0}, s{T_NG}")
        a.e(f"s_lshl_b32 s{S_T0}, s{S_T0}, 4")
        a.e(f"s_add_u32 s{S_T0}, s{S_T0}, s{bk}")
        a.e(f"s_lshl_b32 s{S_T0}, s{S_T0}, 10")
        a.e(f"s_add_u32 s{S_T0}, s{S_T0}, {PART}")
        for p in range(12):
            a.e(f"buffer_load_dwordx4 {vr(dst+4*p,4)}, v{V_L16}, {sr(R_WS,4)}, s{S_T0} offen sc1")
            if p < 11:
                a.e(f"s_add_u32 s{S_T0}, s{S_T0}, {PSZ}")
        a.e(f"buffer_load_dwordx2 {vr(xr,2)}, v{VG}, {sr(R_X,4)}, s{aoff} offen")
        a.e(f"buffer_load_dwordx2 {vr(xr+2,2)}, v{VG}, {sr(R_X,4)}, s{aoff} offen offset:16")

    def unp(dst, src):
        for k in range(4):
            a.e(f"v_lshlrev_b32 v{dst+2*k}, 16, v{src+k}")
            a.e(f"v_and_b32 v{dst+2*k+1}, 0xffff0000, v{src+k}")

    def rnd(F, Pk):
        for k in range(4):
            a.e(f"v_cvt_pk_bf16_f32 v{Pk+k}, v{F+2*k}, v{F+2*k+1}")
        unp(F, Pk)

    def silu_sum(src, F, T, Pk):
        for p in range(12):
            unp(F if p == 0 else T, src + 4 * p)
            if p:
                for k in range(8):
                    a.e(f"v_add_f32 v{F+k}, v{F+k}, v{T+k}")
        rnd(F, Pk)
        for k in range(8):
            a.e(f"v_mul_f32 v{T+k}, s{S_NL2E}, v{F+k}")
        for k in range(8):
            a.e(f"v_exp_f32 v{T+k}, v{T+k}")
        for k in range(8):
            a.e(f"v_add_f32 v{T+k}, 1.0, v{T+k}")
        for k in range(8):
            a.e(f"v_rcp_f32 v{T+k}, v{T+k}")
        for k in range(8):
            a.e(f"v_mul_f32 v{F+k}, v{F+k}, v{T+k}")
        rnd(F, Pk)

    def finish(F, T, Pk, sreg, xr, aoff):
        rnd(sreg, Pk)
        for k in range(8):
            a.e(f"v_mul_f32 v{F+k}, v{F+k}, v{sreg+k}")
        rnd(F, Pk)
        unp(T, xr)
        for k in range(8):
            a.e(f"v_add_f32 v{F+k}, v{F+k}, v{T+k}")
        for k in range(4):
            a.e(f"v_cvt_pk_bf16_f32 v{Pk+k}, v{F+2*k}, v{F+2*k+1}")
        om = os.environ.get("OSTM", "")
        a.e(f"buffer_store_dwordx2 {vr(Pk,2)}, v{VG}, {sr(R_A,4)}, s{aoff} offen {om}")
        a.e(f"buffer_store_dwordx2 {vr(Pk+2,2)}, v{VG}, {sr(R_A,4)}, s{aoff} offen offset:16 {om}")
    PE, PL = X32(0), X32(12)
    XE, XL_ = ACC, ACC + 4
    FE, FL_, TT, PK, PK2, SACC = ACC + 8, ACC + 16, ACC + 24, ACC + 32, ACC + 36, ACC + 48

    to = {}

    def ld_o(ks):
        a.e(f"s_lshl_b32 s{S_T0}, s{S_RB}, 2")
        a.e(f"s_add_u32 s{S_T0}, s{S_T0}, s{T_TR}")
        a.e(f"s_mul_i32 s{S_T0}, s{S_T0}, 36864")
        a.e(f"s_add_u32 s{S_T0}, s{S_T0}, {OF + ks[0]*1024}")
        for n, k in enumerate(ks):
            if n % 4 == 0 and n:
                a.e(f"s_add_u32 s{S_T0}, s{S_T0}, 4096")
            to[k] = a.e(f"buffer_load_dwordx4 {vr(X32(k),4)}, v{V_L16}, {sr(R_WS,4)}, s{S_T0} offen offset:{(n%4)*1024} sc1")

    def gemm(order):
        fr3 = [dict(stage=0, first=False, rd=addr(k * 2048), pre=[lambda k=k: a.wait_vm(to[k])], mf=[mk(SACC, X32(k), n == 0)]) for n, k in enumerate(order)]
        run_stream(a, fr3, {}, None)
    if roles:
        SX = 73728
        a.e(f"s_cmp_eq_u32 s{S_C}, 0")
        a.e(f"s_cbranch_scc0 L_{tag}_sum")
        a.wait_vm0()
        a.e("s_barrier")
        a.e(f"s_cmp_lt_u32 s{S_W}, 2")
        a.e(f"s_cbranch_scc0 L_{tag}_idle")
        spin("og", VF2, T_FS, 2, preloaded=True, VFL=VFO)
        ld_o(list(range(36)))
        SA, SB_ = ACC, ACC + 16
        fr3 = []
        for k in range(36):
            for p_, ac in ((0, SA), (1, SB_)):
                rd_ = [(vb, im + 512 * p_) for vb, im in addr(k * 2048)]
                fr3.append(dict(stage=0, first=False, rd=rd_, pre=[lambda k=k: a.wait_vm(to[k])], mf=[mk(ac, X32(k), k == 0)]))
        run_stream(a, fr3, {}, None)
        a.e(f"s_lshl_b32 s{S_T0}, s{S_W}, 11")
        a.e(f"s_add_u32 s{S_T0}, s{S_T0}, {SX}")
        a.e(f"v_add_u32 v{VFL}, s{S_T0}, v{V_L16}")
        for p_, ac in ((0, SA), (1, SB_)):
            for k in range(8):
                a.e(f"v_cvt_pk_bf16_f32 v{ac+k}, v{ac+2*k}, v{ac+2*k+1}")
            a.e(f"ds_write_b128 v{VFL}, {vr(ac,4)} offset:{p_*4096}")
            a.e(f"ds_write_b128 v{VFL}, {vr(ac+4,4)} offset:{p_*4096+1024}")
        a.wait_lg0()
        a.raw(f"L_{tag}_idle:")
        a.e("s_barrier")
        a.e(f"s_branch L_{tag}_fin")
        a.raw(f"L_{tag}_sum:")
        a.barrier_hist()
        a.wait_vm0()
        a.e("s_barrier")
        spin("es", VF1, T_FE, 1, preloaded=True)
        ld_part(PE, T_BK0, XE, T_AE)
        tp = a.vm
        ld_part(PL, T_BK1, XL_, T_AL)
        a.e(f"s_lshl_b32 s{S_T0}, s{S_R}, 11")
        a.e(f"s_add_u32 s{S_T0}, s{S_T0}, {SX}")
        a.e(f"v_add_u32 v{VFL}, s{S_T0}, v{V_L16}")
        a.wait_vm(tp)
        silu_sum(PE, FE, TT, PK)
        a.wait_vm0()
        silu_sum(PL, FL_, TT, PK)
        stamp(a, 'u')
        a.e("s_barrier")
        a.e(f"ds_read_b128 {vr(PE,4)}, v{VFL}")
        a.e(f"ds_read_b128 {vr(PE+4,4)}, v{VFL} offset:1024")
        a.wait_lg0()
        unp(SACC, PE)
        unp(SACC + 8, PE + 4)
        finish(FE, TT, PK, SACC, XE, T_AE)
        finish(FL_, TT, PK2, SACC + 8, XL_, T_AL)
        a.raw(f"L_{tag}_fin:")
        return
    if late_c1:
        a.e(f"s_cmp_eq_u32 s{S_C}, 0")
        a.e(f"s_cbranch_scc0 L_{tag}_late")
    spin("ea", VF1, T_FE, 1, preloaded=True)
    ld_part(PE, T_BK0, XE, T_AE)
    ld_part(PL, T_BK1, XL_, T_AL)
    a.e(f"buffer_load_dword v{VFO}, v{VF2}, {sr(R_WS,4)}, s{T_FS} offen sc1")
    a.wait_vm0()
    a.e("s_barrier")
    spin("oa", VF2, T_FS, 2, preloaded=True, VFL=VFO)
    ld_o(list(range(24, 36)))
    silu_sum(PE, FE, TT, PK)
    ld_o(list(range(0, 12)))
    silu_sum(PL, FL_, TT, PK)
    ld_o(list(range(12, 24)))
    stamp(a, 't')
    gemm(list(range(24, 36)) + list(range(0, 24)))
    if late_c1:
        a.e(f"s_branch L_{tag}_join")
        a.raw(f"L_{tag}_late:")
        a.barrier_hist()
        a.wait_vm0()
        a.e("s_barrier")
        spin("ob", VF2, T_FS, 2, preloaded=True, VFL=VFO)
        ld_o(list(range(36)))
        tf = a.e(f"buffer_load_dword v{VFL}, v{VF1}, {sr(R_WS,4)}, s{T_FE} offen sc1")
        gemm(list(range(36)))
        stamp(a, 'u')
        a.wait_vm(tf)
        spin("eb", VF1, T_FE, 1, preloaded=True)
        ld_part(PE, T_BK0, XE, T_AE)
        tp = a.vm
        ld_part(PL, T_BK1, XL_, T_AL)
        a.wait_vm(tp)
        silu_sum(PE, FE, TT, PK)
        a.wait_vm0()
        silu_sum(PL, FL_, TT, PK)
        a.raw(f"L_{tag}_join:")
        a.e("s_nop 7")
        a.e("s_nop 7")
    finish(FE, TT, PK, SACC, XE, T_AE)
    finish(FL_, TT, PK2, SACC + 8, XL_, T_AL)
    a.raw(f"L_{tag}_fin:")


def mlp(a):
    KPS = int(os.environ.get("KPS", "3"))
    NS = 18 // KPS
    SB = KPS * 8192
    FPS = KPS * 4
    USEBAR = os.environ.get("SYNC", "bar") == "bar"
    SL = int(os.environ.get("SLACK", str(FPS - 4)))
    t0, t1, t2 = V_T + 3, V_T + 4, ACC
    a.e(f"s_cmp_lt_u32 s{S_W}, 4")
    a.e(f"s_cselect_b32 s{R_W1}, s{S_WG}, s{S_WU}")
    a.e(f"s_cselect_b32 s{R_W1+1}, s{S_WG+1}, s{S_WU+1}")
    a.e(f"s_mov_b32 s{R_W1+2}, 5308416")
    a.e(f"s_mov_b32 s{R_W1+3}, 0x20000")
    srd(a, R_W2, S_WD, 5308416)
    stamp(a)
    xtk = x_stage_issue(a)
    a.e(f"v_bfe_u32 v{t0}, v{V_LANE}, 2, 3")
    a.e(f"v_and_b32 v{t1}, 3, v{V_LANE}")
    a.e(f"v_lshrrev_b32 v{t2}, 5, v{V_LANE}")
    a.e(f"v_lshlrev_b32 v{t2}, 6, v{t2}")
    a.e(f"v_lshl_add_u32 v{t1}, v{t1}, 4, v{t2}")
    a.e(f"v_mul_u32_u24 v{V_D1}, 9216, v{t0}")
    a.e(f"v_add_u32 v{V_D1}, v{V_D1}, v{t1}")
    a.e(f"v_mul_u32_u24 v{V_D2}, 1152, v{t0}")
    a.e(f"v_add_u32 v{V_D2}, v{V_D2}, v{t1}")
    a.e(f"s_lshl_b32 s{S_WLDS}, s{S_W}, 10")
    a.e(f"s_mul_i32 s{S_T0}, s{S_SPLIT}, 384")
    a.e(f"s_mul_i32 s{S_W1B}, s{S_R}, {8*9216}")
    a.e(f"s_lshl_b32 s{S_T1}, s{S_T0}, 1")
    a.e(f"s_add_u32 s{S_W1B}, s{S_W1B}, s{S_T1}")
    a.e(f"s_lshl_b32 s{S_T1}, s{S_W}, 3")
    a.e(f"s_add_u32 s{S_T1}, s{S_T1}, s{S_T0}")
    a.e(f"s_mul_i32 s{S_W2B}, s{S_T1}, 1152")
    V_PF, V_PF2 = 8, 9
    S_PFO, S_PFS = S_H1, 98
    R_PF = R_B
    p0, p1 = FR, FR + 1
    NL = 36 if MAPC else 18
    a.e(f"s_and_b32 s{S_T0}, s{S_RB}, {3 if MAPC else 7}")
    a.e(f"s_lshl_b32 s{S_T1}, s{S_T0}, 2")
    a.e(f"s_add_u32 s{S_T1}, s{S_T1}, s{S_R}")
    a.e(f"s_mul_i32 s{S_T1}, s{S_T1}, {NL}")
    a.e(f"v_add_u32 v{p0}, s{S_T1}, v{V_LANE}")
    a.e(f"v_mul_u32_u24 v{p0}, 9216, v{p0}")
    a.e(f"v_cmp_gt_u32 vcc, {NL}, v{V_LANE}")
    a.e(f"v_cndmask_b32 v{V_PF}, -1, v{p0}, vcc")
    a.e(f"v_mul_u32_u24 v{p0}, 86, v{V_LANE}")
    a.e(f"v_lshrrev_b32 v{p0}, 8, v{p0}")
    a.e(f"v_mul_u32_u24 v{p1}, 3, v{p0}")
    a.e(f"v_sub_u32 v{p1}, v{V_LANE}, v{p1}")
    a.e(f"s_lshl_b32 s{S_T1}, s{S_T0}, 3")
    a.e(f"s_add_u32 s{S_T1}, s{S_T1}, s{S_W}")
    a.e(f"s_mul_i32 s{S_T1}, s{S_T1}, {NL // 3}")
    a.e(f"v_add_u32 v{p0}, s{S_T1}, v{p0}")
    a.e(f"v_mul_u32_u24 v{p0}, 1152, v{p0}")
    a.e(f"v_lshl_add_u32 v{p0}, v{p1}, 7, v{p0}")
    a.e(f"v_cndmask_b32 v{V_PF2}, -1, v{p0}, vcc")
    for k in range(4):
        a.e(f"s_mov_b32 s{R_PF+k}, s{R_W1+k}")
    a.e(f"s_mul_i32 s{S_PFO}, s{S_SPLIT}, 768")
    a.e(f"s_mov_b32 s{S_PFS}, 128")

    def pf():
        if not FLAG("NOPF"):
            a.e(f"buffer_load_dword v0, v{V_PF}, {sr(R_PF,4)}, s{S_PFO} offen")
        if FLAG("PF64"):
            a.e(f"buffer_load_dword v0, v{V_PF}, {sr(R_PF,4)}, s{S_PFO} offen offset:64")
        a.e(f"s_add_u32 s{S_PFO}, s{S_PFO}, s{S_PFS}")

    dtk = {}

    def dma_raw(g, i, voff, srd_, soff, mid=None):
        if FLAG("NODMA") and a.always:
            dtk[g % NS] = a.vm
            return
        a.e(f"s_add_u32 m0, s{S_WLDS}, {(g % NS) * SB + i*8192}")
        if mid:
            a.e(mid)
        dtk[g % NS] = a.e(f"buffer_load_dwordx4 v{voff}, {sr(srd_,4)}, s{soff} offen lds")

    def dma_p0(d):
        dma_raw(d // KPS, d % KPS, V_D1, R_W1, S_T3, f"s_add_u32 s{S_T3}, s{S_W1B}, {d*294912}")

    def after_wait():
        dma_p0(0)
        dma_p0(1)
        pf()
    if FLAG("EARLYW"):
        after_wait()
    rd_bases32(a)
    a.e(f"s_lshl_b32 s{S_T0}, s{S_SPLIT}, 4")
    a.e(f"s_add_u32 s{S_T0}, s{S_T0}, s{S_RB}")
    a.e(f"s_mul_i32 s{S_T0}, s{S_T0}, 98304")
    a.e(f"s_lshl_b32 s{S_T2}, s{S_R}, 10")
    a.e(f"s_add_u32 s{S_H0}, s{S_T0}, s{S_T2}")
    a.e(f"s_mul_i32 s{S_T0}, s{S_SPLIT}, {PSZ}")
    a.e(f"s_mul_i32 s{S_T3}, s{S_RB}, {9*16384}")
    a.e(f"s_add_u32 s{S_T0}, s{S_T0}, s{S_T3}")
    a.e(f"s_lshl_b32 s{S_T3}, s{S_C}, 13")
    a.e(f"s_add_u32 s{S_T0}, s{S_T0}, s{S_T3}")
    a.e(f"s_add_u32 s{S_T0}, s{S_T0}, {PART}")
    a.e(f"s_lshl_b32 s{S_T2}, s{S_R}, 11")
    a.e(f"s_add_u32 s{S_P0}, s{S_T0}, s{S_T2}")
    a.e(f"s_mov_b32 s{S_NL2E}, 0x{NLOG2E:x}")
    itk = []
    PFD = int(os.environ.get('PFD', '2'))

    def after_x():
        a.e(f"s_lshl_b32 s{S_T0}, s{S_RB}, 2")
        a.e(f"v_mov_b32 v{V_T+2}, s{S_T0}")
        itk.append(init_issue(a, V_T + 2, V_T + 3))
        for _ in range(PFD - 1):
            pf()
    layernorm(a, xtk, m32=True, after_x=after_x, after_wait=None if FLAG('EARLYW') else after_wait)
    stamp(a, 'f')
    for d in range(2, (NS - 2) * KPS):
        dma_p0(d)
    init_check(a, "m", V_T + 2, V_T + 3, itk[0])
    V_DN = V_T + 4
    VEX = V_T
    S_IT, S_CUR, S_PTR, S_STEP, S_ADJ, S_HST = 71, 72, 73, 74, 75, S_XREG
    R_N = R_A
    a.e(f"s_mov_b32 s{S_IT}, 0")
    a.e(f"s_mov_b32 s{S_CUR}, s{S_W1B}")
    a.e(f"s_mov_b32 s{S_HST}, 0x70000000")
    sy = Sync(a, "m")
    if not USEBAR:
        sy.setup()

    def addr(A):
        k = A // 49152
        return [(V_RD + k, A - 49152 * k), (V_RD + k, A - 49152 * k + 1024)]

    def acc1(st, mat):
        return ACC + st * 32 + mat * 16

    def mk(acc, b, first):
        return lambda r: f"v_mfma_f32_32x32x16_bf16 {vr(acc,16)}, {vr(r,4)}, {vr(b,4)}, {'0' if first else vr(acc,16)}"

    def E(text):
        return lambda: a.e(text)

    def copy_items(mat):
        A_, E_ = acc1(0, mat), acc1(1, mat)
        return [E(f"v_mul_f32 v{E_+i}, s{S_NL2E}, v{A_+i}") if mat == 0 else E(f"v_mov_b32 v{E_+i}, v{A_+i}") for i in range(16)]

    hst = {}

    def epi1(last, st_=1):
        items = []
        G0, U0 = acc1(st_, 0), acc1(st_, 1)
        for u in range(2):
            for h in range(2):
                G, U = G0 + 8 * u + 4 * h, U0 + 8 * u + 4 * h
                items += [E(f"v_mul_f32 v{G+i}, s{S_NL2E}, v{G+i}") for i in range(4)]
                items += [E(f"v_exp_f32 v{G+i}, v{G+i}") for i in range(4)]
                items += [E(f"v_add_f32 v{G+i}, 1.0, v{G+i}") for i in range(4)]
                items += [E(f"v_rcp_f32 v{G+i}, v{G+i}") for i in range(4)]
                items += [E(f"v_mul_f32 v{U+i}, v{U+i}, v{G+i}") for i in range(4)]
            D, U = G0 + 8 * u, U0 + 8 * u
            items += [E(f"v_cvt_pk_bf16_f32 v{D+k}, v{U+2*k}, v{U+2*k+1}") for k in range(4)]
            if not last:
                def st(u=u, D=D):
                    a.e(f"s_add_u32 s{S_T0}, s{S_HST}, {u*4096}")
                    hst[0] = a.e(f"buffer_store_dwordx4 {vr(D,4)}, v{V_L16}, {sr(R_WS,4)}, s{S_T0} offen {os.environ.get('HSTM','')}")
                items.append(st)
            else:
                def st(u=u, D=D):
                    hst[5] = a.e(f"ds_write_b128 v{VEX+1}, {vr(D,4)} offset:{u*4096}")
                items.append(st)
        return items

    ool = []
    def mkfrags(st_):
        frags = []
        for s16 in range(36):
            ks = s16 // 2
            g = ks // KPS
            for mat in range(2):
                A = g * SB + (ks % KPS) * 8192 + mat * 4096 + (s16 & 1) * 2048
                frags.append(dict(stage=g, first=(len(frags) % FPS == 0), rd=addr(A),
                                  mf=[mk(acc1(st_, mat), X32(s16), s16 == 0)]))
        return frags
    fragsAB = [mkfrags(0), mkfrags(1)]
    frags = fragsAB[0]
    DSP = FPS // KPS - 1
    GL = NS - 1

    def place_dma(fl, fn, setf):
        for g in range(NS):
            n0 = max(g * FPS - PD + 2, 0)
            if g == 2 and setf:
                fl.setdefault(n0 - 1, []).append(setf)
            for i in range(KPS):
                fl.setdefault(n0 + DSP * i, []).append(fn(g, i))

    hld = {}

    def pf_switch():
        a.e(f"s_mul_i32 s{S_PFO}, s{S_SPLIT}, {384*1152}")
        a.e(f"s_mov_b32 s{S_PFS}, 384")
        a.e(f"s_mov_b32 s{R_PF}, s{R_W2}")
        a.e(f"s_mov_b32 s{R_PF+1}, s{R_W2+1}")
        a.e(f"v_mov_b32 v{V_PF}, v{V_PF2}")
        pf()

    if PFD > 2:
        ool.append("\n".join(["L_p1_pf:",
            f"    s_mul_i32 s{S_PFO}, s{S_SPLIT}, {384*1152}", f"    s_mov_b32 s{S_PFS}, 384",
            f"    s_mov_b32 s{R_PF}, s{R_W2}", f"    s_mov_b32 s{R_PF+1}, s{R_W2+1}", f"    v_mov_b32 v{V_PF}, v{V_PF2}", "    s_nop 1", "    s_branch L_p1_pfb"]))

    def build_fill(last, st_=0, sw=False, inloop=False):
        fl = {}
        spread(fl, epi1(False, 1 - st_), 3, int(os.environ.get("EPIEND", "32")))

        def dma1(g, i):
            def f():
                if g < 2:
                    dma_raw(g + NS - 2, i, V_D1, R_W1, S_T3, f"s_add_u32 s{S_T3}, s{S_CUR}, {((g+NS-2)*KPS+i)*294912}")
                else:
                    d = (g - 2) * KPS + i
                    if not last:
                        dma_raw(g - 2, i, V_D1, R_W1, S_T3, f"s_add_u32 s{S_T3}, s{S_CUR}, {128 + d*294912}")
                    else:
                        dma_raw(g - 2, i, V_D2, R_W2, S_T3, f"s_add_u32 s{S_T3}, s{S_W2B}, {(d%6)*73728 + (d//6)*128}")
            return f
        place_dma(fl, dma1, None)
        if inloop and PFD > 2 and (6 - PFD) % 2 == st_:
            def pfd():
                a.e(f"s_cmp_eq_u32 s{S_IT}, {6 - PFD}")
                a.e("s_cbranch_scc1 L_p1_pf")
                a.raw("L_p1_pfb:")
                pf()
            fl.setdefault(5, []).append(pfd)
        else:
            fl.setdefault(5, []).append(pf_switch if (sw and PFD == 2) else pf)
        if last:
            def hload(kap):
                def f():
                    a.e(f"s_add_u32 s{S_T0}, s{S_H0}, {HS + kap*4096}")
                    if FLAG("NOHLD"):
                        hld[0] = a.vm
                        return
                    hld[0] = hld[('k', kap)] = a.e(f"buffer_load_dwordx4 {vr(X32(kap),4)}, v{V_L16}, {sr(R_WS,4)}, s{S_T0} offen")
                return f
            NHE = int(os.environ.get("NHE", "8"))
            for kap in range(NHE):
                fl.setdefault((66 * kap) // NHE + 4, []).append(hload(kap))
            hld['late'] = [hload(kap) for kap in range(NHE, 20)]
        return fl
    fill = build_fill(False)

    def add_sync(fl, extra=None):
        if USEBAR:
            return
        for g in range(NS):
            def arr(g=g):
                tk = dtk[g]
                if extra and g in extra:
                    tk = max(tk, extra[g]())
                sy.arrive(tk)
            fl.setdefault((FPS * g - PD - SL) % 72, []).insert(0, arr)
            fl.setdefault((FPS * g - PD - 2) % 72, []).insert(0, sy.read)
    add_sync(fill, {GL: lambda: hst[0]})
    first1 = [True]

    def on_stage1(g):
        g %= 1000
        if first1[0]:
            first1[0] = False
            a.wait_vm(dtk[0])
            a.wait_lg0()
            a.e("s_barrier")
            stamp(a, 'i')
            if FLAG("ITST"):
                a.e("s_memtime s[94:95]")
                a.wait_lg0()
                a.e(f"v_writelane_b32 v255, s94, 0")
            return
        if USEBAR:
            a.wait_vm(max(dtk[g], hst[0]) if g == GL else dtk[g])
            if not FLAG("NOBAR"):
                a.e("s_barrier")
        else:
            sy.check(f"a{g}")

    a.always = True
    tk1 = [run_stream(a, frags, fill, on_stage1, wrap=True, prime=True)]

    def adv():
        if FLAG("ITST"):
            a.e("s_memtime s[94:95]")
            a.wait_lg0()
            a.e(f"s_add_u32 m0, s{S_IT}, 1")
            a.e("s_nop 1")
            a.e(f"v_writelane_b32 v255, s94, m0")
        a.e(f"s_lshl_b32 s{S_T0}, s{S_C}, 13")
        a.e(f"s_lshl_b32 s{S_HST}, s{S_IT}, 14")
        a.e(f"s_add_u32 s{S_HST}, s{S_HST}, s{S_T0}")
        a.e(f"s_add_u32 s{S_HST}, s{S_HST}, s{S_H0}")
        a.e(f"s_add_u32 s{S_CUR}, s{S_CUR}, 128")
        a.e(f"s_add_u32 s{S_IT}, s{S_IT}, 1")

    def body1():
        for st_ in range(2):
            tk1[0] = run_stream(a, fragsAB[st_], build_fill(False, st_, inloop=True), on_stage1, wrap=True, prime=False, tick=dict(tk1[0]))
            adv()

    def dec1(label):
        a.e(f"s_cmp_lt_u32 s{S_IT}, 4")
        a.e(f"s_cbranch_scc1 {label}")
    loop(a, "L_p1", body1, dec1)
    tk1[0] = run_stream(a, fragsAB[0], build_fill(False, 0, sw=True), on_stage1, wrap=True, prime=False, tick=dict(tk1[0]))
    adv()
    run_stream(a, fragsAB[1], build_fill(True, 1), on_stage1, wrap=False, prime=False, tick=dict(tk1[0]))
    if FLAG("ITST"):
        a.e("s_memtime s[94:95]")
        a.wait_lg0()
        a.e(f"v_writelane_b32 v255, s94, 6")
    a.always = False
    for f_ in hld['late']:
        f_()
    ND = (NS - 2) * KPS
    a.e(f"s_add_u32 s{S_PTR}, s{S_W2B}, {(ND%6)*73728 + (ND//6)*128}")
    a.e(f"s_lshl_b32 s{S_T0}, s{S_R}, 10")
    a.e(f"s_add_u32 s{S_T0}, s{S_T0}, {(NS-1)*SB}")
    a.e(f"v_add_u32 v{VEX}, s{S_T0}, v{V_L16}")
    a.e(f"s_lshl_b32 s{S_T0}, s{S_C}, 13")
    a.e(f"v_add_u32 v{VEX+1}, s{S_T0}, v{VEX}")
    its = epi1(True, 1)
    a.wait_lg0()
    for it in its[:20]:
        it()
    a.e("s_barrier")
    for it in its[20:]:
        it()
    a.wait_vm(dtk[0] if FLAG("PEEL2") else max(dtk[0], hld[0]))
    a.wait_lg0()
    a.e("s_barrier")
    stamp(a, 'j')
    if FLAG("ITST"):
        a.e("s_memtime s[94:95]")
        a.wait_lg0()
        a.e(f"v_writelane_b32 v255, s94, 7")
    pf()
    for kap in range(20, 24):
        a.e(f"ds_read_b128 {vr(X32(kap),4)}, v{VEX} offset:{(kap-20)*4096}")
    def acc2(j):
        return ACC + j * 16
    S_PST = S_HST
    a.e(f"s_mov_b32 s{S_IT}, 0")
    a.e(f"s_mov_b32 s{S_PST}, 0x70000000")

    def epi2(j, off_sgpr, off_imm):
        items = []
        for u in range(2):
            P = acc2(j) + 8 * u
            items += [E(f"v_cvt_pk_bf16_f32 v{P+k}, v{P+2*k}, v{P+2*k+1}") for k in range(4)]

            def st(u=u, P=P):
                if u == 0:
                    a.e(f"s_add_u32 s{S_P1}, s{S_P0}, {('s%d' % off_sgpr) if off_sgpr is not None else off_imm}")
                pst[j] = a.e(f"buffer_store_dwordx4 {vr(P,4)}, v{V_L16}, {sr(R_WS,4)}, s{S_P1} offen offset:{u*1024} sc1")
            items.append(st)
        return items
    pst = {}
    S_TRG, S_SITE, S_RNG, S_RBLK, S_NG0 = S_CUR, S_STEP, S_ADJ, S_W1B, S_PFS
    RB_, F_, T_, VG = X32(24), ACC + 48, ACC + 56, V_T + 2
    a.e(f"s_lshr_b32 s{S_RNG}, s{S_SPLIT}, 1")
    a.e(f"s_add_u32 s{S_TRG}, s{S_RNG}, {3 if not FLAG('NORED') else 100}")
    a.e(f"s_and_b32 s{S_RBLK}, s{S_SPLIT}, 1")
    a.e(f"s_lshl_b32 s{S_RBLK}, s{S_RBLK}, 3")
    a.e(f"s_add_u32 s{S_RBLK}, s{S_RBLK}, s{S_W}")
    a.e(f"s_mov_b32 s{S_NG0}, 0")
    S_TR2 = S_W2B
    a.e(f"s_mov_b32 s{S_TR2}, 100")
    a.e(f"v_and_b32 v{VG}, 31, v{V_LANE}")
    a.e(f"v_mul_u32_u24 v{VG}, 1152, v{VG}")
    a.e(f"v_lshrrev_b32 v{VG+1}, 5, v{V_LANE}")
    a.e(f"v_lshl_add_u32 v{VG}, v{VG+1}, 3, v{VG}")

    def sub(name, body, nsite):
        b = Asm()
        b.raw(f"L_{name}:")
        body(b)
        for k in range(nsite - 1):
            b.e(f"s_cmp_eq_u32 s{S_SITE}, {k}")
            b.e(f"s_cbranch_scc1 L_{name}_b{k}")
        b.e(f"s_branch L_{name}_b{nsite-1}")
        for k in range(nsite - 1):
            b.raw(f"L_{name}_t{k}:")
            b.e(f"s_mov_b32 s{S_SITE}, {k}")
            b.e(f"s_branch L_{name}")
        ool.append(b.text())

    def flag_addr(b):
        b.e(f"s_lshl_b32 s{S_T0}, s{S_RB}, 11")
        b.e(f"s_lshl_b32 s{S_T1}, s{S_RNG}, 6")
        b.e(f"s_add_u32 s{S_T0}, s{S_T0}, s{S_T1}")
        b.e(f"s_add_u32 s{S_T0}, s{S_T0}, {FLG + 128}")

    def r0(b):
        flag_addr(b)
        b.e(f"v_min_u32 v{T_}, 11, v{V_LANE}")
        b.e(f"v_lshlrev_b32 v{T_}, 2, v{T_}")
        b.e(f"buffer_load_dword v{T_+1}, v{T_}, {sr(R_WS,4)}, s{S_T0} offen sc1")

    def r1(b):
        b.e("s_waitcnt vmcnt(R1WAIT)")
        b.e(f"v_cmp_eq_u32 vcc, 0, v{T_+1}")
        b.e(f"s_add_u32 s{S_T3}, s{S_T0}, 1")
        b.e("s_cbranch_vccz L_r1_px")
        b.e(f"s_cmp_lt_u32 s{S_SITE}, 3")
        b.e("s_cbranch_scc1 L_r1_ret")
        flag_addr(b)
        b.e(f"s_mov_b32 s{S_T2}, 0")
        b.raw("L_r1_poll:")
        b.e(f"buffer_load_dword v{T_+1}, v{T_}, {sr(R_WS,4)}, s{S_T0} offen sc1")
        b.e(f"s_add_u32 s{S_T2}, s{S_T2}, 1")
        b.e(f"s_cmp_gt_u32 s{S_T2}, 0x40000")
        b.e("s_cbranch_scc1 L_r1_px")
        b.e("s_waitcnt vmcnt(0)")
        b.e(f"v_cmp_eq_u32 vcc, 0, v{T_+1}")
        b.e("s_cbranch_vccz L_r1_px")
        b.e("s_sleep 2")
        b.e("s_branch L_r1_poll")
        b.raw("L_r1_px:")
        b.e(f"s_mov_b32 s{S_TRG}, 100")
        b.e(f"s_mov_b32 s{S_TR2}, s{S_T3}")
        b.e(f"s_mul_i32 s{S_T0}, s{S_RB}, 9")
        b.e(f"s_add_u32 s{S_T0}, s{S_T0}, s{S_RNG}")
        b.e(f"s_lshl_b32 s{S_T0}, s{S_T0}, 4")
        b.e(f"s_add_u32 s{S_T0}, s{S_T0}, s{S_RBLK}")
        b.e(f"s_lshl_b32 s{S_T0}, s{S_T0}, 10")
        b.e(f"s_add_u32 s{S_T0}, s{S_T0}, {PART}")
        for p in range(12):
            b.e(f"buffer_load_dwordx4 {vr(RB_+4*p,4)}, v{V_L16}, {sr(R_WS,4)}, s{S_T0} offen sc1")
            if p < 11:
                b.e(f"s_add_u32 s{S_T0}, s{S_T0}, {PSZ}")
        b.raw("L_r1_ret:")

    def r2(b):
        b.e(f"s_mov_b32 s{S_TR2}, 100")
        b.e("s_waitcnt vmcnt(R2WAIT)")
        for p in range(12):
            for k in range(4):
                r = RB_ + 4 * p + k
                d = F_ if p == 0 else T_
                b.e(f"v_lshlrev_b32 v{d+2*k}, 16, v{r}")
                b.e(f"v_and_b32 v{d+2*k+1}, 0xffff0000, v{r}")
            if p:
                for k in range(8):
                    b.e(f"v_add_f32 v{F_+k}, v{F_+k}, v{T_+k}")
        for k in range(4):
            b.e(f"v_cvt_pk_bf16_f32 v{T_+k}, v{F_+2*k}, v{F_+2*k+1}")
        for k in range(4):
            b.e(f"v_lshlrev_b32 v{F_+2*k}, 16, v{T_+k}")
            b.e(f"v_and_b32 v{F_+2*k+1}, 0xffff0000, v{T_+k}")
        for k in range(8):
            b.e(f"v_mul_f32 v{T_+k}, s{S_NL2E}, v{F_+k}")
        for k in range(8):
            b.e(f"v_exp_f32 v{T_+k}, v{T_+k}")
        for k in range(8):
            b.e(f"v_add_f32 v{T_+k}, 1.0, v{T_+k}")
        for k in range(8):
            b.e(f"v_rcp_f32 v{T_+k}, v{T_+k}")
        for k in range(8):
            b.e(f"v_mul_f32 v{F_+k}, v{F_+k}, v{T_+k}")
        for k in range(4):
            b.e(f"v_cvt_pk_bf16_f32 v{T_+k}, v{F_+2*k}, v{F_+2*k+1}")
        b.e(f"s_bfe_u32 s{S_T0}, s{S_RBLK}, 0x20001")
        b.e(f"s_lshl_b32 s{S_T1}, s{S_RB}, 2")
        b.e(f"s_add_u32 s{S_T0}, s{S_T0}, s{S_T1}")
        b.e(f"s_mul_i32 s{S_T0}, s{S_T0}, {32*1152}")
        b.e(f"s_lshl_b32 s{S_T1}, s{S_RNG}, 7")
        b.e(f"s_add_u32 s{S_T0}, s{S_T0}, s{S_T1}")
        b.e(f"s_lshr_b32 s{S_T1}, s{S_RBLK}, 3")
        b.e(f"s_lshl_b32 s{S_T1}, s{S_T1}, 6")
        b.e(f"s_add_u32 s{S_T0}, s{S_T0}, s{S_T1}")
        b.e(f"s_and_b32 s{S_T1}, s{S_RBLK}, 1")
        b.e(f"s_lshl_b32 s{S_T1}, s{S_T1}, 5")
        b.e(f"s_add_u32 s{S_T0}, s{S_T0}, s{S_T1}")
        b.e(f"s_add_u32 s{S_T0}, s{S_T0}, {PART + 12*PSZ}")
        b.e(f"buffer_store_dwordx2 {vr(T_,2)}, v{VG}, {sr(R_WS,4)}, s{S_T0} offen sc1")
        b.e(f"buffer_store_dwordx2 {vr(T_+2,2)}, v{VG}, {sr(R_WS,4)}, s{S_T0} offen offset:16 sc1")
        b.e("s_nop 1")
    vmat = {}

    def site(name, j, d=0):
        def f():
            vmat.setdefault((name, j), []).append(a.vm)
            a.e(f"s_add_u32 s{S_T0}, s{S_NG0}, {j}")
            a.e(f"s_cmp_eq_u32 s{S_T0}, s{S_TR2}" if d else f"s_cmp_ge_u32 s{S_T0}, s{S_TRG}")
            a.e(f"s_cbranch_scc1 L_{name}_t{j}")
            a.raw(f"L_{name}_b{j}:")
        return f

    def signal_code(off_lines, skip0=None, name=""):
        t = [f"L_sg{name}:"]
        if skip0:
            t += [f"    s_cmp_eq_u32 s{S_IT}, 0", f"    s_cbranch_scc1 L_sg{name}_b"]
        t += ["    " + x for x in off_lines]
        t += [f"    s_lshl_b32 s{S_T1}, s{S_RB}, 11", f"    s_add_u32 s{S_T0}, s{S_T0}, s{S_T1}", f"    s_lshl_b32 s{S_T1}, s{S_SPLIT}, 2",
              f"    s_add_u32 s{S_T0}, s{S_T0}, s{S_T1}",
              f"    v_mov_b32 v{VG+1}, 1", f"    v_mov_b32 v0, 0", "    s_mov_b64 exec, 1",
              f"    buffer_store_dword v{VG+1}, v0, {sr(R_WS,4)}, s{S_T0} offen sc1", "    s_mov_b64 exec, -1", f"    s_branch L_sg{name}_b"]
        ool.append("\n".join(t))

    def signal_site(name):
        a.e(f"s_cmp_eq_u32 s{S_W}, 0")
        a.e(f"s_cbranch_scc1 L_sg{name}")
        a.raw(f"L_sg{name}_b:")
    for j in range(3):
        signal_code([f"s_lshl_b32 s{S_T0}, s{S_NG0}, 6", f"s_add_u32 s{S_T0}, s{S_T0}, {FLG + 128 + 64*(j-2)}"], skip0=(j < 2), name=f"p{j}")
    frags2 = []
    for j in range(3):
        for kap in range(24):
            A = j * 49152 + kap * 2048
            frags2.append(dict(stage=A // SB, first=(len(frags2) % FPS == 0), rd=addr(A),
                               mf=[mk(acc2(j), X32(kap), kap == 0)]))
    fill2 = {}
    spread(fill2, epi2(2, S_PST, 0), 2, 8)
    spread(fill2, epi2(0, None, 0), 24 + 2, 24 + 8)
    spread(fill2, epi2(1, None, 16384), 48 + 2, 48 + 8)
    for j in range(3):
        pass

    def dma2(g, i):
        def f():
            t = (g + NS - 2) % NS
            d = t * KPS + i
            dma_raw(t, i, V_D2, R_W2, S_T3, f"s_mov_b32 s{S_T3}, s{S_PTR}")
            a.e(f"s_add_u32 s{S_PTR}, s{S_PTR}, {73728 if d % 6 != 5 else (128 - 5*73728) & 0xffffffff}")
        return f

    def setend():
        a.e(f"s_cmp_eq_u32 s{S_IT}, 2")
        a.e(f"s_cselect_b32 s{S_PTR}, 0x70000000, s{S_PTR}")
    place_dma(fill2, dma2, setend)
    add_sync(fill2)
    first2 = [True]
    peel = [False]

    def on_stage2(g):
        g %= 1000
        if first2[0]:
            first2[0] = False
            return
        SPG = NS // 3
        if g % SPG == SPG - 1:
            j = g // SPG
            a.wait_vm(max(dtk[g], pst.get((j - 2) % 3, 0) if not FLAG("NOPSTW") else 0))
            a.e("s_barrier")
            if peel[0]:
                if j == 2:
                    signal_code([f"s_mov_b32 s{S_T0}, {FLG + 128}"], name="pq")
                    signal_site("pq")
            else:
                signal_site(f"p{j}")
        else:
            a.wait_vm(dtk[g])
            a.e("s_barrier")
    a.always = True
    tk2 = [run_stream(a, frags2, fill2, on_stage2, wrap=True, prime=True)]

    def body2():
        tk2[0] = run_stream(a, frags2, fill2, on_stage2, wrap=True, prime=False, tick=dict(tk2[0]))

    def dec2(label):
        if FLAG("ITST"):
            a.e("s_memtime s[94:95]")
            a.wait_lg0()
            a.e(f"s_add_u32 m0, s{S_IT}, 8")
            a.e("s_nop 1")
            a.e(f"v_writelane_b32 v255, s94, m0")
        a.e(f"s_add_u32 s{S_P0}, s{S_P0}, {3*16384}")
        a.e(f"s_mov_b32 s{S_PST}, {(-16384) & 0xffffffff}")
        a.e(f"s_add_u32 s{S_NG0}, s{S_NG0}, 3")
        a.e(f"s_add_u32 s{S_IT}, s{S_IT}, 1")
        a.e(f"s_cmp_lt_u32 s{S_IT}, 3")
        a.e(f"s_cbranch_scc1 {label}")
    if FLAG("PEEL2"):
        import copy
        fr_first = [dict(f_) for f_ in frags2]
        for kap in range(20):
            fr_first[kap]["pre"] = [lambda kap=kap: a.wait_vm(hld[('k', kap)])]
        peel[0] = True
        a.always = False
        tk2[0] = run_stream(a, fr_first, fill2, on_stage2, wrap=True, prime=False, tick=dict(tk2[0]))
        a.always = True
        peel[0] = False
        a.e(f"s_add_u32 s{S_P0}, s{S_P0}, {3*16384}")
        a.e(f"s_mov_b32 s{S_PST}, {(-16384) & 0xffffffff}")
        a.e(f"s_add_u32 s{S_NG0}, s{S_NG0}, 3")
        a.e(f"s_add_u32 s{S_IT}, s{S_IT}, 1")
    loop(a, "L_p2", body2, dec2)
    a.always = False
    for it in epi2(2, S_PST, 0):
        it()
    if FLAG("ITST"):
        a.e(f"s_lshl_b32 s{S_T0}, s2, 11")
        a.e(f"s_lshl_b32 s{S_T1}, s{S_W}, 8")
        a.e(f"s_add_u32 s{S_T0}, s{S_T0}, s{S_T1}")
        a.e(f"s_add_u32 s{S_T0}, s{S_T0}, 0x3D00000")
        a.e(f"v_lshlrev_b32 v254, 2, v{V_LANE}")
        a.e(f"buffer_store_dword v255, v254, {sr(R_WS,4)}, s{S_T0} offen")
    stamp(a, 'v')
    def assign():
        a.e(f"s_lshr_b32 s{S_T0}, s{S_SPLIT}, 1")
        a.e(f"s_add_u32 s{T_CL}, s{S_T0}, 12")
        a.e(f"s_lshl_b32 s{T_CL}, s{T_CL}, 6")
        a.e(f"s_sub_u32 s{T_CE}, s{T_CL}, 384")
        a.e(f"s_and_b32 s{S_T0}, s{S_SPLIT}, 1")
        a.e(f"s_lshl_b32 s{S_T0}, s{S_T0}, 1")
        a.e(f"s_and_b32 s{S_T1}, s{S_W}, 1")
        a.e(f"s_add_u32 s{T_TR}, s{S_T0}, s{S_T1}")
        a.e(f"s_mov_b32 s{T_ACT}, 1")

    def between():
        stamp(a, 'g')
        signal_code([f"s_mov_b32 s{S_T0}, {FLG + 128 + 64*7}"], name="p3")
        signal_site("p3")
        signal_code([f"s_mov_b32 s{S_T0}, {FLG + 128 + 64*8}"], name="p4")
        signal_site("p4")
    tail(a, "m", assign, between, late_c1=True, roles=True)
    stamp(a, 'h')
    stamp_out(a)
    a.e("s_endpgm")
    sy.emit_slow()
    for t in ool:
        a.raw(t)


def k1(a):
    a.raw(".globl recurrent_scan__sliding_block__glu_gated_glu__prompt_kernel\n.p2align 8\n.type recurrent_scan__sliding_block__glu_gated_glu__prompt_kernel,@function\nrecurrent_scan__sliding_block__glu_gated_glu__prompt_kernel:")
    a.e("s_cmp_ge_u32 s2, 256")
    a.e("s_cbranch_scc1 L_k1_end")
    a.e("s_load_dwordx16 s[4:19], s[0:1], 0")
    a.e("s_load_dwordx4 s[20:23], s[0:1], 64")
    a.e(f"v_and_b32 v{V_LANE}, 63, v0")
    a.e(f"v_lshlrev_b32 v{V_L16}, 4, v{V_LANE}")
    a.e(f"v_lshrrev_b32 v{V_T}, 6, v0")
    a.e(f"v_readfirstlane_b32 s{S_W}, v{V_T}")
    a.e(f"s_and_b32 s{S_R}, s{S_W}, 3")
    a.e(f"s_lshr_b32 s{S_C}, s{S_W}, 2")
    a.e(f"s_and_b32 s{S_T0}, s2, 7")
    a.e(f"s_lshr_b32 s{S_T1}, s2, 3")
    if MAPC:
        a.e(f"s_and_b32 s{S_T2}, s{S_T0}, 3")
        a.e(f"s_lshl_b32 s{S_T2}, s{S_T2}, 2")
        a.e(f"s_and_b32 s{S_T3}, s{S_T1}, 3")
        a.e(f"s_add_u32 s{S_RB}, s{S_T2}, s{S_T3}")
        a.e(f"s_lshr_b32 s{S_T0}, s{S_T0}, 2")
        a.e(f"s_lshr_b32 s{S_T1}, s{S_T1}, 2")
    else:
        a.e(f"s_and_b32 s{S_T2}, s{S_T0}, 1")
        a.e(f"s_lshl_b32 s{S_T2}, s{S_T2}, 3")
        a.e(f"s_and_b32 s{S_T3}, s{S_T1}, 7")
        a.e(f"s_add_u32 s{S_RB}, s{S_T2}, s{S_T3}")
        a.e(f"s_lshr_b32 s{S_T0}, s{S_T0}, 1")
        a.e(f"s_lshr_b32 s{S_T1}, s{S_T1}, 3")
    a.e("s_waitcnt lgkmcnt(0)")
    srd(a, R_X, S_X, 2359296)
    srd(a, R_WS, S_WS, WS_SZ)
    srd(a, R_DBG, S_DBG, 256)
    if int(os.environ.get("CODEPF", "0")):
        a.e(f"s_getpc_b64 s[{R_A}:{R_A+1}]")
        a.raw("L_pc0:")
        a.e(f"s_mov_b32 s{R_A+2}, L_k1_end-L_pc0")
        a.e(f"s_mov_b32 s{R_A+3}, 0x20000")
        a.e(f"v_lshlrev_b32 v{V_T}, 6, v0")
        for k in range((int(os.environ.get('CODEPF'))+31)//32):
            a.e(f"s_mov_b32 s{S_T2}, {k*32768}")
            a.e(f"buffer_load_dword v0, v{V_T}, {sr(R_A,4)}, s{S_T2} offen")
    a.e(f"s_cmp_ge_u32 s{S_T1}, {6 if MAPC else 3}")
    a.e("s_cbranch_scc1 L_att")
    a.e(f"s_mul_i32 s{S_SPLIT}, s{S_T0}, {6 if MAPC else 3}")
    a.e(f"s_add_u32 s{S_SPLIT}, s{S_SPLIT}, s{S_T1}")
    if FLAG("MAPA"):
        a.e(f"s_and_b32 s{S_T0}, s2, 7")
        a.e(f"s_mul_i32 s{S_T0}, s{S_T0}, 24")
        a.e(f"s_lshr_b32 s{S_T1}, s2, 3")
        a.e(f"s_add_u32 s{S_T0}, s{S_T0}, s{S_T1}")
        a.e(f"s_lshr_b32 s{S_SPLIT}, s{S_T0}, 4")
        a.e(f"s_and_b32 s{S_RB}, s{S_T0}, 15")
    mlp(a)
    a.label("L_att")
    if MAPC:
        a.e(f"s_lshl_b32 s{S_HG}, s{S_T0}, 1")
        a.e(f"s_add_u32 s{S_HG}, s{S_HG}, s{S_T1}")
        a.e(f"s_sub_u32 s{S_HG}, s{S_HG}, 6")
    else:
        a.e(f"s_mov_b32 s{S_HG}, s{S_T0}")
    try:
        import gen_att
        gen_att.att(a)
    except ImportError:
        pass
    a.label("L_k1_end")
    a.e("s_endpgm")


def desc(name, vgpr, sgpr):
    return f""".p2align 6
.amdhsa_kernel {name}
  .amdhsa_next_free_vgpr {vgpr}
  .amdhsa_next_free_sgpr {sgpr}
  .amdhsa_accum_offset {(vgpr+3)//4*4}
  .amdhsa_group_segment_fixed_size 0
  .amdhsa_kernarg_size 80
  .amdhsa_user_sgpr_count 2
  .amdhsa_user_sgpr_kernarg_segment_ptr 1
  .amdhsa_system_sgpr_workgroup_id_x 1
.end_amdhsa_kernel"""


def main():
    a = Asm()
    a.raw(f"; @launch grid=(256,1,1) block=(512,1,1) lds={LDS_SZ}")
    have_k2 = False
    if have_k2:
        a.raw(gen_k2.LAUNCH)
    a.raw('.amdgcn_target "amdgcn-amd-amdhsa--gfx950"\n.text')
    k1(a)
    if have_k2:
        b = Asm()
        gen_k2.k2(b)
        a.raw(b.text())
    a.raw('.section .rodata,"a"')
    a.raw(desc("recurrent_scan__sliding_block__glu_gated_glu__prompt_kernel", 256, 102))
    if have_k2:
        a.raw(desc("k2_kernel", gen_k2.VGPRS, 48))
    sys.stdout.write(a.text())


if __name__ == "__main__":
    main()
```
